```python
import torch

def _softmax(x, axis=-1):
    return torch.softmax(x, dim=axis)
def _gelu(x):
    return torch.nn.functional.gelu(x, approximate="tanh")
def _silu(x):
    return torch.nn.functional.silu(x)
def _sigmoid(x):
    return torch.sigmoid(x)
def _layernorm(x, axis=-1, eps=1e-5):
    m = x.mean(dim=axis, keepdim=True)
    v = x.var(dim=axis, keepdim=True, unbiased=False)
    return (x - m) / torch.sqrt(v + eps)
def _scatter_add(tgt, idx, src, axis=0):
    return tgt.clone().index_add_(axis, idx, src)
def _segment_sum(src, seg, n):
    out = torch.zeros((n,) + src.shape[1:], dtype=src.dtype)
    return out.index_add_(0, seg, src)
def _pad(x, pw):
    flat = tuple(v for pair in reversed(pw) for v in pair)
    return torch.nn.functional.pad(x, flat)

kernel_name = 'standalone__gqa_block_cached__near_ridge'

def setup_inputs():

    _w = (lambda a: (lambda t: t.to(torch.bfloat16) if t.is_floating_point() else t)(torch.as_tensor(a)))
    B, Sq, D = 16, 64, 576
    Hq, Hkv, Sk, Dh = 32, 16, 512, 128
    assert Hq % Hkv == 0, (Hq, Hkv)
    return {
        "x": _w((lambda *s: torch.randn(*s, dtype=torch.bfloat16) * 0.8)(B, Sq, D)),
        "k_cache": _w((lambda *s: torch.randn(*s, dtype=torch.bfloat16) * 0.8)(B, Hkv, Sk, Dh)),
        "v_cache": _w((lambda *s: torch.randn(*s, dtype=torch.bfloat16) * 0.05)(B, Hkv, Sk, Dh)),
        "wq": _w((lambda *s: torch.randn(*s, dtype=torch.bfloat16) * 0.8)(D, Hq * Dh) * (D ** -0.5)),
        "wo": _w((lambda *s: torch.randn(*s, dtype=torch.bfloat16) * 0.05)(Hq * Dh, D) * ((Hq * Dh) ** -0.5)),
    }

def reference(x, k_cache, v_cache, wq, wo):
    B, Sq, D = x.shape
    Hq, Dh = 32, 128
    Hkv = k_cache.shape[1]
    rep = Hq // Hkv
    q = (lambda x, *d: x.permute(*d))((x @ wq).reshape(B, Sq, Hq, Dh), 0, 2, 1, 3)
    k = (lambda x, n, axis: torch.repeat_interleave(x, n, dim=axis))(k_cache, rep, axis=1)
    v = (lambda x, n, axis: torch.repeat_interleave(x, n, dim=axis))(v_cache, rep, axis=1)
    scores = torch.einsum("bhqd,bhkd->bhqk", q, k) * (Dh ** -0.5)
    p = _softmax(scores, axis=-1)
    o = torch.einsum("bhqk,bhkd->bhqd", p, v)
    return (lambda x, *d: x.permute(*d))(o, 0, 2, 1, 3).reshape(B, Sq, Hq * Dh) @ wo
```

```python
import re, copy

def _regs(tok):
    tok = tok.strip()
    tok = tok.lstrip('-')
    if tok.startswith('abs(') or tok.startswith('|'):
        tok = tok.strip('|').replace('abs(', '').rstrip(')')
    m = re.fullmatch(r'([vas])(\d+)', tok)
    if m: return [(m.group(1), int(m.group(2)))]
    m = re.fullmatch(r'([vas])\[(\d+):(\d+)\]', tok)
    if m: return [(m.group(1), i) for i in range(int(m.group(2)), int(m.group(3)) + 1)]
    if tok in ('vcc', 'vcc_lo', 'vcc_hi'): return [('s', 'vcc')]
    if tok == 'm0': return [('s', 'm0')]
    if tok == 'exec': return [('s', 'exec')]
    return []

TRANS = ('v_exp_f32', 'v_log_f32', 'v_rcp_f32', 'v_rsq_f32', 'v_sqrt_f32')

class Ins:
    __slots__ = ('text', 'op', 'kind', 'defs', 'uses', 'a', 'b', 'c', 'ws')
    def __init__(s, text):
        s.text = text
        t = text.split(';')[0].strip()
        t = re.sub(r'\s+(op_sel|op_sel_hi|neg_lo|neg_hi):\[[^\]]*\]', '', t)
        parts = t.split(None, 1)
        s.op = op = parts[0]
        rest = parts[1] if len(parts) > 1 else ''
        ops = [o.strip() for o in rest.split(',')] if rest else []
        mods = []
        if ops:
            last = ops[-1].split()
            ops[-1] = last[0]
            mods = last[1:]
        s.defs = []; s.uses = []; s.a = s.b = s.c = []; s.ws = 1
        R = lambda i: _regs(ops[i]) if i < len(ops) else []
        if op.startswith('v_mfma'):
            s.kind = 'mfma'; s.defs = R(0); s.a = R(1); s.b = R(2); s.c = R(3); s.uses = s.a + s.b + s.c
        elif op.startswith('ds_read'):
            s.kind = 'ds_read'; s.defs = R(0); s.uses = R(1)
        elif op.startswith('ds_write'):
            s.kind = 'ds_write'; s.uses = R(0) + R(1)
        elif op.startswith('buffer_load'):
            if 'lds' in mods:
                s.kind = 'dma'; s.uses = R(0) + R(1) + R(2) + [('s', 'm0')]
            else:
                s.kind = 'vload'; s.defs = R(0); s.uses = R(1) + R(2) + R(3)
        elif op.startswith('buffer_store') or op.startswith('buffer_atomic'):
            s.kind = 'vstore'; s.uses = R(0) + R(1) + R(2) + R(3); s.a = R(0)
        elif op.startswith('buffer_'):
            s.kind = 'vmisc'
        elif op.startswith('v_permlane'):
            s.kind = 'permlane'; s.defs = R(0) + R(1); s.uses = R(0) + R(1)
        elif op.startswith('v_writelane'):
            s.kind = 'valu'; s.defs = R(0); s.uses = R(0) + R(1)
        elif op.startswith('v_readfirstlane') or op.startswith('v_readlane'):
            s.kind = 'readlane'; s.defs = R(0); s.uses = R(1)
        elif op.startswith('v_'):
            s.kind = 'trans' if op.replace('_e32', '').replace('_e64', '') in TRANS else 'valu'
            s.defs = R(0); s.uses = sum((R(i) for i in range(1, len(ops))), [])
            if op.startswith('v_fmac') or op.startswith('v_dot2c'): s.uses += R(0)
            if op.startswith('v_cndmask') and len(ops) == 3: s.uses += [('s', 'vcc')]
        elif op == 's_nop':
            s.kind = 'nop'; s.ws = int(ops[0], 0) + 1
        elif op == 's_waitcnt': s.kind = 'wait'
        elif op == 's_barrier': s.kind = 'barrier'
        elif op.startswith('s_cbranch') or op in ('s_branch', 's_endpgm', 's_setpc_b64', 's_sleep', 's_setprio'):
            s.kind = 'branch'
        elif op.startswith('s_cmp') or op.startswith('s_bitcmp'):
            s.kind = 'salu'; s.uses = R(0) + R(1)
        elif op.startswith('s_load') or op.startswith('s_mem'):
            s.kind = 'smem'; s.defs = R(0); s.uses = R(1)
        elif op.startswith('s_'):
            s.kind = 'salu'; s.defs = R(0); s.uses = sum((R(i) for i in range(1, len(ops))), [])
        else:
            raise ValueError('unknown op ' + text)

VALU_KINDS = ('valu', 'trans', 'permlane', 'readlane')

class State:
    def __init__(s):
        s.pos = 0
        s.wr = {}
        s.mfma_c = {}
        s.st = {}
        s.lds = []
    def clone(s): return copy.deepcopy(s)

class Emit:
    def __init__(s):
        s.out = []
        s.S = State()
        s.vm = {'A': [], 'B': []}
        s.roles = ['A', 'B']
        s.count = {}
        s.nops = 0
    def raw(s, text): s.out.append(text)
    def label(s, name): s.out.append(name + ':')
    def comment(s, t): s.out.append('    ; ' + t)
    def _put(s, ins):
        s.out.append('    ' + ins.text)
        s.count[ins.kind] = s.count.get(ins.kind, 0) + 1
        if ins.kind == 'wait':
            m = re.search(r'lgkmcnt\((\d+)\)', ins.text)
            if m:
                n = int(m.group(1))
                if n < len(s.S.lds): s.S.lds = s.S.lds[len(s.S.lds) - n:] if n else []
        S = s.S
        p = S.pos
        if ins.kind in VALU_KINDS or ins.kind in ('mfma', 'salu'):
            for r in ins.defs: S.wr[r] = (p, ins.kind, tuple(ins.defs) if ins.kind == 'mfma' else None)
        elif ins.kind in ('ds_read', 'vload', 'smem'):
            for r in ins.defs: S.wr.pop(r, None)
        if ins.kind == 'mfma':
            for r in ins.c: S.mfma_c[r] = p
        if ins.kind == 'vstore' and len(ins.a) >= 3:
            for r in ins.a: S.st[r] = p
        if ins.kind == 'ds_read': S.lds.append(set(ins.defs))
        if ins.kind == 'ds_write': S.lds.append(set())
        S.pos += ins.ws
    def _need(s, ins):
        S = s.S; need = 0
        def req(pp, n):
            nonlocal need
            d = S.pos - pp - 1
            if d < n: need = max(need, n - d)
        k = ins.kind
        for r in ins.uses:
            w = S.wr.get(r)
            if not w: continue
            pp, wk, ex = w
            if wk == 'mfma':
                if k == 'mfma':
                    if r in ins.a or r in ins.b: req(pp, 12)
                    elif tuple(ins.c) != ex: req(pp, 10)
                else: req(pp, 12)
            elif wk in VALU_KINDS:
                if r[0] in 'va':
                    if k == 'mfma': req(pp, 2)
                    if k == 'permlane': req(pp, 2)
                    if k == 'readlane': req(pp, 1)
                    if wk == 'trans' and k in ('valu', 'permlane', 'readlane', 'mfma', 'vstore', 'ds_write'): req(pp, 1)
                else:
                    if k in ('dma', 'vload', 'vstore'): req(pp, 5)
                    if k in VALU_KINDS: req(pp, 2)
                    if k in ('salu', 'smem'): req(pp, 1)
            elif wk == 'salu':
                if r == ('s', 'm0') and k == 'dma': req(pp, 1)
        for r in ins.defs:
            w = S.wr.get(r)
            if w and w[1] == 'mfma':
                if k == 'mfma':
                    if tuple(ins.c) != w[2] or tuple(ins.defs) != w[2]: req(w[0], 12)
                else: req(w[0], 12)
            if k in VALU_KINDS or k in ('ds_read', 'vload'):
                if r in S.mfma_c: req(S.mfma_c[r], 7)
            if r in S.st: req(S.st[r], 2)
        return need
    def __call__(s, text, tag=None):
        ins = Ins(text)
        touched = set(ins.uses) | set(ins.defs)
        idx = -1
        for i, d in enumerate(s.S.lds):
            if d & touched: idx = i
        if idx >= 0:
            n = len(s.S.lds) - 1 - idx
            s._put(Ins(f's_waitcnt lgkmcnt({min(n, 14)})'))
        n = s._need(ins)
        while n > 0:
            k = min(n, 16)
            s._put(Ins(f's_nop {k - 1}')); s.nops += 1
            n -= k
        if ins.kind in ('dma', 'vload', 'vstore'):
            for r in s.roles: s.vm[r].append(tag)
        s._put(ins)
    def wait_vm(s, tags, lgkm0=False):
        N = None
        for r in s.roles:
            q = s.vm[r]
            last = max((i for i, t in enumerate(q) if t in tags), default=None)
            if last is None: continue
            n = len(q) - 1 - last
            N = n if N is None else min(N, n)
        parts = []
        if N is not None: parts.append(f'vmcnt({min(N, 63)})')
        if lgkm0 and s.S.lds: parts.append('lgkmcnt(0)')
        if parts: s('s_waitcnt ' + ' '.join(parts))
    def weave(s, mf, streams):
        n = len(mf)
        slots = {g: [] for g in range(-1, n)}
        for items, g0, g1 in streams:
            m = len(items); span = g1 - g0
            for i, it in enumerate(items):
                g = g0 + (i * span) // m
                slots[g].append(it)
        def put(it):
            if callable(it): it()
            elif isinstance(it, tuple): s(it[0], it[1])
            else: s(it)
        for it in slots[-1]: put(it)
        for g in range(n):
            s(mf[g])
            for it in slots[g]: put(it)
    @staticmethod
    def merge_states(a, b):
        assert [sorted(x) for x in a.lds] == [sorted(x) for x in b.lds], "lds queues differ at join"
        r = State(); r.pos = 1000000; r.lds = copy.deepcopy(a.lds)
        for name in ('wr', 'mfma_c', 'st'):
            da, db, dr = getattr(a, name), getattr(b, name), getattr(r, name)
            for src, st in ((da, a), (db, b)):
                for k, v in src.items():
                    age = st.pos - (v[0] if name == 'wr' else v)
                    if age > 40: continue
                    np_ = r.pos - age
                    if name == 'wr':
                        old = dr.get(k)
                        if old is not None and old[1] != v[1]:
                            raise AssertionError(f"writer kinds differ at join for {k}")
                        if old is None or old[0] < np_: dr[k] = (np_, v[1], v[2])
                    else:
                        if dr.get(k, -1) < np_: dr[k] = np_
        return r
    def text(s): return '\n'.join(s.out) + '\n'
```

```python
import sys, math
from emit import Emit, State

NAME = "standalone__gqa_block_cached__near_ridge"
opts = dict(kv="nt", wq="", x="", wo="", st="sc1", ld="", stamps=0, T=8.0)
for a in sys.argv[2:]:
    k, v = a.split('=')
    opts[k] = type(opts[k])(v) if not isinstance(opts[k], str) else v.replace('+', ' ')
STAMPS = opts['stamps']

import struct
def f32(x): return '0x%08x' % struct.unpack('<I', struct.pack('<f', x))[0]

e = Emit()
SX, SK, SV, SWQ, SWO, SWS = 20, 24, 28, 32, 36, 40
sW, sHKV, sB, sROT = 44, 45, 46, 47
sT0, sT1, sT2 = 48, 49, 52
sRET = 50
sWQ, sWO, sST = 53, 54, 55
sM0W = 56
sM0T = 57
sSC = 58
sTILE = 64
sSTAMP = 80
vT = 1
vKR = 16
vVR = 40
vKa, vKb, vVc = 52, 53, 54
vWOR = 55
vXW, vXR = 61, 62
vWOV = 63
vSTV = 67
vMX = 68
vINV = 70
vS = 80
vNM = 112
vP = 128
vO = 144
vL = 208
vQ = 224
vXRD = 80
vWQR = 88
vXV = 96
vWQV = 100
vKV = 104
vVV = 108
aX = 0; aWQ = 144; aONE = 240
aK = 0; aV = 32; aWO = 64; aOO = 192

def vr(b, n): return f'v[{b}:{b+n-1}]'
def ar(b, n): return f'a[{b}:{b+n-1}]'
def sr(b, n=4): return f's[{b}:{b+n-1}]'
MF = 'v_mfma_f32_32x32x16_bf16'

nstamp = [0]
def stamp():
    if not STAMPS: return
    i = nstamp[0]; nstamp[0] += 1
    e('s_waitcnt lgkmcnt(0)')
    e(f's_memrealtime s[{sSTAMP+2*i}:{sSTAMP+2*i+1}]')
    e('s_waitcnt lgkmcnt(0)')

def win(off): return off >> 16, off & 0xffff

def dma_tile_full(srd, vo, soff_lo, soff_hi, m0_expr, slot, tag, pol):
    items = []
    for half, so in ((0, soff_lo), (1, soff_hi)):
        if m0_expr is None: items.append(f's_mov_b32 m0, {slot*8192 + half*4096}')
        else: items.append(f's_add_u32 m0, {m0_expr}, {slot*8192 + half*4096}')
        if isinstance(so, tuple):
            items.append(so[0]); sreg = so[1]
        else: sreg = so
        for p in range(4):
            v = vo[0] if isinstance(vo, tuple) else vo + p
            off = f' offset:{p*1024}' if p else ''
            items.append((f'buffer_load_dwordx4 v{v}, {sr(srd)}, {sreg} offen{off} {pol} lds'.replace('  ', ' '), tag))
    return items

def wrap_adv(r, step, lim, tmp):
    def f():
        e(f's_sub_u32 s{tmp}, s{r}, {lim}')
        e(f's_cselect_b32 s{r}, s{r}, s{tmp}')
    return [f's_add_u32 s{r}, s{r}, {step}', f]

KVORD = ['K0'] + sum(([f'K{t+1}', f'V{t}'] for t in range(15)), []) + ['V15']
KVSLOT = {}
_first = [9, 10] + list(range(0, 9)) + list(range(11, 20))
for n, nm in enumerate(KVORD):
    KVSLOT[nm] = _first[n] if n < 20 else _first[n - 20]

def kv_roleB(n):
    nm = KVORD[n]; t = int(nm[1:]); isk = nm[0] == 'K'
    return dma_tile_full(SK if isk else SV, vKV if isk else (vVV,), f's{sTILE+t}',
                         (f's_add_u32 s{sT0}, s{sTILE+t}, 4096', f's{sT0}'), None, KVSLOT[nm], nm, opts['kv'])
def kv_common(n):
    nm = KVORD[n]; t = int(nm[1:]); isk = nm[0] == 'K'
    srd = SK if isk else SV
    pol = opts['kv']
    return [f's_add_u32 m0, s{sM0W}, {KVSLOT[nm]*8192}',
            (f'buffer_load_dwordx4 v{vKa if isk else vVc}, {sr(srd)}, s{sTILE+t} offen {pol} lds', nm),
            (f'buffer_load_dwordx4 v{vKb if isk else vVc}, {sr(srd)}, s{sTILE+t} offen offset:1024 {pol} lds', nm)]
def wq_stage(s):
    it = dma_tile_full(SWQ, vWQV, f's{sWQ}', (f's_add_u32 s{sT0}, s{sWQ}, 256', f's{sT0}'), f's{sM0T}', 11 + 3 * (s % 3), f'WQ{s}', opts['wq'])
    it += wrap_adv(sWQ, 3*131072, 36*131072, sT1)
    return it
WOG = [3, 4, 0, 2, 3, 4, 1, 0, 2]
def wo_cb(j):
    it = dma_tile_full(SWO, vWOV, f's{sWO}', (f's_add_u32 s{sT0}, s{sWO}, 36864', f's{sT0}'), f's{sM0T}', 4 * WOG[j], f'WO{j}', opts['wo'])
    it += wrap_adv(sWO, 128, 1152, sT1)
    return it
def put(items):
    for it in items:
        if callable(it): it()
        elif isinstance(it, tuple): e(it[0], it[1])
        else: e(it)

def mk_srd(d, ptr, addlo, nbytes):
    e(f's_add_u32 s{d}, s{ptr}, {addlo}')
    e(f's_addc_u32 s{d+1}, s{ptr+1}, 0')
    e(f's_and_b32 s{d+1}, s{d+1}, 0xffff')
    e(f's_mov_b32 s{d+2}, {nbytes}')
    e(f's_mov_b32 s{d+3}, 0x00020000')

def rd_x(s):
    blk, ks = divmod(s, 4)
    w_, o = win(blk * 8192)
    return f'ds_read_b128 {ar(aX+4*s, 4)}, v{vXRD + 4*w_ + ks} offset:{o}'
def rd_wq(stage):
    it = []
    for ks in range(3):
        slot = 11 + 3 * (stage % 3) + ks
        for u in range(4):
            w_, o = win(slot * 8192)
            d = aWQ + 48 * (stage % 2) + (ks * 4 + u) * 4
            for sec in range(2):
                it.append(f'ds_read_b64_tr_b16 {ar(d+2*sec, 2)}, v{vWQR + 4*(w_-1) + u} offset:{o + sec*1024}')
    return it
def mf_q(stage, order=None):
    it = []
    idx = [(ks, u) for ks in range(3) for u in range(4)] if order is None else order
    for ks, u in idx:
        d = aWQ + 48 * (stage % 2) + (ks * 4 + u) * 4
        c = '0' if (stage == 0 and ks == 0) else vr(vO + 16 * u, 16)
        it.append(f'{MF} {vr(vO+16*u, 16)}, {ar(d, 4)}, {ar(aX + 4*(3*stage+ks), 4)}, {c}')
    return it
def rd_k(t):
    w_, o = win(KVSLOT[f'K{t}'] * 8192)
    return [f'ds_read_b128 {ar(aK+4*s, 4)}, v{vKR + 8*w_ + s} offset:{o}' for s in range(8)]
def rd_v(t):
    w_, o = win(KVSLOT[f'V{t}'] * 8192)
    it = []
    for a in range(2):
        for tt in range(4):
            d = aV + (a * 4 + tt) * 4
            for sec in range(2):
                it.append(f'ds_read_b64_tr_b16 {ar(d+2*sec, 2)}, v{vVR + 4*w_ + tt} offset:{o + a*4096 + sec*2048}')
    return it
def mf_qk(t):
    S = vS + 16 * (t % 2)
    it = []
    for s in range(8):
        c = vr(S, 16) if s else ('0' if t == 0 else vr(vNM, 16))
        it.append(f'{MF} {vr(S, 16)}, {ar(aK+4*s, 4)}, {vr(vQ+4*s, 4)}, {c}')
    return it
def mf_pv(t):
    P = vP + 8 * (t % 2)
    it = []
    for a in range(2):
        for tt in range(4):
            c = '0' if (t == 0 and a == 0) else vr(vO + 16 * tt, 16)
            it.append(f'{MF} {vr(vO+16*tt, 16)}, {ar(aV + (a*4+tt)*4, 4)}, {vr(P+4*a, 4)}, {c}')
        c = '0' if (t == 0 and a == 0) else vr(vL, 16)
        it.append(f'{MF} {vr(vL, 16)}, {ar(aONE, 4)}, {vr(P+4*a, 4)}, {c}')
    return it
def sm_max(t):
    S = vS + 16 * (t % 2)
    it = [f'v_max3_f32 v{vMX}, v{S}, v{S+1}, v{S+2}', f'v_max3_f32 v{vMX+1}, v{S+3}, v{S+4}, v{S+5}']
    k = 6; d = 0
    while k < 16:
        it.append(f'v_max3_f32 v{vMX+d}, v{vMX+d}, v{S+k}, v{S+k+1}'); k += 2; d ^= 1
    it.append(f'v_max_f32 v{vMX}, v{vMX}, v{vMX+1}')
    return it
stubs = []
def sm_check(t):
    def f():
        e(f'v_cmp_lt_f32 vcc, {f32(opts["T"])}, v{vMX}')
        e(f's_cbranch_vccnz L_stub{t}')
        e.label(f'L_back{t}')
        stubs.append(t)
    return [f]
def sm_exp(t):
    S = vS + 16 * (t % 2); P = vP + 8 * (t % 2)
    it = [f'v_exp_f32 v{S}, v{S}', f'v_exp_f32 v{S+1}, v{S+1}']
    for p in range(8):
        if p < 7:
            it += [f'v_exp_f32 v{S+2*p+2}, v{S+2*p+2}', f'v_exp_f32 v{S+2*p+3}, v{S+2*p+3}']
        it.append(f'v_cvt_pk_bf16_f32 v{P+p}, v{S+2*p}, v{S+2*p+1}')
    return it
def rd_wo(j):
    w_, o = win(WOG[j] * 32768)
    it = []
    for oth in range(2):
        for f in range(8):
            d = aWO + 64 * (j % 2) + (oth * 8 + f) * 4
            for sec in range(2):
                it.append(f'ds_read_b64_tr_b16 {ar(d+2*sec, 2)}, v{vWOR + 2*w_ + oth} offset:{o + f*2048 + sec*1024}')
    return it
def mf_o(j):
    acc = vS + 16 * (j % 2)
    it = []
    for oth in range(2):
        for f in range(8):
            d = aWO + 64 * (j % 2) + (oth * 8 + f) * 4
            b = vr(vQ + 4 * f, 4) if oth == 0 else ar(aOO + 4 * f, 4)
            c = '0' if (oth == 0 and f == 0) else vr(acc, 16)
            it.append(f'{MF} {vr(acc, 16)}, {ar(d, 4)}, {b}, {c}')
    return it
def ep_o(j):
    acc = vS + 16 * (j % 2); P = vP + 8 * (j % 2)
    it = []
    for h in range(2):
        for p in range(4):
            it.append(f'v_cvt_pk_bf16_f32 v{P+4*h+p}, v{acc+8*h+2*p}, v{acc+8*h+2*p+1}')
        off = ' offset:1024' if h else ''
        it.append((f'buffer_store_dwordx4 {vr(P+4*h, 4)}, v{vSTV}, {sr(SWS)}, s{sST} offen{off} {opts["st"]}', 'ST'))
    it += wrap_adv(sST, 8192, 73728, sT2)
    return it

e.raw(f'.globl main_kernel\n.p2align 8\n.type main_kernel,@function\nmain_kernel:')
e('s_cmp_ge_u32 s2, 256')
e('s_cbranch_scc1 L_end')
e('s_load_dwordx8 s[4:11], s[0:1], 0')
e('s_load_dwordx8 s[12:19], s[0:1], 32')
if STAMPS:
    e(f's_memrealtime s[{sSTAMP}:{sSTAMP+1}]'); nstamp[0] = 1
e(f'v_lshrrev_b32 v1, 6, v0')
e(f's_and_b32 s{sHKV}, s2, 7')
e(f'v_readfirstlane_b32 s{sW}, v1')
e(f's_lshl_b32 s{sHKV}, s{sHKV}, 1')
e(f's_bfe_u32 s{sT0}, s2, 0x10003')
e(f's_add_u32 s{sHKV}, s{sHKV}, s{sT0}')
e(f's_lshr_b32 s{sB}, s2, 4')
e(f's_sub_u32 s{sT0}, s{sB}, 9')
e(f's_cselect_b32 s{sROT}, s{sB}, s{sT0}')
e(f's_lshl_b32 s{sM0W}, s{sW}, 11')
e(f's_lshl_b32 s{sM0T}, s{sW}, 13')
e('v_bfe_u32 v2, v0, 3, 3')
e('v_and_b32 v3, 7, v0')
e('v_bfe_u32 v4, v0, 4, 2')
e('v_and_b32 v5, 15, v0')
e('v_lshrrev_b32 v6, 1, v2')
e('v_xor_b32 v7, v3, v6')
e('v_lshlrev_b32 v7, 4, v7')
e('v_mul_u32_u24 v8, 1152, v2')
e(f'v_add_u32 v{vXV}, v8, v7')
e('v_xor_b32 v7, 64, v7')
e(f'v_add_u32 v9, v8, v7')
e(f'v_add_u32 v{vXV+1}, 8192, v9')
e(f'v_add_u32 v{vXV+2}, 16384, v{vXV}')
e(f'v_add_u32 v{vXV+3}, 24576, v9')
e('v_lshlrev_b32 v7, 2, v4')
e('v_xor_b32 v7, v5, v7')
e('v_lshlrev_b32 v7, 4, v7')
e(f'v_lshl_add_u32 v{vWQV}, v4, 13, v7')
for p in range(1, 4): e(f'v_add_u32 v{vWQV+p}, {p*31744}, v{vWQV}')
e(f'v_lshl_add_u32 v{vVV}, v4, 8, v7')
e('v_xor_b32 v7, v5, v4')
e('v_lshlrev_b32 v7, 4, v7')
e(f'v_lshl_add_u32 v{vKV}, v4, 8, v7')
for p in range(1, 4): e(f'v_xor_b32 v{vKV+p}, {p*64}, v{vKV}')
for t in range(16): e(f's_mov_b32 s{sTILE+t}, {t*8192}')
e(f's_lshl_b32 s{sT0}, s{sROT}, 2')
e(f's_add_u32 s{sT0}, s{sT0}, s{sW}')
e(f's_lshl_b32 s{sWQ}, s{sT0}, 17')
e(f's_lshl_b32 s{sWO}, s{sROT}, 7')
e(f's_lshl_b32 s{sST}, s{sROT}, 13')
e(f's_mul_i32 s60, s{sB}, 73728')
e(f's_lshl_b32 s61, s{sB}, 4')
e(f's_add_u32 s61, s61, s{sHKV}')
e(f's_lshl_b32 s62, s61, 17')
e(f's_lshl_b32 s63, s{sHKV}, 9')
e('s_waitcnt lgkmcnt(0)')
mk_srd(SX, 4, 's60', 73728)
mk_srd(SK, 6, 's62', 131072)
mk_srd(SWQ, 10, 's63', 4718592 - 15 * 512)
mk_srd(SV, 8, 's62', 131072)

def rest_of_setup():
    e(f's_mul_i32 s60, s{sHKV}, 294912')
    mk_srd(SWO, 12, 's60', 294912)
    e(f's_mul_i32 s60, s61, 73728')
    mk_srd(SWS, 18, 's60', 73728)
    sc = math.log2(math.e) / math.sqrt(128.0)
    e(f's_mov_b32 s{sSC}, {f32(sc)}'); e(f's_mov_b32 s{sSC+1}, {f32(sc)}')
    e('v_bfe_u32 v9, v0, 5, 1')
    e('v_and_b32 v10, 31, v0')
    e('v_bfe_u32 v11, v0, 2, 2')
    e('v_and_b32 v12, 3, v0')
    e('v_bfe_u32 v13, v0, 4, 1')
    e('v_and_b32 v14, 1, v1')
    e('v_lshl_add_u32 v14, v14, 5, v10')
    e('v_bfe_u32 v15, v14, 1, 3')
    e('v_xor_b32 v15, v15, v9')
    e('v_lshlrev_b32 v15, 4, v15')
    e(f'v_lshl_add_u32 v{vXRD}, v14, 7, v15')
    for ks in range(1, 4): e(f'v_xor_b32 v{vXRD+ks}, {ks*32}, v{vXRD}')
    for ks in range(4): e(f'v_add_u32 v{vXRD+4+ks}, 0x10000, v{vXRD+ks}')
    e('v_lshrrev_b32 v14, 1, v1')
    e('v_lshlrev_b32 v14, 12, v14')
    e('v_lshl_add_u32 v14, v9, 11, v14')
    e('v_lshl_add_u32 v14, v11, 8, v14')
    e('v_lshl_add_u32 v14, v11, 6, v14')
    e('v_lshl_add_u32 v14, v13, 5, v14')
    e('v_and_b32 v15, 1, v12')
    e('v_lshl_add_u32 v14, v15, 4, v14')
    e('v_lshrrev_b32 v15, 1, v12')
    e('v_lshl_add_u32 v14, v15, 3, v14')
    e(f'v_add_u32 v{vWQR}, 0x10000, v14')
    for u in range(1, 4): e(f'v_xor_b32 v{vWQR+u}, {u*64}, v{vWQR}')
    for u in range(4): e(f'v_add_u32 v{vWQR+4+u}, 0x10000, v{vWQR+u}')
    e('v_xor_b32 v14, v9, v5')
    e('v_lshlrev_b32 v14, 4, v14')
    e(f'v_lshl_add_u32 v{vKR}, v10, 8, v14')
    for s in range(1, 8): e(f'v_xor_b32 v{vKR+s}, {s*32}, v{vKR}')
    for w_ in (1, 2):
        for s in range(8): e(f'v_add_u32 v{vKR+8*w_+s}, {w_*0x10000}, v{vKR+s}')
    e('v_lshlrev_b32 v14, 10, v9')
    e('v_lshl_add_u32 v14, v11, 8, v14')
    e('v_lshl_add_u32 v14, v11, 6, v14')
    e('v_lshl_add_u32 v14, v13, 5, v14')
    e(f'v_lshl_add_u32 v{vVR}, v12, 3, v14')
    for t in range(1, 4): e(f'v_xor_b32 v{vVR+t}, {t*64}, v{vVR}')
    for w_ in (1, 2):
        for t in range(4): e(f'v_add_u32 v{vVR+4*w_+t}, {w_*0x10000}, v{vVR+t}')
    e('v_and_b32 v14, 1, v1')
    e('v_lshlrev_b32 v14, 7, v14')
    e(f'v_xor_b32 v14, v14, v{vKV}')
    e(f'v_lshl_add_u32 v{vKa}, v1, 11, v14')
    e(f'v_xor_b32 v{vKb}, 64, v{vKa}')
    e(f'v_lshl_add_u32 v{vVc}, v1, 11, v{vVV}')
    e('v_lshrrev_b32 v7, 1, v1')
    e('v_lshlrev_b32 v14, 9, v9')
    e('v_lshl_add_u32 v14, v11, 7, v14')
    e('v_lshrrev_b32 v15, 1, v11')
    e('v_xor_b32 v15, v15, v7')
    e('v_lshl_add_u32 v14, v15, 6, v14')
    e('v_and_b32 v15, 1, v12')
    e('v_lshl_add_u32 v14, v15, 5, v14')
    e('v_lshl_add_u32 v14, v13, 4, v14')
    e('v_lshrrev_b32 v15, 1, v12')
    e('v_lshl_add_u32 v14, v15, 3, v14')
    e(f'v_lshl_add_u32 v{vWOR}, v7, 14, v14')
    e(f'v_xor_b32 v{vWOR+1}, 0x4000, v{vWOR}')
    for w_ in (1, 2):
        for o in range(2): e(f'v_add_u32 v{vWOR+2*w_+o}, {w_*0x10000}, v{vWOR+o}')
    e('v_and_b32 v14, 63, v0')
    e('v_lshlrev_b32 v14, 4, v14')
    e(f'v_lshl_add_u32 v{vXW}, v1, 13, v14')
    e(f'v_xor_b32 v{vXR}, 0x4000, v{vXW}')
    e(f'v_lshl_add_u32 v{vSTV}, v1, 11, v14')
    e('v_and_b32 v14, 1, v6')
    e('v_lshlrev_b32 v14, 2, v14')
    e('v_xor_b32 v14, v14, v3')
    e('v_lshl_add_u32 v14, v14, 4, v8')
    e('v_mul_u32_u24 v15, 73728, v1')
    e(f'v_add_u32 v{vWOV}, v14, v15')
    for p in range(1, 4): e(f'v_add_u32 v{vWOV+p}, {p*8192}, v{vWOV}')
    e('v_mov_b32 v14, 0x3f803f80')
    for i in range(4): e(f'v_accvgpr_write_b32 a{aONE+i}, v14')

BPLAN = {0: [2, 3], 1: [4, 5], 2: [6], 3: [7], 4: [8], 5: [9], 6: [10]}

def qproj(role):
    e.roles = [role]
    ns0 = nstamp[0]
    if role == 'A':
        for k in range(3):
            e(f's_add_u32 s{sT1}, s{sW}, s{sROT}')
            e(f's_add_u32 s{sT1}, s{sT1}, {3*k}')
            e(f's_sub_u32 s{sT2}, s{sT1}, 9')
            e(f's_cselect_b32 s{sT1}, s{sT1}, s{sT2}')
            e(f's_lshl_b32 s{sT1}, s{sT1}, 7')
            put(dma_tile_full(SX, vXV, f's{sT1}', (f's_add_u32 s{sT0}, s{sT1}, 36864', f's{sT0}'), f's{sM0T}', 3 * k, 'X', opts['x']))
        for s in range(3): put(wq_stage(s))
    else:
        put(kv_roleB(0)); put(kv_roleB(1))
    rest_of_setup()
    e.wait_vm({'X', 'WQ0'}); e('s_barrier')
    stamp()
    for s in range(36): e(rd_x(s))
    put(rd_wq(0))
    e.wait_vm({'WQ1'}, lgkm0=True); e('s_barrier')
    stamp()
    for s in range(10):
        dma = []
        if s < 9:
            if role == 'A': dma = wq_stage(s + 3)
            else:
                for n in BPLAN.get(s, []): dma += kv_roleB(n)
        else:
            for n in (11, 12, 13): dma += kv_common(n)
        streams = [(rd_wq(s + 1), 0, 10)]
        if dma: streams.append((dma, -1, 11))
        e.weave(mf_q(s), streams)
        e.wait_vm({f'WQ{s+2}'}, lgkm0=True); e('s_barrier')
    if role == 'B': nstamp[0] = ns0

e(f's_cmp_eq_u32 s{sW}, 3')
e('s_cbranch_scc0 L_roleA')
S0 = e.S.clone()
qproj('B')
e('s_branch L_common')
SB = e.S
e.label('L_roleA')
e.S = S0
qproj('A')
e.label('L_common')
e.S = Emit.merge_states(e.S, SB)
e.roles = ['A', 'B']
dma = sum((kv_common(n) for n in (14, 15, 16)), [])
e.weave(mf_q(10), [(rd_wq(11), 0, 10), (dma, -1, 11)])
e.wait_vm({'K0'}, lgkm0=True); e('s_barrier')
dma = sum((kv_common(n) for n in (17, 18, 19)), [])
def qcvt(u):
    it = []
    for p in range(8):
        r = vO + 16 * u + 2 * p
        it.append(f'v_pk_mul_f32 {vr(r, 2)}, {vr(r, 2)}, s[{sSC}:{sSC+1}]')
    for p in range(8):
        r = vO + 16 * u + 2 * p
        it.append(f'v_cvt_pk_bf16_f32 v{vQ+8*u+p}, v{r}, v{r+1}')
    return it
e.weave(mf_q(11, [(ks, u) for u in range(4) for ks in range(3)]),
        [(rd_k(0), 0, 4), (dma, -1, 5), (qcvt(0), 5, 8), (qcvt(1), 8, 12)])
stamp()
qk0 = mf_qk(0)
e.weave(qk0[:4], [(qcvt(2), 0, 2), (qcvt(3), 2, 4)])
e.weave(qk0[4:], [])
e.wait_vm({'K1', 'V0'}, lgkm0=True); e('s_barrier')
nxt = 20
WOPLAN = {8: 0, 10: 1, 13: 2}
for t in range(16):
    dma = []
    nfree = 1 if t == 0 else 2
    for _ in range(nfree):
        if nxt < 32: dma += kv_common(nxt); nxt += 1
    if t in WOPLAN: dma += wo_cb(WOPLAN[t])
    if t == 0:
        put(dma); put(rd_k(1)); put(sm_max(0))
        e(f'v_mov_b32 v{vMX+1}, v{vMX}')
        e(f'v_permlane32_swap_b32 v{vMX}, v{vMX+1}')
        e(f'v_max_f32 v{vMX}, v{vMX}, v{vMX+1}')
        for r in range(16): e(f'v_sub_f32 v{vNM+r}, 0, v{vMX}')
        sub = [f'v_sub_f32 v{vS+r}, v{vS+r}, v{vMX}' for r in range(16)]
        e('s_waitcnt lgkmcnt(0)')
        e.weave(mf_qk(1), [(rd_v(0), 0, 6), (sub + sm_exp(0), 0, 8)])
    elif t < 15:
        sm = sm_max(t) + sm_check(t) + sm_exp(t)
        streams = [(rd_k(t + 1), 0, 8), (rd_v(t), 10, 16), (sm, 1, 18)]
        if dma: streams.append((dma, -1, 9))
        streams.append((['s_waitcnt lgkmcnt(0)'], 9, 10))
        e.weave(mf_pv(t - 1) + mf_qk(t + 1), streams)
    else:
        sm = sm_max(t) + sm_check(t) + sm_exp(t)
        e.weave(mf_pv(14), [(sm, 1, 10)])
    if t < 14:
        e.wait_vm({f'K{t+2}', f'V{t+1}'}, lgkm0=True); e('s_barrier')
    elif t == 15:
        e.wait_vm({'V15', 'WO0'}, lgkm0=True); e('s_barrier')
stamp()
put(rd_v(15))
e.weave(mf_pv(15), [(rd_wo(0), 0, 10)])
e(f'v_rcp_f32 v{vINV}, v{vL}')
for tt in range(4):
    for p in range(8):
        r = vO + 16 * tt + 2 * p
        e(f'v_pk_mul_f32 {vr(r, 2)}, {vr(r, 2)}, {vr(vINV, 2)} op_sel_hi:[1,0]')
    for p in range(8):
        r = vO + 16 * tt + 2 * p
        e(f'v_cvt_pk_bf16_f32 v{vQ+8*tt+p}, v{r}, v{r+1}')
    for a in range(2):
        f = 2 * tt + a
        e(f'ds_write_b128 v{vXW}, {vr(vQ+4*f, 4)} offset:{32768 + f*1024}')
e.wait_vm({'WO1'}, lgkm0=True); e('s_barrier')
stamp()
OPLAN = {0: [3, 4], 1: [5, 6], 2: [7], 3: [8]}
for j in range(9):
    streams = []
    if j == 0:
        streams.append(([f'ds_read_b128 {ar(aOO+4*f, 4)}, v{vXR} offset:{32768 + f*1024}' for f in range(8)], -1, 2))
    dma = sum((wo_cb(c) for c in OPLAN.get(j, [])), [])
    if dma: streams.append((dma, 0, 15))
    if j < 8: streams.append((rd_wo(j + 1), 0, 14))
    if j > 0: streams.append((ep_o(j - 1), 3, 10))
    e.weave(mf_o(j), streams)
    if j < 7:
        e.wait_vm({f'WO{j+2}'}, lgkm0=True); e('s_barrier')
put(ep_o(8))
stamp()
if STAMPS:
    e('s_waitcnt vmcnt(0)')
    stamp()
    n = nstamp[0]
    e('v_cmp_eq_u32 vcc, 0, v0')
    e('s_and_saveexec_b64 s[60:61], vcc')
    e('s_cbranch_execz L_end')
    e(f's_mov_b32 s{SWS}, s18'); e(f's_and_b32 s{SWS+1}, s19, 0xffff'); e(f's_mov_b32 s{SWS+2}, 0x10000000')
    e(f's_mul_i32 s62, s2, {STAMPS*8}')
    e(f's_add_u32 s62, s62, 0x8000000')
    e('v_mov_b32 v4, s62')
    for i in range(n):
        e(f'v_mov_b32 v2, s{sSTAMP+2*i}'); e(f'v_mov_b32 v3, s{sSTAMP+2*i+1}')
        e(f'buffer_store_dwordx2 v[2:3], v4, {sr(SWS)}, 0 offen offset:{8*i}')
        e('s_nop 1')
    print("stamps used:", n, file=sys.stderr)
e.label('L_end')
e('s_endpgm')
for t in stubs:
    e.label(f'L_stub{t}')
    e.raw(f'    s_call_b64 s[{sRET}:{sRET+1}], L_rescale')
    e.raw(f'    s_branch L_back{t}')
e.label('L_rescale')
e.S = State()
e('s_nop 15'); e('s_nop 15')
e(f'v_mov_b32 v{vMX+1}, v{vMX}')
e(f'v_permlane32_swap_b32 v{vMX}, v{vMX+1}')
e(f'v_max3_f32 v{vMX}, v{vMX}, v{vMX+1}, 0')
e(f'v_ceil_f32 v{vMX}, v{vMX}')
e(f'v_exp_f32 v{vMX+1}, -v{vMX}')
for r in range(48): e(f'v_sub_f32 v{vS+r}, v{vS+r}, v{vMX}')
for r in range(80): e(f'v_mul_f32 v{vO+r}, v{vO+r}, v{vMX+1}')
for r in range(16):
    e(f'v_lshlrev_b32 v1, 16, v{vP+r}')
    e(f'v_and_b32 v2, 0xffff0000, v{vP+r}')
    e(f'v_mul_f32 v1, v1, v{vMX+1}')
    e(f'v_mul_f32 v2, v2, v{vMX+1}')
    e(f'v_cvt_pk_bf16_f32 v{vP+r}, v1, v2')
e('s_nop 3')
e(f's_setpc_b64 s[{sRET}:{sRET+1}]')

e.S = State()
e.raw(f'.globl red_kernel\n.p2align 8\n.type red_kernel,@function\nred_kernel:')
e('s_cmp_ge_u32 s2, 288')
e('s_cbranch_scc1 L_end2')
e('s_load_dwordx2 s[14:15], s[0:1], 40')
e('s_load_dwordx2 s[18:19], s[0:1], 56')
if STAMPS: e('s_memrealtime s[90:91]')
e(f's_mov_b32 s41, {-(-(1<<32)//18)}')
e('s_mul_hi_u32 s40, s2, s41')
e('s_mul_i32 s41, s40, 18')
e('s_sub_u32 s41, s2, s41')
e(f's_mul_i32 s42, s40, {16*73728}')
e('s_lshl_b32 s43, s41, 12')
e('s_add_u32 s42, s42, s43')
e('v_lshlrev_b32 v1, 4, v0')
e('v_lshrrev_b32 v2, 7, v0')
e('v_and_b32 v3, 31, v0')
e('v_lshl_add_u32 v2, v2, 5, v3')
e('v_mul_u32_u24 v2, 1152, v2')
e('v_bfe_u32 v3, v0, 5, 1')
e('v_lshl_add_u32 v2, v3, 5, v2')
e('v_bfe_u32 v3, v0, 6, 1')
e('v_lshl_add_u32 v2, v3, 4, v2')
e('s_mul_i32 s44, s40, 73728')
e('s_lshl_b32 s45, s41, 6')
e('s_add_u32 s44, s44, s45')
e('s_waitcnt lgkmcnt(0)')
e('s_mov_b32 s28, s18'); e('s_and_b32 s29, s19, 0xffff'); e(f's_mov_b32 s30, {0x10000000 if STAMPS else 256*73728}'); e('s_mov_b32 s31, 0x00020000')
e('s_mov_b32 s32, s14'); e('s_and_b32 s33, s15, 0xffff'); e('s_mov_b32 s34, 1179648'); e('s_mov_b32 s35, 0x00020000')
for h in range(16):
    e(f'buffer_load_dwordx4 {vr(16+4*h, 4)}, v1, s[28:31], s42 offen {opts["ld"]}')
    if h < 15: e(f's_add_u32 s42, s42, 73728')
for h in range(16):
    e(f's_waitcnt vmcnt({15-h})')
    for j in range(4):
        src = 16 + 4 * h + j
        if h == 0:
            e(f'v_lshlrev_b32 v{4+2*j}, 16, v{src}')
            e(f'v_and_b32 v{5+2*j}, 0xffff0000, v{src}')
        else:
            e(f'v_lshlrev_b32 v12, 16, v{src}')
            e(f'v_and_b32 v13, 0xffff0000, v{src}')
            e(f'v_add_f32 v{4+2*j}, v{4+2*j}, v12')
            e(f'v_add_f32 v{5+2*j}, v{5+2*j}, v13')
for j in range(4): e(f'v_cvt_pk_bf16_f32 v{12+j}, v{4+2*j}, v{5+2*j}')
e('buffer_store_dwordx4 v[12:15], v2, s[32:35], s44 offen')
if STAMPS:
    e('s_waitcnt vmcnt(0)')
    e('s_memrealtime s[92:93]')
    e('s_waitcnt lgkmcnt(0)')
    e('s_cmp_ge_u32 s2, 256')
    e('s_cbranch_scc1 L_end2')
    e('v_cmp_eq_u32 vcc, 0, v0')
    e('s_and_saveexec_b64 s[60:61], vcc')
    e('s_cbranch_execz L_end2')
    e(f's_mul_i32 s62, s2, {STAMPS*8}')
    e(f's_add_u32 s62, s62, {0x8000000 + (STAMPS-2)*8}')
    e('v_mov_b32 v2, s62')
    e('v_mov_b32 v4, s90'); e('v_mov_b32 v5, s91'); e('v_mov_b32 v6, s92'); e('v_mov_b32 v7, s93')
    e('buffer_store_dwordx2 v[4:5], v2, s[28:31], 0 offen')
    e('buffer_store_dwordx2 v[6:7], v2, s[28:31], 0 offen offset:8')
e.label('L_end2')
e('s_endpgm')

def kd(name, nfv, acc, nsgpr=102):
    return f""".p2align 6
.amdhsa_kernel {name}
  .amdhsa_next_free_vgpr {nfv}
  .amdhsa_next_free_sgpr {nsgpr}
  .amdhsa_accum_offset {acc}
  .amdhsa_group_segment_fixed_size 0
  .amdhsa_kernarg_size 64
  .amdhsa_user_sgpr_count 2
  .amdhsa_user_sgpr_kernarg_segment_ptr 1
  .amdhsa_system_sgpr_workgroup_id_x 1
.end_amdhsa_kernel
"""
hdr = """; GQA block (Q-proj + cached attention + O-proj) for gfx950; generated by gen/gen1.py
; @launch kernel=main_kernel grid=(256,1,1) block=(256,1,1) lds=163840
; @launch kernel=red_kernel grid=(288,1,1) block=(256,1,1) lds=0
.amdgcn_target "amdgcn-amd-amdhsa--gfx950"
.text
"""
open(sys.argv[1], 'w').write(hdr + e.text() + '.section .rodata,"a"\n' + kd('main_kernel', 512, 256) + kd('red_kernel', 80, 80))
print(e.count, 'nops', e.nops, file=sys.stderr)
```

```python
NAME = "standalone__gqa_block_cached__near_ridge"
HDR = """; microbench
; @launch grid=({grid},1,1) block=({block},1,1) lds={lds}
.amdgcn_target "amdgcn-amd-amdhsa--gfx950"
.text
.globl {name}_kernel
.p2align 8
.type {name}_kernel,@function
{name}_kernel:
"""
FTR = """
s_endpgm
.section .rodata,"a"
.p2align 6
.amdhsa_kernel {name}_kernel
  .amdhsa_next_free_vgpr {nfv}
  .amdhsa_next_free_sgpr 102
  .amdhsa_accum_offset {acc}
  .amdhsa_group_segment_fixed_size 0
  .amdhsa_kernarg_size 64
  .amdhsa_user_sgpr_count 2
  .amdhsa_user_sgpr_kernarg_segment_ptr 1
  .amdhsa_system_sgpr_workgroup_id_x 1
.end_amdhsa_kernel
"""
class A:
    def __init__(s): s.l = []
    def __call__(s, x): s.l.append("    " + x)
    def lab(s, x): s.l.append(x + ":")
    def text(s): return "\n".join(s.l)

def prologue(a, nwg=256):
    a(f"s_cmp_ge_u32 s2, {nwg}")
    a("s_cbranch_scc1 L_end")
    a("s_load_dwordx8 s[4:11], s[0:1], 0")
    a("s_load_dwordx8 s[12:19], s[0:1], 32")
    a("s_memrealtime s[90:91]")
    a("s_waitcnt lgkmcnt(0)")

def srd(a, d, base, nbytes):
    a(f"s_mov_b32 s{d}, s{base}")
    a(f"s_and_b32 s{d+1}, s{base+1}, 0xffff")
    a(f"s_mov_b32 s{d+2}, {nbytes}")
    a(f"s_mov_b32 s{d+3}, 0x00020000")

def stamp_store(a, nst, regs, srd_ws, tmpv=(250,251,252,253), stampoff=0x8000000):
    v0, v1, v2, v3 = tmpv
    a(f"v_cmp_eq_u32 vcc, 0, v0")
    a("s_and_saveexec_b64 s[96:97], vcc")
    a("s_cbranch_execz L_nostamp")
    a(f"s_mul_i32 s98, s2, {nst*8}")
    a(f"s_add_u32 s98, s98, {stampoff}")
    a(f"v_mov_b32 v{v2}, s98")
    for j, r in enumerate(regs):
        a(f"v_mov_b32 v{v0}, s{r}")
        a(f"v_mov_b32 v{v1}, s{r+1}")
        a(f"buffer_store_dwordx2 v[{v0}:{v1}], v{v2}, s[{srd_ws}:{srd_ws+3}], 0 offen offset:{j*8}")
        a("s_nop 1")
    a.lab("L_nostamp")
    a("s_mov_b64 exec, s[96:97]")
```

```python
import sys
from mb_common import *
base = open("standalone__gqa_block_cached__near_ridge.s").read()
def probe(kind, pol="nt"):
    a = A()
    a.l.append(".globl probe_kernel\n.p2align 8\n.type probe_kernel,@function\nprobe_kernel:")
    a("s_cmp_ge_u32 s2, 256")
    a("s_cbranch_scc1 L_pend")
    if kind == "kv":
        a("s_load_dwordx8 s[4:11], s[0:1], 0")
        a("s_waitcnt lgkmcnt(0)")
        srd(a, 20, 6, 33554432); srd(a, 24, 8, 33554432)
        a("s_lshl_b32 s42, s2, 17")
        a("v_lshrrev_b32 v1, 6, v0"); a("s_nop 0"); a("v_readfirstlane_b32 s43, v1")
        a("v_lshlrev_b32 v3, 4, v0")
        a("s_lshl_b32 s44, s43, 10")
        for t in (20, 24):
            for i in range(32):
                a(f"s_add_u32 s45, s42, {i*4096}")
                a(f"s_add_u32 m0, s44, {i*4096}")
                a("s_nop 0")
                a(f"buffer_load_dwordx4 v3, s[{t}:{t+3}], s45 offen {pol} lds")
        a("s_waitcnt vmcnt(0)")
    if kind == "code":
        a("s_getpc_b64 s[4:5]")
        a.lab("L_pc")
        a("s_sub_u32 s4, s4, L_pc-main_kernel")
        a("s_subb_u32 s5, s5, 0")
        a("v_lshlrev_b32 v3, 7, v0")
        a("global_load_dword v4, v3, s[4:5]")
        a("global_load_dword v5, v3, s[4:5] offset:64")
        a("s_waitcnt vmcnt(0)")
    if kind == "tlb":
        a("s_load_dwordx8 s[4:11], s[0:1], 0")
        a("s_load_dwordx8 s[12:19], s[0:1], 32")
        a("s_waitcnt lgkmcnt(0)")
        srd(a, 20, 6, 33554432); srd(a, 24, 8, 33554432); srd(a, 28, 10, 4718592); srd(a, 32, 12, 4718592); srd(a, 36, 4, 1179648); srd(a, 40, 18, 256*73728)
        a("v_lshlrev_b32 v3, 17, v0")
        a("buffer_load_dword v4, v3, s[20:23], 0 offen")
        a("buffer_load_dword v5, v3, s[24:27], 0 offen")
        a("buffer_load_dword v6, v3, s[28:31], 0 offen")
        a("buffer_load_dword v7, v3, s[32:35], 0 offen")
        a("buffer_load_dword v8, v3, s[36:39], 0 offen")
        a("buffer_load_dword v9, v3, s[40:43], 0 offen")
        a("s_waitcnt vmcnt(0)")
    if kind == "w":
        a("s_load_dwordx8 s[4:11], s[0:1], 0")
        a("s_load_dwordx8 s[12:19], s[0:1], 32")
        a("s_waitcnt lgkmcnt(0)")
        srd(a, 28, 10, 4718592); srd(a, 32, 12, 4718592); srd(a, 36, 4, 1179648)
        a("s_lshl_b32 s42, s2, 15")
        a("v_lshlrev_b32 v3, 7, v0")
        a("buffer_load_dword v6, v3, s[28:31], s42 offen")
        a("buffer_load_dword v7, v3, s[32:35], s42 offen")
        a("buffer_load_dword v8, v3, s[36:39], s42 offen")
        a("s_waitcnt vmcnt(0)")
    a.lab("L_pend")
    a("s_endpgm")
    kd = """.p2align 6
.amdhsa_kernel probe_kernel
  .amdhsa_next_free_vgpr 16
  .amdhsa_next_free_sgpr 102
  .amdhsa_accum_offset 16
  .amdhsa_group_segment_fixed_size 0
  .amdhsa_kernarg_size 64
  .amdhsa_user_sgpr_count 2
  .amdhsa_user_sgpr_kernarg_segment_ptr 1
  .amdhsa_system_sgpr_workgroup_id_x 1
.end_amdhsa_kernel
"""
    s = base.replace("; @launch kernel=main_kernel", "; @launch kernel=probe_kernel grid=(256,1,1) block=(256,1,1) lds=131072\n; @launch kernel=main_kernel")
    s = s.replace('.section .rodata,"a"', a.text() + '\n.section .rodata,"a"\n' + kd)
    return s
open("p_empty.s", "w").write(probe("empty"))
open("p_kvnt.s", "w").write(probe("kv", "nt"))
open("p_kvdef.s", "w").write(probe("kv", ""))
open("p_base.s", "w").write(base)

open("p_code.s", "w").write(probe("code"))
open("p_tlb.s", "w").write(probe("tlb"))
open("p_w.s", "w").write(probe("w"))
```

```python
import sys, math
from emit import Emit, State

NAME = "standalone__gqa_block_cached__near_ridge"
opts = dict(kv="nt", wq="", x="", wo="", st="sc1", ld="", stamps=0, T=8.0, prof=0, dbg=0, nosm=0, nodma=0, nord=0)
for a in sys.argv[2:]:
    k, v = a.split('=')
    opts[k] = type(opts[k])(v) if not isinstance(opts[k], str) else v.replace('+', ' ')
STAMPS = opts['stamps']

import struct
def f32(x): return '0x%08x' % struct.unpack('<I', struct.pack('<f', x))[0]

e = Emit()
SX, SK, SV, SWQ, SWO, SWS = 20, 24, 28, 32, 36, 40
sW, sHKV, sB, sROT = 44, 45, 46, 47
sT0, sT1, sT2 = 48, 49, 52
sRET = 50
sWQ, sWO, sST = 53, 54, 55
sM0W = 56
sM0T = 57
sSC = 58
sTILE = 64
sSTAMP = 80
vT = 1
vKR = 16
vVR = 40
vKa, vKb, vVc = 52, 53, 54
vWOR = 55
vXW, vXR = 61, 62
vWOV = 63
vSTV = 67
vMX = 68
vINV = 70
vS = 80
vNM = 112
vP = 128
vO = 144
vL = 208
vQ = 224
vXRD = 80
vWQR = 88
vXV = 96
vWQV = 100
vKV = 104
vVV = 108
aX = 0; aWQ = 144; aONE = 240
aK = 0; aV = 32; aWO = 64; aOO = 192

def vr(b, n): return f'v[{b}:{b+n-1}]'
def ar(b, n): return f'a[{b}:{b+n-1}]'
def sr(b, n=4): return f's[{b}:{b+n-1}]'
MF = 'v_mfma_f32_32x32x16_bf16'

nstamp = [0]
def stamp():
    if not STAMPS: return
    i = nstamp[0]; nstamp[0] += 1
    e('s_waitcnt lgkmcnt(0)')
    e(f's_memrealtime s[{sSTAMP+2*i}:{sSTAMP+2*i+1}]')
    e('s_waitcnt lgkmcnt(0)')

PROF = opts['prof']
vPA, vPB = 72, 73
nbar = [0]
def bar(tags, lgkm0=True, name=''):
    if not PROF:
        e.wait_vm(tags, lgkm0=lgkm0); e('s_barrier'); return
    i = nbar[0]; nbar[0] += 1
    e('s_memtime s[98:99]')
    e('s_waitcnt lgkmcnt(0)')
    e(f'v_writelane_b32 v{vPA}, s98, {i}')
    if i > 0: e(f'v_writelane_b32 v{vPB}, s100, {i-1}')
    e.wait_vm(tags, lgkm0=lgkm0); e('s_barrier')
    e('s_memtime s[100:101]')

def win(off): return off >> 16, off & 0xffff

def dma_tile_full(srd, vo, soff_lo, soff_hi, m0_expr, slot, tag, pol):
    items = []
    for half, so in ((0, soff_lo), (1, soff_hi)):
        if m0_expr is None: items.append(f's_mov_b32 m0, {slot*8192 + half*4096}')
        else: items.append(f's_add_u32 m0, {m0_expr}, {slot*8192 + half*4096}')
        if isinstance(so, tuple):
            items.append(so[0]); sreg = so[1]
        else: sreg = so
        for p in range(4):
            v = vo[0] if isinstance(vo, tuple) else vo + p
            off = f' offset:{p*1024}' if p else ''
            items.append((f'buffer_load_dwordx4 v{v}, {sr(srd)}, {sreg} offen{off} {pol} lds'.replace('  ', ' '), tag))
    return items

def wrap_adv(r, step, lim, tmp):
    def f():
        e(f's_sub_u32 s{tmp}, s{r}, {lim}')
        e(f's_cselect_b32 s{r}, s{r}, s{tmp}')
    return [f's_add_u32 s{r}, s{r}, {step}', f]

KVORD = ['K0'] + sum(([f'K{t+1}', f'V{t}'] for t in range(15)), []) + ['V15']
KVSLOT = {}
_first = [9, 10] + list(range(0, 9)) + list(range(11, 20))
for n, nm in enumerate(KVORD):
    KVSLOT[nm] = _first[n] if n < 20 else _first[n - 20]

def kv_roleB(n):
    nm = KVORD[n]; t = int(nm[1:]); isk = nm[0] == 'K'
    return dma_tile_full(SK if isk else SV, vKV if isk else (vVV,), f's{sTILE+t}',
                         (f's_add_u32 s{sT0}, s{sTILE+t}, 4096', f's{sT0}'), None, KVSLOT[nm], nm, opts['kv'])
def kv_common(n):
    nm = KVORD[n]; t = int(nm[1:]); isk = nm[0] == 'K'
    srd = SK if isk else SV
    pol = opts['kv']
    return [f's_add_u32 m0, s{sM0W}, {KVSLOT[nm]*8192}',
            (f'buffer_load_dwordx4 v{vKa if isk else vVc}, {sr(srd)}, s{sTILE+t} offen {pol} lds', nm),
            (f'buffer_load_dwordx4 v{vKb if isk else vVc}, {sr(srd)}, s{sTILE+t} offen offset:1024 {pol} lds', nm)]
def wq_stage(s):
    it = dma_tile_full(SWQ, vWQV, f's{sWQ}', (f's_add_u32 s{sT0}, s{sWQ}, 256', f's{sT0}'), f's{sM0T}', 11 + 3 * (s % 3), f'WQ{s}', opts['wq'])
    it += wrap_adv(sWQ, 3*131072, 36*131072, sT1)
    return it
WOG = [3, 4, 0, 2, 3, 4, 1, 0, 2]
def wo_cb(j):
    it = dma_tile_full(SWO, vWOV, f's{sWO}', (f's_add_u32 s{sT0}, s{sWO}, 36864', f's{sT0}'), f's{sM0T}', 4 * WOG[j], f'WO{j}', opts['wo'])
    it += wrap_adv(sWO, 128, 1152, sT1)
    return it
def put(items):
    for it in items:
        if callable(it): it()
        elif isinstance(it, tuple): e(it[0], it[1])
        else: e(it)

def mk_srd(d, ptr, addlo, nbytes):
    e(f's_add_u32 s{d}, s{ptr}, {addlo}')
    e(f's_addc_u32 s{d+1}, s{ptr+1}, 0')
    e(f's_and_b32 s{d+1}, s{d+1}, 0xffff')
    e(f's_mov_b32 s{d+2}, {nbytes}')
    e(f's_mov_b32 s{d+3}, 0x00020000')

def rd_x(s):
    blk, ks = divmod(s, 4)
    w_, o = win(blk * 8192)
    return f'ds_read_b128 {ar(aX+4*s, 4)}, v{vXRD + 4*w_ + ks} offset:{o}'
def rd_wq(stage):
    it = []
    for ks in range(3):
        slot = 11 + 3 * (stage % 3) + ks
        for u in range(4):
            w_, o = win(slot * 8192)
            d = aWQ + 48 * (stage % 2) + (ks * 4 + u) * 4
            for sec in range(2):
                it.append(f'ds_read_b64_tr_b16 {ar(d+2*sec, 2)}, v{vWQR + 4*(w_-1) + u} offset:{o + sec*1024}')
    return it
def mf_q(stage, order=None):
    it = []
    idx = [(ks, u) for ks in range(3) for u in range(4)] if order is None else order
    for ks, u in idx:
        d = aWQ + 48 * (stage % 2) + (ks * 4 + u) * 4
        c = '0' if (stage == 0 and ks == 0) else vr(vO + 16 * u, 16)
        it.append(f'{MF} {vr(vO+16*u, 16)}, {ar(d, 4)}, {ar(aX + 4*(3*stage+ks), 4)}, {c}')
    return it
def rd_k(t):
    w_, o = win(KVSLOT[f'K{t}'] * 8192)
    return [f'ds_read_b128 {ar(aK+4*s, 4)}, v{vKR + 8*w_ + s} offset:{o}' for s in range(8)]
def rd_v(t):
    w_, o = win(KVSLOT[f'V{t}'] * 8192)
    it = []
    for a in range(2):
        for tt in range(4):
            d = aV + (a * 4 + tt) * 4
            for sec in range(2):
                it.append(f'ds_read_b64_tr_b16 {ar(d+2*sec, 2)}, v{vVR + 4*w_ + tt} offset:{o + a*4096 + sec*2048}')
    return it
def mf_qk(t):
    S = vS + 16 * (t % 2)
    it = []
    for s in range(8):
        c = vr(S, 16) if s else ('0' if t == 0 else vr(vNM, 16))
        it.append(f'{MF} {vr(S, 16)}, {ar(aK+4*s, 4)}, {vr(vQ+4*s, 4)}, {c}')
    return it
def mf_pv(t):
    P = vP + 8 * (t % 2)
    it = []
    for a in range(2):
        for tt in range(4):
            c = '0' if (t == 0 and a == 0) else vr(vO + 16 * tt, 16)
            it.append(f'{MF} {vr(vO+16*tt, 16)}, {ar(aV + (a*4+tt)*4, 4)}, {vr(P+4*a, 4)}, {c}')
        c = '0' if (t == 0 and a == 0) else vr(vL, 16)
        it.append(f'{MF} {vr(vL, 16)}, {ar(aONE, 4)}, {vr(P+4*a, 4)}, {c}')
    return it
def sm_max(t):
    S = vS + 16 * (t % 2)
    it = [f'v_max3_f32 v{vMX}, v{S}, v{S+1}, v{S+2}', f'v_max3_f32 v{vMX+1}, v{S+3}, v{S+4}, v{S+5}']
    k = 6; d = 0
    while k < 16:
        it.append(f'v_max3_f32 v{vMX+d}, v{vMX+d}, v{S+k}, v{S+k+1}'); k += 2; d ^= 1
    it.append(f'v_max_f32 v{vMX}, v{vMX}, v{vMX+1}')
    return it
stubs = []
def sm_check(t):
    def f():
        e(f'v_cmp_lt_f32 vcc, {f32(opts["T"])}, v{vMX}')
        e(f's_cbranch_vccnz L_stub{t}')
        e.label(f'L_back{t}')
        stubs.append(t)
    return [f]
def sm_exp(t):
    S = vS + 16 * (t % 2); P = vP + 8 * (t % 2)
    it = [f'v_exp_f32 v{S}, v{S}', f'v_exp_f32 v{S+1}, v{S+1}']
    for p in range(8):
        if p < 7:
            it += [f'v_exp_f32 v{S+2*p+2}, v{S+2*p+2}', f'v_exp_f32 v{S+2*p+3}, v{S+2*p+3}']
        it.append(f'v_cvt_pk_bf16_f32 v{P+p}, v{S+2*p}, v{S+2*p+1}')
    return it
def rd_wo(j):
    w_, o = win(WOG[j] * 32768)
    it = []
    for oth in range(2):
        for f in range(8):
            d = aWO + 64 * (j % 2) + (oth * 8 + f) * 4
            for sec in range(2):
                it.append(f'ds_read_b64_tr_b16 {ar(d+2*sec, 2)}, v{vWOR + 2*w_ + oth} offset:{o + f*2048 + sec*1024}')
    return it
def mf_o(j):
    acc = vS + 16 * (j % 2)
    it = []
    for oth in range(2):
        for f in range(8):
            d = aWO + 64 * (j % 2) + (oth * 8 + f) * 4
            b = vr(vQ + 4 * f, 4) if oth == 0 else ar(aOO + 4 * f, 4)
            c = '0' if (oth == 0 and f == 0) else vr(acc, 16)
            it.append(f'{MF} {vr(acc, 16)}, {ar(d, 4)}, {b}, {c}')
    return it
def ep_o(j):
    acc = vS + 16 * (j % 2); P = vP + 8 * (j % 2)
    it = []
    for h in range(2):
        for p in range(4):
            it.append(f'v_cvt_pk_bf16_f32 v{P+4*h+p}, v{acc+8*h+2*p}, v{acc+8*h+2*p+1}')
        off = ' offset:1024' if h else ''
        it.append((f'buffer_store_dwordx4 {vr(P+4*h, 4)}, v{vSTV}, {sr(SWS)}, s{sST} offen{off} {opts["st"]}', 'ST'))
    it += wrap_adv(sST, 8192, 73728, sT2)
    return it

e.raw(f'.globl main_kernel\n.p2align 8\n.type main_kernel,@function\nmain_kernel:')
e('s_cmp_ge_u32 s2, 256')
e('s_cbranch_scc1 L_end')
e('s_load_dwordx8 s[4:11], s[0:1], 0')
e('s_load_dwordx8 s[12:19], s[0:1], 32')
if STAMPS:
    e(f's_memrealtime s[{sSTAMP}:{sSTAMP+1}]'); nstamp[0] = 1
if opts['prof']: e('s_memtime s[96:97]')
e(f'v_lshrrev_b32 v1, 6, v0')
e(f's_and_b32 s{sHKV}, s2, 7')
e(f'v_readfirstlane_b32 s{sW}, v1')
e(f's_lshl_b32 s{sHKV}, s{sHKV}, 1')
e(f's_bfe_u32 s{sT0}, s2, 0x10003')
e(f's_add_u32 s{sHKV}, s{sHKV}, s{sT0}')
e(f's_lshr_b32 s{sB}, s2, 4')
e(f's_sub_u32 s{sT0}, s{sB}, 9')
e(f's_cselect_b32 s{sROT}, s{sB}, s{sT0}')
e(f's_lshl_b32 s{sM0W}, s{sW}, 11')
e(f's_lshl_b32 s{sM0T}, s{sW}, 13')
e('v_bfe_u32 v2, v0, 3, 3')
e('v_and_b32 v3, 7, v0')
e('v_bfe_u32 v4, v0, 4, 2')
e('v_and_b32 v5, 15, v0')
e('v_lshrrev_b32 v6, 1, v2')
e('v_xor_b32 v7, v3, v6')
e('v_lshlrev_b32 v7, 4, v7')
e('v_mul_u32_u24 v8, 1152, v2')
e(f'v_add_u32 v{vXV}, v8, v7')
e('v_xor_b32 v7, 64, v7')
e(f'v_add_u32 v9, v8, v7')
e(f'v_add_u32 v{vXV+1}, 8192, v9')
e(f'v_add_u32 v{vXV+2}, 16384, v{vXV}')
e(f'v_add_u32 v{vXV+3}, 24576, v9')
e('v_lshlrev_b32 v7, 2, v4')
e('v_xor_b32 v7, v5, v7')
e('v_lshlrev_b32 v7, 4, v7')
e(f'v_lshl_add_u32 v{vWQV}, v4, 13, v7')
for p in range(1, 4): e(f'v_add_u32 v{vWQV+p}, {p*31744}, v{vWQV}')
e(f'v_lshl_add_u32 v{vVV}, v4, 8, v7')
e('v_xor_b32 v7, v5, v4')
e('v_lshlrev_b32 v7, 4, v7')
e(f'v_lshl_add_u32 v{vKV}, v4, 8, v7')
for p in range(1, 4): e(f'v_xor_b32 v{vKV+p}, {p*64}, v{vKV}')
for t in range(16): e(f's_mov_b32 s{sTILE+t}, {t*8192}')
e(f's_lshl_b32 s{sT0}, s{sROT}, 2')
e(f's_add_u32 s{sT0}, s{sT0}, s{sW}')
e(f's_lshl_b32 s{sWQ}, s{sT0}, 17')
e(f's_lshl_b32 s{sWO}, s{sROT}, 7')
e(f's_lshl_b32 s{sST}, s{sROT}, 13')
e(f's_mul_i32 s60, s{sB}, 73728')
e(f's_lshl_b32 s61, s{sB}, 4')
e(f's_add_u32 s61, s61, s{sHKV}')
e(f's_lshl_b32 s62, s61, 17')
e(f's_lshl_b32 s63, s{sHKV}, 9')
e('s_waitcnt lgkmcnt(0)')
mk_srd(SX, 4, 's60', 73728)
mk_srd(SK, 6, 's62', 131072)
mk_srd(SWQ, 10, 's63', 4718592 - 15 * 512)
mk_srd(SV, 8, 's62', 131072)

def rest_of_setup():
    e(f's_mul_i32 s60, s{sHKV}, 294912')
    mk_srd(SWO, 12, 's60', 294912)
    e(f's_mul_i32 s60, s61, 73728')
    mk_srd(SWS, 18, 's60', 73728)
    sc = math.log2(math.e) / math.sqrt(128.0)
    e(f's_mov_b32 s{sSC}, {f32(sc)}'); e(f's_mov_b32 s{sSC+1}, {f32(sc)}')
    e('v_bfe_u32 v9, v0, 5, 1')
    e('v_and_b32 v10, 31, v0')
    e('v_bfe_u32 v11, v0, 2, 2')
    e('v_and_b32 v12, 3, v0')
    e('v_bfe_u32 v13, v0, 4, 1')
    e('v_and_b32 v14, 1, v1')
    e('v_lshl_add_u32 v14, v14, 5, v10')
    e('v_bfe_u32 v15, v14, 1, 3')
    e('v_xor_b32 v15, v15, v9')
    e('v_lshlrev_b32 v15, 4, v15')
    e(f'v_lshl_add_u32 v{vXRD}, v14, 7, v15')
    for ks in range(1, 4): e(f'v_xor_b32 v{vXRD+ks}, {ks*32}, v{vXRD}')
    for ks in range(4): e(f'v_add_u32 v{vXRD+4+ks}, 0x10000, v{vXRD+ks}')
    e('v_lshrrev_b32 v14, 1, v1')
    e('v_lshlrev_b32 v14, 12, v14')
    e('v_lshl_add_u32 v14, v9, 11, v14')
    e('v_lshl_add_u32 v14, v11, 8, v14')
    e('v_lshl_add_u32 v14, v11, 6, v14')
    e('v_lshl_add_u32 v14, v13, 5, v14')
    e('v_and_b32 v15, 1, v12')
    e('v_lshl_add_u32 v14, v15, 4, v14')
    e('v_lshrrev_b32 v15, 1, v12')
    e('v_lshl_add_u32 v14, v15, 3, v14')
    e(f'v_add_u32 v{vWQR}, 0x10000, v14')
    for u in range(1, 4): e(f'v_xor_b32 v{vWQR+u}, {u*64}, v{vWQR}')
    for u in range(4): e(f'v_add_u32 v{vWQR+4+u}, 0x10000, v{vWQR+u}')
    e('v_xor_b32 v14, v9, v5')
    e('v_lshlrev_b32 v14, 4, v14')
    e(f'v_lshl_add_u32 v{vKR}, v10, 8, v14')
    for s in range(1, 8): e(f'v_xor_b32 v{vKR+s}, {s*32}, v{vKR}')
    for w_ in (1, 2):
        for s in range(8): e(f'v_add_u32 v{vKR+8*w_+s}, {w_*0x10000}, v{vKR+s}')
    e('v_lshlrev_b32 v14, 10, v9')
    e('v_lshl_add_u32 v14, v11, 8, v14')
    e('v_lshl_add_u32 v14, v11, 6, v14')
    e('v_lshl_add_u32 v14, v13, 5, v14')
    e(f'v_lshl_add_u32 v{vVR}, v12, 3, v14')
    for t in range(1, 4): e(f'v_xor_b32 v{vVR+t}, {t*64}, v{vVR}')
    for w_ in (1, 2):
        for t in range(4): e(f'v_add_u32 v{vVR+4*w_+t}, {w_*0x10000}, v{vVR+t}')
    e('v_and_b32 v14, 1, v1')
    e('v_lshlrev_b32 v14, 7, v14')
    e(f'v_xor_b32 v14, v14, v{vKV}')
    e(f'v_lshl_add_u32 v{vKa}, v1, 11, v14')
    e(f'v_xor_b32 v{vKb}, 64, v{vKa}')
    e(f'v_lshl_add_u32 v{vVc}, v1, 11, v{vVV}')
    e('v_lshrrev_b32 v7, 1, v1')
    e('v_lshlrev_b32 v14, 9, v9')
    e('v_lshl_add_u32 v14, v11, 7, v14')
    e('v_lshrrev_b32 v15, 1, v11')
    e('v_xor_b32 v15, v15, v7')
    e('v_lshl_add_u32 v14, v15, 6, v14')
    e('v_and_b32 v15, 1, v12')
    e('v_lshl_add_u32 v14, v15, 5, v14')
    e('v_lshl_add_u32 v14, v13, 4, v14')
    e('v_lshrrev_b32 v15, 1, v12')
    e('v_lshl_add_u32 v14, v15, 3, v14')
    e(f'v_lshl_add_u32 v{vWOR}, v7, 14, v14')
    e(f'v_xor_b32 v{vWOR+1}, 0x4000, v{vWOR}')
    for w_ in (1, 2):
        for o in range(2): e(f'v_add_u32 v{vWOR+2*w_+o}, {w_*0x10000}, v{vWOR+o}')
    e('v_and_b32 v14, 63, v0')
    e('v_lshlrev_b32 v14, 4, v14')
    e(f'v_lshl_add_u32 v{vXW}, v1, 13, v14')
    e(f'v_xor_b32 v{vXR}, 0x4000, v{vXW}')
    e(f'v_lshl_add_u32 v{vSTV}, v1, 11, v14')
    e('v_and_b32 v14, 1, v6')
    e('v_lshlrev_b32 v14, 2, v14')
    e('v_xor_b32 v14, v14, v3')
    e('v_lshl_add_u32 v14, v14, 4, v8')
    e('v_mul_u32_u24 v15, 73728, v1')
    e(f'v_add_u32 v{vWOV}, v14, v15')
    for p in range(1, 4): e(f'v_add_u32 v{vWOV+p}, {p*8192}, v{vWOV}')
    e('v_mov_b32 v14, 0x3f803f80')
    for i in range(4): e(f'v_accvgpr_write_b32 a{aONE+i}, v14')

BPLAN = {0: [2, 3], 1: [4, 5], 2: [6], 3: [7], 4: [8], 5: [9], 6: [10]}

def qproj(role):
    e.roles = [role]
    ns0 = nstamp[0]; nb0 = nbar[0]
    if role == 'A':
        for k in range(3):
            e(f's_add_u32 s{sT1}, s{sW}, s{sROT}')
            e(f's_add_u32 s{sT1}, s{sT1}, {3*k}')
            e(f's_sub_u32 s{sT2}, s{sT1}, 9')
            e(f's_cselect_b32 s{sT1}, s{sT1}, s{sT2}')
            e(f's_lshl_b32 s{sT1}, s{sT1}, 7')
            put(dma_tile_full(SX, vXV, f's{sT1}', (f's_add_u32 s{sT0}, s{sT1}, 36864', f's{sT0}'), f's{sM0T}', 3 * k, 'X', opts['x']))
        for s in range(3): put(wq_stage(s))
    else:
        put(kv_roleB(0)); put(kv_roleB(1))
    rest_of_setup()
    bar({'X', 'WQ0'}, False)
    stamp()
    for s in range(36): e(rd_x(s))
    put(rd_wq(0))
    bar({'WQ1'})
    stamp()
    for s in range(10):
        dma = []
        if s < 9:
            if role == 'A': dma = wq_stage(s + 3)
            else:
                for n in BPLAN.get(s, []): dma += kv_roleB(n)
        else:
            for n in (11, 12, 13): dma += kv_common(n)
        streams = [(rd_wq(s + 1), 0, 10)]
        if dma: streams.append((dma, -1, 11))
        e.weave(mf_q(s), streams)
        bar({f'WQ{s+2}'})
    if role == 'B': nstamp[0] = ns0; nbar[0] = nb0

e(f's_cmp_eq_u32 s{sW}, 3')
e('s_cbranch_scc0 L_roleA')
S0 = e.S.clone()
qproj('B')
e('s_branch L_common')
SB = e.S
e.label('L_roleA')
e.S = S0
qproj('A')
e.label('L_common')
e.S = Emit.merge_states(e.S, SB)
e.roles = ['A', 'B']
dma = sum((kv_common(n) for n in (14, 15, 16)), [])
e.weave(mf_q(10), [(rd_wq(11), 0, 10), (dma, -1, 11)])
bar({'K0'})
dma = sum((kv_common(n) for n in (17, 18, 19)), [])
def qcvt(u):
    it = []
    for p in range(8):
        r = vO + 16 * u + 2 * p
        it.append(f'v_pk_mul_f32 {vr(r, 2)}, {vr(r, 2)}, s[{sSC}:{sSC+1}]')
    for p in range(8):
        r = vO + 16 * u + 2 * p
        it.append(f'v_cvt_pk_bf16_f32 v{vQ+8*u+p}, v{r}, v{r+1}')
    return it
e.weave(mf_q(11, [(ks, u) for u in range(4) for ks in range(3)]),
        [(rd_k(0), 0, 4), (dma, -1, 5), (qcvt(0), 5, 8), (qcvt(1), 8, 12)])
stamp()
qk0 = mf_qk(0)
e.weave(qk0[:4], [(qcvt(2), 0, 2), (qcvt(3), 2, 4)])
e.weave(qk0[4:], [])
bar({'K1', 'V0'})
nxt = 20
WOPLAN = {8: 0, 10: 1, 13: 2}
for t in range(16):
    dma = []
    nfree = 1 if t == 0 else 2
    for _ in range(nfree):
        if nxt < 32: dma += kv_common(nxt); nxt += 1
    if t in WOPLAN: dma += wo_cb(WOPLAN[t])
    if t == 0:
        put(dma); put(rd_k(1)); put(sm_max(0))
        e(f'v_mov_b32 v{vMX+1}, v{vMX}')
        e(f'v_permlane32_swap_b32 v{vMX}, v{vMX+1}')
        e(f'v_max_f32 v{vMX}, v{vMX}, v{vMX+1}')
        for r in range(16): e(f'v_sub_f32 v{vNM+r}, 0, v{vMX}')
        sub = [f'v_sub_f32 v{vS+r}, v{vS+r}, v{vMX}' for r in range(16)]
        e('s_waitcnt lgkmcnt(0)')
        e.weave(mf_qk(1), [(rd_v(0), 0, 6), (sub + sm_exp(0), 0, 8)])
    elif t < 15:
        sm = sm_max(t) + sm_check(t) + sm_exp(t)
        streams = [(rd_k(t + 1), 0, 8), (rd_v(t), 10, 16), (sm, 1, 18)]
        if dma: streams.append((dma, -1, 9))
        streams.append((['s_waitcnt lgkmcnt(0)'], 9, 10))
        e.weave(mf_pv(t - 1) + mf_qk(t + 1), streams)
    else:
        sm = sm_max(t) + sm_check(t) + sm_exp(t)
        e.weave(mf_pv(14), [(sm, 1, 10)])
    if t < 14:
        bar({f'K{t+2}', f'V{t+1}'})
    elif t == 15:
        bar({'V15', 'WO0'})
stamp()
put(rd_v(15))
e.weave(mf_pv(15), [(rd_wo(0), 0, 10)])
e(f'v_rcp_f32 v{vINV}, v{vL}')
for tt in range(4):
    for p in range(8):
        r = vO + 16 * tt + 2 * p
        e(f'v_pk_mul_f32 {vr(r, 2)}, {vr(r, 2)}, {vr(vINV, 2)} op_sel_hi:[1,0]')
    for p in range(8):
        r = vO + 16 * tt + 2 * p
        e(f'v_cvt_pk_bf16_f32 v{vQ+8*tt+p}, v{r}, v{r+1}')
    for a in range(2):
        f = 2 * tt + a
        e(f'ds_write_b128 v{vXW}, {vr(vQ+4*f, 4)} offset:{32768 + f*1024}')
bar({'WO1'})
stamp()
OPLAN = {0: [3, 4], 1: [5, 6], 2: [7], 3: [8]}
for j in range(9):
    streams = []
    if j == 0:
        streams.append(([f'ds_read_b128 {ar(aOO+4*f, 4)}, v{vXR} offset:{32768 + f*1024}' for f in range(8)], -1, 2))
    dma = sum((wo_cb(c) for c in OPLAN.get(j, [])), [])
    if dma: streams.append((dma, 0, 15))
    if j < 8: streams.append((rd_wo(j + 1), 0, 14))
    if j > 0: streams.append((ep_o(j - 1), 3, 10))
    e.weave(mf_o(j), streams)
    if j < 7:
        bar({f'WO{j+2}'})
put(ep_o(8))
stamp()
if PROF:
    bar({'ST'}); bar(set())
    e(f'v_writelane_b32 v{vPA}, s96, 63')
    e(f's_mov_b32 s{SWS}, s18'); e(f's_and_b32 s{SWS+1}, s19, 0xffff'); e(f's_mov_b32 s{SWS+2}, 0x10000000')
    e(f's_lshl_b32 s62, s2, 11')
    e(f's_add_u32 s62, s62, 0x9000000')
    e('v_and_b32 v2, 63, v0')
    e('v_lshrrev_b32 v3, 6, v0')
    e('v_lshlrev_b32 v2, 2, v2')
    e('v_lshl_add_u32 v2, v3, 9, v2')
    e(f'buffer_store_dword v{vPA}, v2, {sr(SWS)}, s62 offen')
    e(f'buffer_store_dword v{vPB}, v2, {sr(SWS)}, s62 offen offset:256')
    print('bars', nbar[0], file=sys.stderr)
if STAMPS:
    e('s_waitcnt vmcnt(0)')
    stamp()
    n = nstamp[0]
    e('v_cmp_eq_u32 vcc, 0, v0')
    e('s_and_saveexec_b64 s[60:61], vcc')
    e('s_cbranch_execz L_end')
    e(f's_mov_b32 s{SWS}, s18'); e(f's_and_b32 s{SWS+1}, s19, 0xffff'); e(f's_mov_b32 s{SWS+2}, 0x10000000')
    e(f's_mul_i32 s62, s2, {STAMPS*8}')
    e(f's_add_u32 s62, s62, 0x8000000')
    e('v_mov_b32 v4, s62')
    for i in range(n):
        e(f'v_mov_b32 v2, s{sSTAMP+2*i}'); e(f'v_mov_b32 v3, s{sSTAMP+2*i+1}')
        e(f'buffer_store_dwordx2 v[2:3], v4, {sr(SWS)}, 0 offen offset:{8*i}')
        e('s_nop 1')
    print("stamps used:", n, file=sys.stderr)
e.label('L_end')
e('s_endpgm')
for t in stubs:
    e.label(f'L_stub{t}')
    e.raw(f'    s_call_b64 s[{sRET}:{sRET+1}], L_rescale')
    e.raw(f'    s_branch L_back{t}')
e.label('L_rescale')
e.S = State()
e('s_nop 15'); e('s_nop 15')
e(f'v_mov_b32 v{vMX+1}, v{vMX}')
e(f'v_permlane32_swap_b32 v{vMX}, v{vMX+1}')
e(f'v_max3_f32 v{vMX}, v{vMX}, v{vMX+1}, 0')
e(f'v_ceil_f32 v{vMX}, v{vMX}')
e(f'v_exp_f32 v{vMX+1}, -v{vMX}')
for r in range(48): e(f'v_sub_f32 v{vS+r}, v{vS+r}, v{vMX}')
for r in range(80): e(f'v_mul_f32 v{vO+r}, v{vO+r}, v{vMX+1}')
for r in range(16):
    e(f'v_lshlrev_b32 v1, 16, v{vP+r}')
    e(f'v_and_b32 v2, 0xffff0000, v{vP+r}')
    e(f'v_mul_f32 v1, v1, v{vMX+1}')
    e(f'v_mul_f32 v2, v2, v{vMX+1}')
    e(f'v_cvt_pk_bf16_f32 v{vP+r}, v1, v2')
e('s_nop 3')
e(f's_setpc_b64 s[{sRET}:{sRET+1}]')

e.S = State()
e.raw(f'.globl red_kernel\n.p2align 8\n.type red_kernel,@function\nred_kernel:')
e('s_cmp_ge_u32 s2, 288')
e('s_cbranch_scc1 L_end2')
e('s_load_dwordx2 s[14:15], s[0:1], 40')
e('s_load_dwordx2 s[18:19], s[0:1], 56')
if STAMPS: e('s_memrealtime s[90:91]')
e(f's_mov_b32 s41, {-(-(1<<32)//18)}')
e('s_mul_hi_u32 s40, s2, s41')
e('s_mul_i32 s41, s40, 18')
e('s_sub_u32 s41, s2, s41')
e(f's_mul_i32 s42, s40, {16*73728}')
e('s_lshl_b32 s43, s41, 12')
e('s_add_u32 s42, s42, s43')
e('v_lshlrev_b32 v1, 4, v0')
e('v_lshrrev_b32 v2, 7, v0')
e('v_and_b32 v3, 31, v0')
e('v_lshl_add_u32 v2, v2, 5, v3')
e('v_mul_u32_u24 v2, 1152, v2')
e('v_bfe_u32 v3, v0, 5, 1')
e('v_lshl_add_u32 v2, v3, 5, v2')
e('v_bfe_u32 v3, v0, 6, 1')
e('v_lshl_add_u32 v2, v3, 4, v2')
e('s_mul_i32 s44, s40, 73728')
e('s_lshl_b32 s45, s41, 6')
e('s_add_u32 s44, s44, s45')
e('s_waitcnt lgkmcnt(0)')
e('s_mov_b32 s28, s18'); e('s_and_b32 s29, s19, 0xffff'); e(f's_mov_b32 s30, {0x10000000 if STAMPS else 256*73728}'); e('s_mov_b32 s31, 0x00020000')
e('s_mov_b32 s32, s14'); e('s_and_b32 s33, s15, 0xffff'); e('s_mov_b32 s34, 1179648'); e('s_mov_b32 s35, 0x00020000')
for h in range(16):
    e(f'buffer_load_dwordx4 {vr(16+4*h, 4)}, v1, s[28:31], s42 offen {opts["ld"]}')
    if h < 15: e(f's_add_u32 s42, s42, 73728')
for h in range(16):
    e(f's_waitcnt vmcnt({15-h})')
    for j in range(4):
        src = 16 + 4 * h + j
        if h == 0:
            e(f'v_lshlrev_b32 v{4+2*j}, 16, v{src}')
            e(f'v_and_b32 v{5+2*j}, 0xffff0000, v{src}')
        else:
            e(f'v_lshlrev_b32 v12, 16, v{src}')
            e(f'v_and_b32 v13, 0xffff0000, v{src}')
            e(f'v_add_f32 v{4+2*j}, v{4+2*j}, v12')
            e(f'v_add_f32 v{5+2*j}, v{5+2*j}, v13')
for j in range(4): e(f'v_cvt_pk_bf16_f32 v{12+j}, v{4+2*j}, v{5+2*j}')
e('buffer_store_dwordx4 v[12:15], v2, s[32:35], s44 offen')
if STAMPS:
    e('s_waitcnt vmcnt(0)')
    e('s_memrealtime s[92:93]')
    e('s_waitcnt lgkmcnt(0)')
    e('s_cmp_ge_u32 s2, 256')
    e('s_cbranch_scc1 L_end2')
    e('v_cmp_eq_u32 vcc, 0, v0')
    e('s_and_saveexec_b64 s[60:61], vcc')
    e('s_cbranch_execz L_end2')
    e(f's_mul_i32 s62, s2, {STAMPS*8}')
    e(f's_add_u32 s62, s62, {0x8000000 + (STAMPS-2)*8}')
    e('v_mov_b32 v2, s62')
    e('v_mov_b32 v4, s90'); e('v_mov_b32 v5, s91'); e('v_mov_b32 v6, s92'); e('v_mov_b32 v7, s93')
    e('buffer_store_dwordx2 v[4:5], v2, s[28:31], 0 offen')
    e('buffer_store_dwordx2 v[6:7], v2, s[28:31], 0 offen offset:8')
    if opts['dbg']:
        e(f's_cmp_lg_u32 s2, {opts["dbg"]}')
        e('s_cbranch_scc1 L_end2')
        e('s_load_dwordx2 s[16:17], s[0:1], 48')
        e('s_mov_b64 exec, 0xffff')
        e('s_waitcnt vmcnt(0) lgkmcnt(0)')
        e('s_mov_b32 s32, s16'); e('s_and_b32 s33, s17, 0xffff'); e('s_mov_b32 s34, 256')
        e(f's_sub_u32 s62, s62, {(STAMPS-2)*8}')
        e('v_lshlrev_b32 v2, 3, v0')
        e('v_lshlrev_b32 v3, 2, v0')
        e('buffer_load_dword v4, v2, s[28:31], s62 offen sc1')
        e('s_waitcnt vmcnt(0)')
        e('v_readfirstlane_b32 s63, v4')
        e('v_subrev_u32 v4, s63, v4')
        e('buffer_store_dword v4, v3, s[32:35], 0 offen')
e.label('L_end2')
e('s_endpgm')

def kd(name, nfv, acc, nsgpr=102):
    return f""".p2align 6
.amdhsa_kernel {name}
  .amdhsa_next_free_vgpr {nfv}
  .amdhsa_next_free_sgpr {nsgpr}
  .amdhsa_accum_offset {acc}
  .amdhsa_group_segment_fixed_size 0
  .amdhsa_kernarg_size 64
  .amdhsa_user_sgpr_count 2
  .amdhsa_user_sgpr_kernarg_segment_ptr 1
  .amdhsa_system_sgpr_workgroup_id_x 1
.end_amdhsa_kernel
"""
hdr = """; GQA block (Q-proj + cached attention + O-proj) for gfx950; generated by gen/gen1.py
; @launch kernel=main_kernel grid=(256,1,1) block=(256,1,1) lds=163840
; @launch kernel=red_kernel grid=(288,1,1) block=(256,1,1) lds=0
.amdgcn_target "amdgcn-amd-amdhsa--gfx950"
.text
"""
open(sys.argv[1], 'w').write(hdr + e.text() + '.section .rodata,"a"\n' + kd('main_kernel', 512, 256) + kd('red_kernel', 80, 80))
print(e.count, 'nops', e.nops, file=sys.stderr)
```

```python
import sys, math, struct
from emit import Emit, State

NAME = "standalone__gqa_block_cached__near_ridge"
opts = dict(kv="nt", wq="", x="", wo="", st="sc1", ld="sc1", T=8.0, prof=0, cpf=1, lag=3,
            kvplan="a", spin=200000)
for a in sys.argv[2:]:
    k, v = a.split('=')
    opts[k] = type(opts[k])(v) if not isinstance(opts[k], str) else v.replace('+', ' ')
PROF = opts['prof']
def f32(x): return '0x%08x' % struct.unpack('<I', struct.pack('<f', x))[0]

e = Emit(); e.roles = ['A']
SX, SK, SV, SWQ, SWO, SWS = 20, 24, 28, 32, 36, 40
SFL, SPR, SOUT, SDBG = 80, 84, 88, 92
sW, sHKV, sB, sROT = 44, 45, 46, 47
sT0, sT1, sT2 = 48, 49, 52
sRET = 50
sWQ, sWO, sST = 53, 54, 55
sM0W, sM0T = 56, 57
sSC = 58
sXO, sFL, sM0Q, sJOB = 60, 61, 62, 63
sTILE = 64
vKR = 16; vVR = 40
vKa, vKb, vVc = 52, 53, 54
vWOR = 55; vXW, vXR = 61, 62; vWOV = 63; vSTV = 67
vMX = 68; vINV = 70
vPA, vPB = 72, 73
vE = 74
vFLV = 76
vL16 = 77
vS = 80; vNM = 112; vP = 128; vO = 144; vL = 208; vQ = 224
vXRD = 80; vWQR = 88; vXa, vXb = 96, 97; vWQV = 100
aX = 0; aWQ = 144; aONE = 240; aPERM = 244
aK = 0; aV = 32; aWO = 64; aOO = 192
FL_OFF = 256 * 73728

def vr(b, n): return f'v[{b}:{b+n-1}]'
def ar(b, n): return f'a[{b}:{b+n-1}]'
def sr(b, n=4): return f's[{b}:{b+n-1}]'
MF = 'v_mfma_f32_32x32x16_bf16'
def win(off): return off >> 16, off & 0xffff

nbar = [0]
def mark():
    if not PROF: return
    i = nbar[0]; nbar[0] += 1
    e('s_memtime s[98:99]'); e('s_waitcnt lgkmcnt(0)')
    e(f'v_writelane_b32 v{vPA}, s98, {i}')
    if i > 0: e(f'v_writelane_b32 v{vPB}, s100, {i-1}')
    e('s_memtime s[100:101]')
def bar(tags, lgkm0=True):
    if not PROF:
        e.wait_vm(tags, lgkm0=lgkm0); e('s_barrier'); return
    i = nbar[0]; nbar[0] += 1
    e('s_memtime s[98:99]'); e('s_waitcnt lgkmcnt(0)')
    e(f'v_writelane_b32 v{vPA}, s98, {i}')
    if i > 0: e(f'v_writelane_b32 v{vPB}, s100, {i-1}')
    e.wait_vm(tags, lgkm0=lgkm0); e('s_barrier')
    e('s_memtime s[100:101]')

def put(items):
    for it in items:
        if callable(it): it()
        elif isinstance(it, tuple): e(it[0], it[1])
        else: e(it)
def wrap_adv(r, step, lim, tmp):
    def f():
        e(f's_sub_u32 s{tmp}, s{r}, {lim}')
        e(f's_cselect_b32 s{r}, s{r}, s{tmp}')
    return [f's_add_u32 s{r}, s{r}, {step}', f]
def dma(v, srd, so, off, pol, tag):
    o = f' offset:{off}' if off else ''
    p = f' {pol}' if pol else ''
    return (f'buffer_load_dwordx4 v{v}, {sr(srd)}, {so} offen{o}{p} lds', tag)

KVORD = ['K0'] + sum(([f'K{t+1}', f'V{t}'] for t in range(15)), []) + ['V15']
KVSLOT = {nm: (n if n < 20 else n - 20) for n, nm in enumerate(KVORD)}
def kv(n):
    nm = KVORD[n]; t = int(nm[1:]); isk = nm[0] == 'K'
    srd = SK if isk else SV
    return [f's_add_u32 m0, s{sM0W}, {KVSLOT[nm]*8192}',
            dma(vKa if isk else vVc, srd, f's{sTILE+t}', 0, opts['kv'], nm),
            dma(vKb if isk else vVc, srd, f's{sTILE+t}', 1024, opts['kv'], nm)]
def xt(j):
    return [f's_add_u32 m0, s{sM0W}, {(5+j)*8192}',
            dma(vXa, SX, f's{sXO}', 0, opts['x'], f'X{j}'),
            dma(vXb, SX, f's{sXO}', 1024, opts['x'], f'X{j}')] + wrap_adv(sXO, 128, 1152, sT1)
def wq_stage(s):
    it = [f's_add_u32 m0, s{sM0Q}, {(14 + 2*(s%3))*8192}']
    it += [dma(vWQV + p, SWQ, f's{sWQ}', p * 1024, opts['wq'], f'WQ{s}') for p in range(4)]
    return it + wrap_adv(sWQ, 2 * 131072, 36 * 131072, sT1)
WOG = [3, 4, 0, 1, 3, 4, 0, 1, 2]
XG = 2
def wo_cb(j):
    it = []
    for half in range(2):
        it.append(f's_add_u32 m0, s{sM0T}, {4*WOG[j]*8192 + half*4096}')
        if half: it.append(f's_add_u32 s{sT0}, s{sWO}, 36864')
        it += [dma(vWOV + p, SWO, f's{sT0 if half else sWO}', p * 1024, opts['wo'], f'WO{j}') for p in range(4)]
    return it + wrap_adv(sWO, 128, 1152, sT1)

def mk_srd(d, ptr, addlo, nbytes):
    if addlo is None:
        e(f's_mov_b32 s{d}, s{ptr}'); e(f's_and_b32 s{d+1}, s{ptr+1}, 0xffff')
    else:
        e(f's_add_u32 s{d}, s{ptr}, {addlo}')
        e(f's_addc_u32 s{d+1}, s{ptr+1}, 0')
        e(f's_and_b32 s{d+1}, s{d+1}, 0xffff')
    e(f's_mov_b32 s{d+2}, {nbytes}')
    e(f's_mov_b32 s{d+3}, 0x00020000')

def rd_x(j):
    w_, o = win((5 + j) * 8192)
    return [f'ds_read_b128 {ar(aX+4*(4*j+ks), 4)}, v{vXRD + 4*w_ + ks} offset:{o}' for ks in range(4)]
def rd_wq(stage):
    it = []
    for ks in range(2):
        w_, o = win((14 + 2 * (stage % 3) + ks) * 8192)
        for u in range(4):
            d = aWQ + 32 * (stage % 2) + (ks * 4 + u) * 4
            for sec in range(2):
                it.append(f'ds_read_b64_tr_b16 {ar(d+2*sec, 2)}, v{vWQR + 4*(w_-1) + u} offset:{o + sec*1024}')
    return it
def mf_q(stage, order=None):
    it = []
    idx = [(ks, u) for ks in range(2) for u in range(4)] if order is None else order
    for ks, u in idx:
        d = aWQ + 32 * (stage % 2) + (ks * 4 + u) * 4
        c = '0' if (stage == 0 and ks == 0) else vr(vO + 16 * u, 16)
        it.append(f'{MF} {vr(vO+16*u, 16)}, {ar(d, 4)}, {ar(aX + 4*(2*stage+ks), 4)}, {c}')
    return it
def rd_k(t):
    w_, o = win(KVSLOT[f'K{t}'] * 8192)
    return [f'ds_read_b128 {ar(aK+4*s, 4)}, v{vKR + 8*w_ + s} offset:{o}' for s in range(8)]
def rd_v(t):
    w_, o = win(KVSLOT[f'V{t}'] * 8192)
    it = []
    for a in range(2):
        for tt in range(4):
            d = aV + (a * 4 + tt) * 4
            for sec in range(2):
                it.append(f'ds_read_b64_tr_b16 {ar(d+2*sec, 2)}, v{vVR + 4*w_ + tt} offset:{o + a*4096 + sec*2048}')
    return it
def mf_qk(t):
    S = vS + 16 * (t % 2)
    return [f'{MF} {vr(S, 16)}, {ar(aK+4*s, 4)}, {vr(vQ+4*s, 4)}, ' + (vr(S, 16) if s else ('0' if t == 0 else vr(vNM, 16))) for s in range(8)]
def mf_pv(t):
    P = vP + 8 * (t % 2)
    it = []
    for a in range(2):
        for tt in range(4):
            c = '0' if (t == 0 and a == 0) else vr(vO + 16 * tt, 16)
            it.append(f'{MF} {vr(vO+16*tt, 16)}, {ar(aV + (a*4+tt)*4, 4)}, {vr(P+4*a, 4)}, {c}')
        c = '0' if (t == 0 and a == 0) else vr(vL, 16)
        it.append(f'{MF} {vr(vL, 16)}, {ar(aONE, 4)}, {vr(P+4*a, 4)}, {c}')
    return it
def sm_max(t):
    S = vS + 16 * (t % 2)
    it = [f'v_max3_f32 v{vMX}, v{S}, v{S+1}, v{S+2}', f'v_max3_f32 v{vMX+1}, v{S+3}, v{S+4}, v{S+5}']
    k = 6; d = 0
    while k < 16:
        it.append(f'v_max3_f32 v{vMX+d}, v{vMX+d}, v{S+k}, v{S+k+1}'); k += 2; d ^= 1
    it.append(f'v_max_f32 v{vMX}, v{vMX}, v{vMX+1}')
    return it
stubs = []
def sm_check(t):
    def f():
        e(f'v_cmp_lt_f32 vcc, {f32(opts["T"])}, v{vMX}')
        e(f's_cbranch_vccnz L_stub{t}')
        e.label(f'L_back{t}')
        stubs.append(t)
    return [f]
def sm_exp(t):
    S = vS + 16 * (t % 2); P = vP + 8 * (t % 2)
    it = [f'v_exp_f32 v{S}, v{S}', f'v_exp_f32 v{S+1}, v{S+1}']
    for p in range(8):
        if p < 7: it += [f'v_exp_f32 v{S+2*p+2}, v{S+2*p+2}', f'v_exp_f32 v{S+2*p+3}, v{S+2*p+3}']
        it.append(f'v_cvt_pk_bf16_f32 v{P+p}, v{S+2*p}, v{S+2*p+1}')
    return it
def rd_wo(j):
    w_, o = win(WOG[j] * 32768)
    it = []
    for oth in range(2):
        for f in range(8):
            d = aWO + 64 * (j % 2) + (oth * 8 + f) * 4
            for sec in range(2):
                it.append(f'ds_read_b64_tr_b16 {ar(d+2*sec, 2)}, v{vWOR + 2*w_ + oth} offset:{o + f*2048 + sec*1024}')
    return it
def mf_o(j):
    acc = vS + 16 * (j % 2)
    it = []
    for oth in range(2):
        for f in range(8):
            d = aWO + 64 * (j % 2) + (oth * 8 + f) * 4
            b = vr(vQ + 4 * f, 4) if oth == 0 else ar(aOO + 4 * f, 4)
            c = '0' if (oth == 0 and f == 0) else vr(acc, 16)
            it.append(f'{MF} {vr(acc, 16)}, {ar(d, 4)}, {b}, {c}')
    return it
def ep_o(j):
    acc = vS + 16 * (j % 2); P = vP + 8 * (j % 2)
    it = []
    for h in range(2):
        for p in range(4):
            it.append(f'v_cvt_pk_bf16_f32 v{P+4*h+p}, v{acc+8*h+2*p}, v{acc+8*h+2*p+1}')
        off = ' offset:1024' if h else ''
        it.append((f'buffer_store_dwordx4 {vr(P+4*h, 4)}, v{vSTV}, {sr(SWS)}, s{sST} offen{off} {opts["st"]}', f'ST{j}'))
    return it + wrap_adv(sST, 8192, 73728, sT2)
def publish(j):
    def f():
        e.wait_vm({f'ST{j}'})
        e(f'buffer_store_dwordx2 {vr(vE, 2)}, v{vFLV}, {sr(SFL)}, s{sFL} offen sc1', 'FL')
    return [f] + wrap_adv(sFL, 512, 4608, sT2)

K = NAME + '_kernel'
e.raw(f'.globl {K}\n.p2align 8\n.type {K},@function\n{K}:')
e('s_cmp_ge_u32 s2, 256')
e('s_cbranch_scc1 L_end')
e('s_load_dwordx8 s[4:11], s[0:1], 0')
e('s_load_dwordx8 s[12:19], s[0:1], 32')
e('s_memrealtime s[100:101]')
if PROF: e('s_memtime s[96:97]')
e('v_lshrrev_b32 v1, 6, v0')
e(f's_and_b32 s{sHKV}, s2, 7')
e(f'v_readfirstlane_b32 s{sW}, v1')
e(f's_lshl_b32 s{sHKV}, s{sHKV}, 1')
e(f's_bfe_u32 s{sT0}, s2, 0x10003')
e(f's_add_u32 s{sHKV}, s{sHKV}, s{sT0}')
e(f's_lshr_b32 s{sB}, s2, 4')
e(f's_sub_u32 s{sT0}, s{sB}, 9')
e(f's_cselect_b32 s{sROT}, s{sB}, s{sT0}')
e(f's_lshl_b32 s{sM0W}, s{sW}, 11')
e(f's_lshl_b32 s{sM0Q}, s{sW}, 12')
e(f's_lshl_b32 s{sM0T}, s{sW}, 13')
e('v_bfe_u32 v2, v0, 3, 3')
e('v_and_b32 v3, 7, v0')
e('v_bfe_u32 v4, v0, 4, 2')
e('v_and_b32 v5, 15, v0')
e('v_lshrrev_b32 v6, 1, v2')
e('v_xor_b32 v7, v3, v6')
e('v_lshlrev_b32 v7, 4, v7')
e('v_mul_u32_u24 v8, 1152, v2')
e('v_mul_u32_u24 v9, 18432, v1')
e('v_add_u32 v9, v9, v8')
e(f'v_add_u32 v{vXa}, v9, v7')
e('v_xor_b32 v7, 64, v7')
e(f'v_add3_u32 v{vXb}, v9, v7, 0')
e(f'v_add_u32 v{vXb}, 8192, v{vXb}')
e('v_lshlrev_b32 v7, 2, v4')
e('v_xor_b32 v7, v5, v7')
e('v_lshlrev_b32 v7, 4, v7')
e('v_lshl_add_u32 v9, v4, 13, v7')
e('v_lshrrev_b32 v10, 1, v1')
e('v_lshl_add_u32 v9, v10, 17, v9')
e('v_and_b32 v10, 1, v1')
e(f'v_lshl_add_u32 v{vWQV}, v10, 8, v9')
for p in range(1, 4): e(f'v_add_u32 v{vWQV+p}, {p*31744}, v{vWQV}')
e('v_lshl_add_u32 v9, v4, 8, v7')
e(f'v_lshl_add_u32 v{vVc}, v1, 11, v9')
e('v_xor_b32 v7, v5, v4')
e('v_lshlrev_b32 v7, 4, v7')
e('v_lshl_add_u32 v9, v4, 8, v7')
e('v_lshlrev_b32 v10, 7, v10')
e('v_xor_b32 v9, v9, v10')
e(f'v_lshl_add_u32 v{vKa}, v1, 11, v9')
e(f'v_xor_b32 v{vKb}, 64, v{vKa}')
for t in range(16): e(f's_mov_b32 s{sTILE+t}, {t*8192}')
e(f's_lshl_b32 s{sWQ}, s{sROT}, 19')
e(f's_lshl_b32 s{sWO}, s{sROT}, 7')
e(f's_lshl_b32 s{sXO}, s{sROT}, 7')
e(f's_lshl_b32 s{sST}, s{sROT}, 13')
e(f's_lshl_b32 s{sFL}, s{sROT}, 9')
e(f's_lshl_b32 s{sJOB}, s{sB}, 4')
e(f's_add_u32 s{sJOB}, s{sJOB}, s{sHKV}')
e(f's_mul_i32 s{sT0}, s{sB}, 73728')
e(f's_lshl_b32 s{sT2}, s{sHKV}, 9')
e(f's_lshl_b32 s3, s{sJOB}, 17')
e('s_waitcnt lgkmcnt(0)')
mk_srd(SX, 4, f's{sT0}', 73728)
put(xt(0))
mk_srd(SWQ, 10, f's{sT2}', 4718592 - 15 * 512)
put(wq_stage(0))
mk_srd(SK, 6, 's3', 131072)
put(kv(0))
put(xt(1)); put(wq_stage(1)); put(kv(1))
mk_srd(SV, 8, 's3', 131072)
mk_srd(SDBG, 16, None, 256)
e(f'v_lshl_add_u32 v9, s2, 8, v0')
e('v_lshlrev_b32 v9, 8, v9')
e('v_mov_b32 v10, s100'); e('v_mov_b32 v11, s101')
e('s_cmp_lg_u32 s2, 0')
e('s_cbranch_scc1 L_noepoch')
e(f'buffer_store_dwordx2 v[10:11], v9, {sr(SDBG)}, 0 offen sc1')
e.vm['A'].pop()
e.label('L_noepoch')
if opts['cpf']:
    e(f's_cmp_lg_u32 s{sW}, 3')
    e('s_cbranch_scc1 L_nocpf')
    e('s_getpc_b64 s[98:99]')
    e.label('L_pc')
    e(f's_sub_u32 s98, s98, L_pc-{K}')
    e('s_subb_u32 s99, s99, 0')
    e('s_lshr_b32 s3, s2, 3')
    e('v_and_b32 v9, 7, v0')
    e('v_lshl_add_u32 v9, s3, 3, v9')
    e('v_lshlrev_b32 v9, 7, v9')
    e(f'v_min_u32 v9, L_textend-{K}-4, v9')
    e('s_mov_b64 exec, 0xff')
    e.raw('    global_load_dword v12, v9, s[98:99]')
    e('s_mov_b64 exec, -1')
    e.label('L_nocpf')
put(xt(2)); put(wq_stage(2))

e(f's_mul_i32 s3, s{sHKV}, 294912')
mk_srd(SWO, 12, 's3', 294912)
e(f's_mul_i32 s3, s{sJOB}, 73728')
mk_srd(SWS, 18, 's3', 73728)
e(f's_mul_i32 s3, s{sB}, 4608')
e(f's_add_u32 s3, s3, {FL_OFF}')
mk_srd(SFL, 18, 's3', 4608)
e(f's_mul_i32 s3, s{sB}, {16*73728}')
mk_srd(SPR, 18, 's3', 16 * 73728)
e(f's_mul_i32 s3, s{sB}, 73728')
mk_srd(SOUT, 14, 's3', 73728)
sc = math.log2(math.e) / math.sqrt(128.0)
e(f's_mov_b32 s{sSC}, {f32(sc)}'); e(f's_mov_b32 s{sSC+1}, {f32(sc)}')
e('v_bfe_u32 v9, v0, 5, 1')
e('v_and_b32 v10, 31, v0')
e('v_bfe_u32 v11, v0, 2, 2')
e('v_and_b32 v7, 3, v0')
e('v_bfe_u32 v13, v0, 4, 1')
e('v_and_b32 v14, 1, v1')
e('v_lshl_add_u32 v14, v14, 5, v10')
e('v_bfe_u32 v15, v14, 1, 3')
e('v_xor_b32 v15, v15, v9')
e('v_lshlrev_b32 v15, 4, v15')
e(f'v_lshl_add_u32 v{vXRD}, v14, 7, v15')
for ks in range(1, 4): e(f'v_xor_b32 v{vXRD+ks}, {ks*32}, v{vXRD}')
for ks in range(4): e(f'v_add_u32 v{vXRD+4+ks}, 0x10000, v{vXRD+ks}')
e('v_lshrrev_b32 v14, 1, v1')
e('v_lshlrev_b32 v14, 12, v14')
e('v_lshl_add_u32 v14, v9, 11, v14')
e('v_lshl_add_u32 v14, v11, 8, v14')
e('v_lshl_add_u32 v14, v11, 6, v14')
e('v_lshl_add_u32 v14, v13, 5, v14')
e('v_and_b32 v15, 1, v7')
e('v_lshl_add_u32 v14, v15, 4, v14')
e('v_lshrrev_b32 v15, 1, v7')
e('v_lshl_add_u32 v14, v15, 3, v14')
e(f'v_add_u32 v{vWQR}, 0x10000, v14')
for u in range(1, 4): e(f'v_xor_b32 v{vWQR+u}, {u*64}, v{vWQR}')
for u in range(4): e(f'v_add_u32 v{vWQR+4+u}, 0x10000, v{vWQR+u}')
e('v_xor_b32 v14, v9, v5')
e('v_lshlrev_b32 v14, 4, v14')
e(f'v_lshl_add_u32 v{vKR}, v10, 8, v14')
for s in range(1, 8): e(f'v_xor_b32 v{vKR+s}, {s*32}, v{vKR}')
for w_ in (1, 2):
    for s in range(8): e(f'v_add_u32 v{vKR+8*w_+s}, {w_*0x10000}, v{vKR+s}')
e('v_lshlrev_b32 v14, 10, v9')
e('v_lshl_add_u32 v14, v11, 8, v14')
e('v_lshl_add_u32 v14, v11, 6, v14')
e('v_lshl_add_u32 v14, v13, 5, v14')
e(f'v_lshl_add_u32 v{vVR}, v7, 3, v14')
for t in range(1, 4): e(f'v_xor_b32 v{vVR+t}, {t*64}, v{vVR}')
for w_ in (1, 2):
    for t in range(4): e(f'v_add_u32 v{vVR+4*w_+t}, {w_*0x10000}, v{vVR+t}')
e('v_lshrrev_b32 v4, 1, v1')
e('v_lshlrev_b32 v14, 9, v9')
e('v_lshl_add_u32 v14, v11, 7, v14')
e('v_lshrrev_b32 v15, 1, v11')
e('v_xor_b32 v15, v15, v4')
e('v_lshl_add_u32 v14, v15, 6, v14')
e('v_and_b32 v15, 1, v7')
e('v_lshl_add_u32 v14, v15, 5, v14')
e('v_lshl_add_u32 v14, v13, 4, v14')
e('v_lshrrev_b32 v15, 1, v7')
e('v_lshl_add_u32 v14, v15, 3, v14')
e(f'v_lshl_add_u32 v{vWOR}, v4, 14, v14')
e(f'v_xor_b32 v{vWOR+1}, 0x4000, v{vWOR}')
for w_ in (1, 2):
    for o in range(2): e(f'v_add_u32 v{vWOR+2*w_+o}, {w_*0x10000}, v{vWOR+o}')
e('v_and_b32 v14, 63, v0')
e(f'v_lshlrev_b32 v{vL16}, 4, v14')
e(f'v_lshl_add_u32 v{vXW}, v1, 13, v{vL16}')
e(f'v_add_u32 v{vXW}, {XG*32768}, v{vXW}')
e(f'v_xor_b32 v{vXR}, 0x4000, v{vXW}')
e(f'v_lshl_add_u32 v{vSTV}, v1, 11, v{vL16}')
e(f'v_lshlrev_b32 v14, 16, v14')
e(f'v_lshl_add_u32 v14, v1, 7, v14')
e(f's_lshl_b32 s3, s{sHKV}, 3')
e(f'v_add_u32 v{vFLV}, s3, v14')
e('v_and_b32 v14, 1, v6')
e('v_lshlrev_b32 v14, 2, v14')
e('v_xor_b32 v14, v14, v3')
e('v_lshl_add_u32 v14, v14, 4, v8')
e('v_mul_u32_u24 v15, 73728, v1')
e(f'v_add_u32 v{vWOV}, v14, v15')
for p in range(1, 4): e(f'v_add_u32 v{vWOV+p}, {p*8192}, v{vWOV}')
e('v_mov_b32 v14, 0x3f803f80')
for i in range(4): e(f'v_accvgpr_write_b32 a{aONE+i}, v14')
e('v_and_b32 v14, 1, v0')
e('v_lshlrev_b32 v14, 4, v14')
e('v_lshlrev_b32 v14, v14, 0x3f80'.replace('v14, 0x3f80', 'v14, v15') if False else 'v_mov_b32 v15, 0x3f80')
e('v_lshlrev_b32 v14, v14, v15')
e('v_bfe_u32 v15, v0, 2, 1')
e('v_xor_b32 v15, v15, v9')
e('v_or_b32 v15, v15, v13')
e('v_lshlrev_b32 v15, 3, v15')
e('v_bfe_u32 v2, v0, 3, 1')
e('v_bfe_u32 v3, v0, 1, 1')
e('v_lshl_add_u32 v2, v2, 1, v3')
e('v_add_u32 v2, v2, v15')
for d in range(4):
    e(f'v_cmp_eq_u32 vcc, {d}, v2')
    e(f'v_cndmask_b32 v3, 0, v14, vcc')
    e(f'v_accvgpr_write_b32 a{aPERM+d}, v3')

PLANS = {
 'a': {0: [2, 3], 1: [4, 5], 2: [6, 7], 3: [8], 4: [9], 5: [10], 6: [11], 7: [12], 8: [13], 15: [14, 15], 16: [16, 17], 17: [18, 19]},
 'u': {0: [2], 1: [3], 2: [4], 3: [5], 4: [6], 5: [7], 6: [8], 8: [9], 9: [10], 11: [11], 12: [12], 14: [13], 15: [14, 15], 16: [16, 17], 17: [18, 19]},
 'l': {9: [2, 3], 10: [4, 5], 11: [6, 7], 12: [8, 9], 13: [10, 11], 14: [12, 13], 15: [14, 15], 16: [16, 17], 17: [18, 19]},
}
KVPLAN = PLANS[opts['kvplan']]
bar({'X0', 'WQ0'}, False)
put(rd_x(0)); put(rd_wq(0))
bar({'X1', 'WQ1'})
def qcvt(u):
    it = []
    for p in range(8):
        r = vO + 16 * u + 2 * p
        it.append(f'v_pk_mul_f32 {vr(r, 2)}, {vr(r, 2)}, s[{sSC}:{sSC+1}]')
    for p in range(8):
        r = vO + 16 * u + 2 * p
        it.append(f'v_cvt_pk_bf16_f32 v{vQ+8*u+p}, v{r}, v{r+1}')
    return it
for s in range(18):
    d = []
    if s + 3 < 18: d += wq_stage(s + 3)
    if s + 3 < 9: d += xt(s + 3)
    for n in KVPLAN.get(s, []): d += kv(n)
    if s < 17:
        rd = rd_wq(s + 1) + (rd_x(s + 1) if s + 1 < 9 else [])
        e.weave(mf_q(s), [(rd, -1, 6), (d, 0, 8)])
        tags = set()
        if s + 2 < 18: tags.add(f'WQ{s+2}')
        if s + 2 < 9: tags.add(f'X{s+2}')
        if s == 16: tags.add('K0')
        bar(tags)
    else:
        e.weave(mf_q(s, [(ks, u) for u in range(4) for ks in range(2)]),
                [(rd_k(0), -1, 3), (d, 0, 4), (qcvt(0), 4, 6), (qcvt(1), 6, 8)])
qk0 = mf_qk(0)
e.weave(qk0[:4], [(qcvt(2), 0, 2), (qcvt(3), 2, 4)])
e.weave(qk0[4:], [])
bar({'K1', 'V0'})
nxt = 20
WOPLAN = {8: 0, 10: 1, 12: 2, 14: 3}
for t in range(16):
    d = []
    for _ in range(1 if t == 0 else 2):
        if nxt < 32: d += kv(nxt); nxt += 1
    if t in WOPLAN: d += wo_cb(WOPLAN[t])
    if t == 7:
        d += ['v_mov_b32 v1, 0', (f'buffer_load_dwordx2 {vr(vE, 2)}, v1, {sr(SDBG)}, 0 offen sc1', 'EP')]
    if t == 0:
        put(d); put(rd_k(1)); put(sm_max(0))
        e(f'v_mov_b32 v{vMX+1}, v{vMX}')
        e(f'v_permlane32_swap_b32 v{vMX}, v{vMX+1}')
        e(f'v_max_f32 v{vMX}, v{vMX}, v{vMX+1}')
        for r in range(16): e(f'v_sub_f32 v{vNM+r}, 0, v{vMX}')
        sub = [f'v_sub_f32 v{vS+r}, v{vS+r}, v{vMX}' for r in range(16)]
        e('s_waitcnt lgkmcnt(0)')
        e.weave(mf_qk(1), [(rd_v(0), 0, 6), (sub + sm_exp(0), 0, 8)])
    elif t < 15:
        sm = sm_max(t) + sm_check(t) + sm_exp(t)
        streams = [(rd_k(t + 1), 0, 8), (rd_v(t), 10, 16), (sm, 1, 18)]
        if d: streams.append((d, -1, 16 if len(d) > 8 else 9))
        streams.append((['s_waitcnt lgkmcnt(0)'], 9, 10))
        e.weave(mf_pv(t - 1) + mf_qk(t + 1), streams)
    else:
        sm = sm_max(t) + sm_check(t) + sm_exp(t)
        e.weave(mf_pv(14), [(sm, 1, 10)])
    if t < 14: bar({f'K{t+2}', f'V{t+1}'})
    elif t == 15: bar({'V15', 'WO0', 'EP'})
put(rd_v(15))
e.weave(mf_pv(15), [(rd_wo(0), 0, 10)])
e(f'v_or_b32 v1, v{vE}, v{vE+1}')
e('v_cmp_eq_u32 vcc, 0, v1')
e('s_cbranch_vccnz L_epoch_spin')
e.label('L_epoch_ok')
e('s_barrier')
e(f'v_rcp_f32 v{vINV}, v{vL}')
for tt in range(4):
    for p in range(8):
        r = vO + 16 * tt + 2 * p
        e(f'v_pk_mul_f32 {vr(r, 2)}, {vr(r, 2)}, {vr(vINV, 2)} op_sel_hi:[1,0]')
    for p in range(8):
        r = vO + 16 * tt + 2 * p
        e(f'v_cvt_pk_bf16_f32 v{vQ+8*tt+p}, v{r}, v{r+1}')
    for a in range(2):
        f = 2 * tt + a
        e(f'ds_write_b128 v{vXW}, {vr(vQ+4*f, 4)} offset:{f*1024}')
bar({'WO1'})
OPLAN = {0: 4, 1: 5, 2: 6, 3: 7, 4: 8}
LAG = opts['lag']
pub = 0
for j in range(9):
    streams = []
    if j == 0:
        streams.append(([f'ds_read_b128 {ar(aOO+4*f, 4)}, v{vXR} offset:{f*1024}' for f in range(8)], -1, 2))
    if j in OPLAN: streams.append((wo_cb(OPLAN[j]), 0, 15))
    if j < 8: streams.append((rd_wo(j + 1), 0, 14))
    ep = []
    if j > 0: ep += ep_o(j - 1)
    if j - 1 - LAG >= 0: ep += publish(pub); pub += 1
    if ep: streams.append((ep, 3, 14))
    e.weave(mf_o(j), streams)
    if j < 7: bar({f'WO{j+2}'})
put(ep_o(8))
mark()
while pub < 9: put(publish(pub)); pub += 1
mark()
sU, sCNT = 64, 65
e(f's_lshl_b32 s{sU}, s{sHKV}, 2')
e(f's_add_u32 s{sU}, s{sU}, s{sW}')
e('v_and_b32 v1, 15, v0')
e('v_lshlrev_b32 v1, 3, v1')
e('v_and_b32 v2, 31, v0')
e('v_mul_u32_u24 v2, 1152, v2')
e('v_bfe_u32 v3, v0, 5, 1')
e('v_lshl_add_u32 v2, v3, 5, v2')
e.label('L_unit')
e.S = State()
e(f's_lshr_b32 s66, s{sU}, 1')
e(f's_lshl_b32 s66, s66, 7')
e(f's_mov_b32 s{sCNT}, {opts["spin"]}')
e.label('L_poll')
e(f'buffer_load_dwordx2 v[4:5], v1, {sr(SFL)}, s66 offen sc1')
e(f's_sub_u32 s{sCNT}, s{sCNT}, 1')
e('s_cbranch_scc1 L_go')
e('s_waitcnt vmcnt(0)')
e(f'v_cmp_ne_u64 vcc, v[4:5], {vr(vE, 2)}')
e('s_cbranch_vccnz L_poll')
e.label('L_go')
e(f's_lshl_b32 s67, s{sU}, 10')
for h in range(16):
    e(f'buffer_load_dwordx4 {ar(4*h, 4)}, v{vL16}, {sr(SPR)}, s67 offen {opts["ld"]}')
    if h < 15: e('s_add_u32 s67, s67, 73728')
e(f's_bfe_u32 s68, s{sU}, 0x10001')
e('s_mul_i32 s68, s68, 36864')
e(f's_lshr_b32 s69, s{sU}, 2')
e('s_lshl_b32 s69, s69, 6')
e('s_add_u32 s68, s68, s69')
e(f's_and_b32 s69, s{sU}, 1')
e('s_lshl_b32 s69, s69, 4')
e('s_add_u32 s68, s68, s69')
for h in range(16):
    e(f's_waitcnt vmcnt({15-h})')
    e(f'{MF} {vr(vS, 16)}, {ar(aPERM, 4)}, {ar(4*h, 4)}, ' + ('0' if h == 0 else vr(vS, 16)))
for p in range(4): e(f'v_cvt_pk_bf16_f32 v{vP+p}, v{vS+2*p}, v{vS+2*p+1}')
e(f'buffer_store_dwordx4 {vr(vP, 4)}, v2, {sr(SOUT)}, s68 offen')
e(f's_and_b32 s69, s{sU}, 0x47')
e('s_cmp_lg_u32 s69, 0')
e('s_cbranch_scc1 L_done')
e(f's_lshr_b32 s{sU}, s{sU}, 3')
e(f's_add_u32 s{sU}, s{sU}, 64')
e('s_branch L_unit')
e.label('L_done')
if PROF:
    e('s_waitcnt vmcnt(0)')
    mark(); mark()
    e(f'v_writelane_b32 v{vPA}, s96, 63')
    mk_srd(SWS, 18, None, 0x10000000)
    e('s_lshl_b32 s62, s2, 11')
    e('s_add_u32 s62, s62, 0x9000000')
    e('v_and_b32 v2, 63, v0'); e('v_lshrrev_b32 v3, 6, v0'); e('v_lshlrev_b32 v2, 2, v2'); e('v_lshl_add_u32 v2, v3, 9, v2')
    e(f'buffer_store_dword v{vPA}, v2, {sr(SWS)}, s62 offen')
    e(f'buffer_store_dword v{vPB}, v2, {sr(SWS)}, s62 offen offset:256')
    print('bars', nbar[0], file=sys.stderr)
e.label('L_end')
e('s_endpgm')
e.label('L_epoch_spin')
e.S = State()
e(f's_mov_b32 s3, {opts["spin"]}')
e('v_mov_b32 v1, 0')
e.label('L_epoch_loop')
e(f'buffer_load_dwordx2 {vr(vE, 2)}, v1, {sr(SDBG)}, 0 offen sc1')
e('s_sub_u32 s3, s3, 1')
e('s_cbranch_scc1 L_epoch_ok')
e('s_waitcnt vmcnt(0)')
e(f'v_or_b32 v2, v{vE}, v{vE+1}')
e('v_cmp_eq_u32 vcc, 0, v2')
e('s_cbranch_vccnz L_epoch_loop')
e('s_branch L_epoch_ok')
for t in stubs:
    e.label(f'L_stub{t}')
    e.raw(f'    s_call_b64 s[{sRET}:{sRET+1}], L_rescale')
    e.raw(f'    s_branch L_back{t}')
e.label('L_rescale')
e.S = State()
e('s_nop 15'); e('s_nop 15')
e(f'v_mov_b32 v{vMX+1}, v{vMX}')
e(f'v_permlane32_swap_b32 v{vMX}, v{vMX+1}')
e(f'v_max3_f32 v{vMX}, v{vMX}, v{vMX+1}, 0')
e(f'v_ceil_f32 v{vMX}, v{vMX}')
e(f'v_exp_f32 v{vMX+1}, -v{vMX}')
for r in range(48): e(f'v_sub_f32 v{vS+r}, v{vS+r}, v{vMX}')
for r in range(80): e(f'v_mul_f32 v{vO+r}, v{vO+r}, v{vMX+1}')
for r in range(16):
    e(f'v_lshlrev_b32 v2, 16, v{vP+r}')
    e(f'v_and_b32 v3, 0xffff0000, v{vP+r}')
    e(f'v_mul_f32 v2, v2, v{vMX+1}')
    e(f'v_mul_f32 v3, v3, v{vMX+1}')
    e(f'v_cvt_pk_bf16_f32 v{vP+r}, v2, v3')
e('s_nop 3')
e(f's_setpc_b64 s[{sRET}:{sRET+1}]')
e.label('L_textend')

hdr = f"""; GQA block (Q-proj + cached attention + O-proj + cross-workgroup reduction) for gfx950
; @launch grid=(256,1,1) block=(256,1,1) lds=163840
.amdgcn_target "amdgcn-amd-amdhsa--gfx950"
.text
"""
kd = f""".section .rodata,"a"
.p2align 6
.amdhsa_kernel {K}
  .amdhsa_next_free_vgpr 512
  .amdhsa_next_free_sgpr 102
  .amdhsa_accum_offset 256
  .amdhsa_group_segment_fixed_size 0
  .amdhsa_kernarg_size 64
  .amdhsa_user_sgpr_count 2
  .amdhsa_user_sgpr_kernarg_segment_ptr 1
  .amdhsa_system_sgpr_workgroup_id_x 1
.end_amdhsa_kernel
"""
open(sys.argv[1], 'w').write(hdr + e.text() + kd)
print(e.count, 'nops', e.nops, file=sys.stderr)
```

```python
import sys, math, struct
from emit import Emit, State

NAME = "standalone__gqa_block_cached__near_ridge"
opts = dict(kv="nt", wq="", x="", wo="", st="sc1", ld="sc1", T=8.0, prof=0, cpf=1, lag=4,
            kvplan="a", spin=200000, spinx=-1, fsh=3, sleep=0, allrdy=0, gmask=1, b1=14, la=9, one=0, pm='', pk=0, nost=0, nowo=0, nopub=0, apl='0,1,1,1,1,2,2,2,2,2,2,2', bwo='1,3,5,7,9,11,13,14,14,15,15,15', awo='0,1,7,8,10,12,13,13,14,14,15,15', brd='5,9', ard='3,10', opl=1, pollpos=0, out='')
for a in sys.argv[2:]:
    k, v = a.split('=')
    opts[k] = type(opts[k])(v) if not isinstance(opts[k], str) else v.replace('+', ' ')
PROF = opts['prof']
TM = 's_memrealtime' if PROF == 2 else 's_memtime'
PM = set(int(x) for x in opts['pm'].split(',')) if opts['pm'] else None
def f32(x): return '0x%08x' % struct.unpack('<I', struct.pack('<f', x))[0]

e = Emit(); e.roles = ['A', 'B']
SX, SK, SV, SWQ, SWO, SWS = 20, 24, 28, 32, 36, 40
SFL, SPR, SOUT, SDBG = 80, 84, 88, 92
sW, sHKV, sB, sROT = 44, 45, 46, 47
sT0, sT1, sT2 = 48, 49, 52
sRET = 50
sWQ, sWO, sST = 53, 54, 55
sM0W, sM0T = 56, 57
sSC = 58
sXO, sFL, sM0Q, sJOB = 60, 61, 62, 63
sTILE = 64
vKR = 16; vVR = 40
vKa, vKb, vVc = 52, 53, 54
vWOR = 55; vXW, vXR = 61, 62; vWOV = 63; vSTV = 67
vMX = 68; vINV = 70
vPA, vPB = 72, 73
vE = 74
vFLV = 76
vL16 = 77
vS = 80; vNM = 112; vP = 128; vO = 144; vL = 208; vQ = 224
vXRD = 80; vWQR = 88; vXa, vXb = 96, 97; vWQV = 100
aX = 0; aWQ = 144; aONE = 240; aPERM = 244
aK = 0; aV = 32; aWO = 64; aOO = 192
FL_OFF = 256 * 73728
FSH = opts['fsh']; FG = 16 << FSH

def vr(b, n): return f'v[{b}:{b+n-1}]'
def ar(b, n): return f'a[{b}:{b+n-1}]'
def sr(b, n=4): return f's[{b}:{b+n-1}]'
MF = 'v_mfma_f32_32x32x16_bf16'
def win(off): return off >> 16, off & 0xffff

nbar = [0]
def mark():
    if not PROF or (PM is not None and nbar[0] not in PM):
        if nbar[0] == opts['spinx']: e('s_memrealtime s[98:99]')
        nbar[0] += 1
        return
    if PM is not None:
        i = nbar[0]; nbar[0] += 1
        e(f'{TM} s[98:99]'); e('s_waitcnt lgkmcnt(0)'); e(f'v_writelane_b32 v{vPB}, s98, {i}')
        return
    i = nbar[0]; nbar[0] += 1
    e(f'{TM} s[98:99]'); e('s_waitcnt lgkmcnt(0)')
    e(f'v_writelane_b32 v{vPA}, s98, {i}')
    if i > 0: e(f'v_writelane_b32 v{vPB}, s100, {i-1}')
    e(f'{TM} s[100:101]')
def bar(tags, lgkm0=True):
    if not PROF or PM is not None:
        e.wait_vm(tags, lgkm0=lgkm0); e('s_barrier')
        mark()
        return
    i = nbar[0]; nbar[0] += 1
    e(f'{TM} s[98:99]'); e('s_waitcnt lgkmcnt(0)')
    e(f'v_writelane_b32 v{vPA}, s98, {i}')
    if i > 0: e(f'v_writelane_b32 v{vPB}, s100, {i-1}')
    e.wait_vm(tags, lgkm0=lgkm0); e('s_barrier')
    e(f'{TM} s[100:101]')

def put(items):
    for it in items:
        if callable(it): it()
        elif isinstance(it, tuple): e(it[0], it[1])
        else: e(it)
def wrap_adv(r, step, lim, tmp):
    def f():
        e(f's_sub_u32 s{tmp}, s{r}, {lim}')
        e(f's_cselect_b32 s{r}, s{r}, s{tmp}')
    return [f's_add_u32 s{r}, s{r}, {step}', f]
def dma(v, srd, so, off, pol, tag):
    o = f' offset:{off}' if off else ''
    p = f' {pol}' if pol else ''
    return (f'buffer_load_dwordx4 v{v}, {sr(srd)}, {so} offen{o}{p} lds', tag)

KVORD = ['K0'] + sum(([f'K{t+1}', f'V{t}'] for t in range(15)), []) + ['V15']
KVSLOT = {}
def set_group(g):
    for n, nm in enumerate(KVORD):
        KVSLOT[nm] = n if (g == 'A' and n in (12, 13)) else (n + 4) % 12
XSLOT = [9, 10, 11, 0, 1, 2, 3, 12, 13]
def kv(n):
    nm = KVORD[n]; t = int(nm[1:]); isk = nm[0] == 'K'
    srd = SK if isk else SV
    return [f's_add_u32 m0, s{sM0W}, {KVSLOT[nm]*8192}',
            dma(vKa if isk else vVc, srd, f's{sTILE+t}', 0, opts['kv'], nm),
            dma(vKb if isk else vVc, srd, f's{sTILE+t}', 1024, opts['kv'], nm)]
def xt(j):
    return [f's_add_u32 m0, s{sM0W}, {XSLOT[j]*8192}',
            dma(vXa, SX, f's{sXO}', 0, opts['x'], f'X{j}'),
            dma(vXb, SX, f's{sXO}', 1024, opts['x'], f'X{j}')] + wrap_adv(sXO, 128, 1152, sT1)
def wq_stage(s):
    it = [f's_add_u32 m0, s{sM0Q}, {(14 + 2*(s%3))*8192}']
    it += [dma(vWQV + p, SWQ, f's{sWQ}', p * 1024, opts['wq'], f'WQ{s}') for p in range(4)]
    return it + wrap_adv(sWQ, 2 * 131072, 36 * 131072, sT1)
WOG = [4, 3, 4, 3, 0, 1, 2, 4, 3]
XG = 2
RG = 1
def wo_half(j, half):
    it = [f's_add_u32 m0, s{sM0T}, {4*WOG[j]*8192 + half*4096}']
    if half: it.append(f's_add_u32 s{sT0}, s{sWO}, 36864')
    it += [dma(vWOV + p, SWO, f's{sT0 if half else sWO}', p * 1024, opts['wo'], f'WO{j}') for p in range(4)]
    return it + (wrap_adv(sWO, 128, 1152, sT1) if half else [])
def wo_cb(j): return wo_half(j, 0) + wo_half(j, 1)

def mk_srd(d, ptr, addlo, nbytes):
    if addlo is None:
        e(f's_mov_b32 s{d}, s{ptr}'); e(f's_and_b32 s{d+1}, s{ptr+1}, 0xffff')
    else:
        e(f's_add_u32 s{d}, s{ptr}, {addlo}')
        e(f's_addc_u32 s{d+1}, s{ptr+1}, 0')
        e(f's_and_b32 s{d+1}, s{d+1}, 0xffff')
    e(f's_mov_b32 s{d+2}, {nbytes}')
    e(f's_mov_b32 s{d+3}, 0x00020000')

def rd_x(j):
    w_, o = win(XSLOT[j] * 8192)
    return [f'ds_read_b128 {ar(aX+4*(4*j+ks), 4)}, v{vXRD + 4*w_ + ks} offset:{o}' for ks in range(4)]
def rd_wq(stage):
    it = []
    for ks in range(2):
        w_, o = win((14 + 2 * (stage % 3) + ks) * 8192)
        for u in range(4):
            d = aWQ + 32 * (stage % 2) + (ks * 4 + u) * 4
            for sec in range(2):
                it.append(f'ds_read_b64_tr_b16 {ar(d+2*sec, 2)}, v{vWQR + 4*(w_-1) + u} offset:{o + sec*1024}')
    return it
def mf_q(stage, order=None):
    it = []
    idx = [(ks, u) for ks in range(2) for u in range(4)] if order is None else order
    for ks, u in idx:
        d = aWQ + 32 * (stage % 2) + (ks * 4 + u) * 4
        c = '0' if (stage == 0 and ks == 0) else vr(vO + 16 * u, 16)
        it.append(f'{MF} {vr(vO+16*u, 16)}, {ar(d, 4)}, {ar(aX + 4*(2*stage+ks), 4)}, {c}')
    return it
def rd_k(t):
    w_, o = win(KVSLOT[f'K{t}'] * 8192)
    return [f'ds_read_b128 {ar(aK+4*s, 4)}, v{vKR + 8*w_ + s} offset:{o}' for s in range(8)]
def rd_v(t):
    w_, o = win(KVSLOT[f'V{t}'] * 8192)
    it = []
    for a in range(2):
        for tt in range(4):
            d = aV + (a * 4 + tt) * 4
            for sec in range(2):
                it.append(f'ds_read_b64_tr_b16 {ar(d+2*sec, 2)}, v{vVR + 4*w_ + tt} offset:{o + a*4096 + sec*2048}')
    return it
def mf_qk(t):
    S = vS + 16 * (t % 2)
    return [f'{MF} {vr(S, 16)}, {ar(aK+4*s, 4)}, {vr(vQ+4*s, 4)}, ' + (vr(S, 16) if s else ('0' if t == 0 else vr(vNM, 16))) for s in range(8)]
def mf_pv(t):
    P = vP + 8 * (t % 2)
    it = []
    for a in range(2):
        for tt in range(4):
            c = '0' if (t == 0 and a == 0) else vr(vO + 16 * tt, 16)
            it.append(f'{MF} {vr(vO+16*tt, 16)}, {ar(aV + (a*4+tt)*4, 4)}, {vr(P+4*a, 4)}, {c}')
        it.append(mf_l(t, a))
    return it
def mf_l(t, a):
    P = vP + 8 * (t % 2)
    c = '0' if (t == 0 and a == 0) else vr(vL, 4)
    return f'v_mfma_f32_16x16x32_bf16 {vr(vL, 4)}, {ar(aONE, 4)}, {vr(P+4*a, 4)}, {c}'
def sm_max(t):
    S = vS + 16 * (t % 2)
    it = [f'v_max3_f32 v{vMX}, v{S}, v{S+1}, v{S+2}', f'v_max3_f32 v{vMX+1}, v{S+3}, v{S+4}, v{S+5}']
    k = 6; d = 0
    while k < 16:
        it.append(f'v_max3_f32 v{vMX+d}, v{vMX+d}, v{S+k}, v{S+k+1}'); k += 2; d ^= 1
    it.append(f'v_max_f32 v{vMX}, v{vMX}, v{vMX+1}')
    return it
stubs = []
def sm_check(t0):
    t = f'{e.roles[0]}{t0}'
    def f():
        e(f'v_cmp_lt_f32 vcc, {f32(opts["T"])}, v{vMX}')
        e(f's_cbranch_vccnz L_stub{t}')
        e.label(f'L_back{t}')
        stubs.append(t)
    return [f]
def sm_exp(t):
    S = vS + 16 * (t % 2); P = vP + 8 * (t % 2)
    it = [f'v_exp_f32 v{S}, v{S}', f'v_exp_f32 v{S+1}, v{S+1}']
    for p in range(8):
        if p < 7: it += [f'v_exp_f32 v{S+2*p+2}, v{S+2*p+2}', f'v_exp_f32 v{S+2*p+3}, v{S+2*p+3}']
        it.append(f'v_cvt_pk_bf16_f32 v{P+p}, v{S+2*p}, v{S+2*p+1}')
    return it
def rd_wo(j):
    w_, o = win(WOG[j] * 32768)
    it = []
    for oth in range(2):
        for f in range(8):
            d = aWO + 64 * (j % 2) + (oth * 8 + f) * 4
            for sec in range(2):
                it.append(f'ds_read_b64_tr_b16 {ar(d+2*sec, 2)}, v{vWOR + 2*w_ + oth} offset:{o + f*2048 + sec*1024}')
    return it
def mf_o(j):
    acc = vS + 16 * (j % 2)
    it = []
    for oth in range(2):
        for f in range(8):
            d = aWO + 64 * (j % 2) + (oth * 8 + f) * 4
            b = vr(vQ + 4 * f, 4) if oth == 0 else ar(aOO + 4 * f, 4)
            c = '0' if (oth == 0 and f == 0) else vr(acc, 16)
            it.append(f'{MF} {vr(acc, 16)}, {ar(d, 4)}, {b}, {c}')
    return it
def ep_o(j):
    acc = vS + 16 * (j % 2); P = vP + 8 * (j % 2)
    it = []
    for h in range(2):
        for p in range(4):
            it.append(f'v_cvt_pk_bf16_f32 v{P+4*h+p}, v{acc+8*h+2*p}, v{acc+8*h+2*p+1}')
        off = ' offset:1024' if h else ''
        if not opts['nost']: it.append((f'buffer_store_dwordx4 {vr(P+4*h, 4)}, v{vSTV}, {sr(SWS)}, s{sTILE+j} offen{off} {opts["st"]}', f'ST{j}'))
    return it
def publish(j):
    def f():
        e.wait_vm({f'ST{j}'})
        so, off = ('0', j * 512) if j < 8 else (f's{sFL}', 0)
        e(f'buffer_store_dwordx2 {vr(vE, 2)}, v{vFLV}, {sr(SFL)}, {so} offen offset:{off} sc1', 'FL')
    return [f]

K = NAME + '_kernel'
e.raw(f'.globl {K}\n.p2align 8\n.type {K},@function\n{K}:')
e('s_cmp_ge_u32 s2, 256')
e('s_cbranch_scc1 L_end')
e('s_load_dwordx8 s[4:11], s[0:1], 0')
e('s_load_dwordx8 s[12:19], s[0:1], 32')
e('s_memrealtime s[100:101]')
if PROF: e(f'{TM} s[96:97]')
e('v_lshrrev_b32 v1, 6, v0')
e(f's_and_b32 s{sHKV}, s2, 7')
e(f'v_readfirstlane_b32 s{sW}, v1')
e(f's_lshl_b32 s{sHKV}, s{sHKV}, 1')
e(f's_bfe_u32 s{sT0}, s2, 0x10003')
e(f's_add_u32 s{sHKV}, s{sHKV}, s{sT0}')
e(f's_lshr_b32 s{sB}, s2, 4')
e(f's_sub_u32 s{sT0}, s{sB}, 9')
e(f's_cselect_b32 s{sROT}, s{sB}, s{sT0}')
e(f's_lshl_b32 s{sM0W}, s{sW}, 11')
e(f's_lshl_b32 s{sM0Q}, s{sW}, 12')
e(f's_lshl_b32 s{sM0T}, s{sW}, 13')
e('v_bfe_u32 v2, v0, 3, 3')
e('v_and_b32 v3, 7, v0')
e('v_bfe_u32 v4, v0, 4, 2')
e('v_and_b32 v5, 15, v0')
e('v_lshrrev_b32 v6, 1, v2')
e('v_xor_b32 v7, v3, v6')
e('v_lshlrev_b32 v7, 4, v7')
e('v_mul_u32_u24 v8, 1152, v2')
e('v_mul_u32_u24 v9, 18432, v1')
e('v_add_u32 v9, v9, v8')
e(f'v_add_u32 v{vXa}, v9, v7')
e('v_xor_b32 v7, 64, v7')
e(f'v_add3_u32 v{vXb}, v9, v7, 0')
e(f'v_add_u32 v{vXb}, 8192, v{vXb}')
e('v_lshlrev_b32 v7, 2, v4')
e('v_xor_b32 v7, v5, v7')
e('v_lshlrev_b32 v7, 4, v7')
e('v_lshl_add_u32 v9, v4, 13, v7')
e('v_lshrrev_b32 v10, 1, v1')
e('v_lshl_add_u32 v9, v10, 17, v9')
e('v_and_b32 v10, 1, v1')
e(f'v_lshl_add_u32 v{vWQV}, v10, 8, v9')
for p in range(1, 4): e(f'v_add_u32 v{vWQV+p}, {p*31744}, v{vWQV}')
e('v_lshl_add_u32 v9, v4, 8, v7')
e(f'v_lshl_add_u32 v{vVc}, v1, 11, v9')
e('v_xor_b32 v7, v5, v4')
e('v_lshlrev_b32 v7, 4, v7')
e('v_lshl_add_u32 v9, v4, 8, v7')
e('v_lshlrev_b32 v10, 7, v10')
e('v_xor_b32 v9, v9, v10')
e(f'v_lshl_add_u32 v{vKa}, v1, 11, v9')
e(f'v_xor_b32 v{vKb}, 64, v{vKa}')
for t in range(16): e(f's_mov_b32 s{sTILE+t}, {t*8192}')
e(f's_lshl_b32 s{sWQ}, s{sROT}, 19')
e(f's_lshl_b32 s{sWO}, s{sROT}, 7')
e(f's_lshl_b32 s{sXO}, s{sROT}, 7')
e(f's_movk_i32 s{sFL}, 0x1000')
e(f's_lshl_b32 s{sJOB}, s{sB}, 4')
e(f's_add_u32 s{sJOB}, s{sJOB}, s{sHKV}')
e(f's_mul_i32 s{sT0}, s{sB}, 73728')
e(f's_lshl_b32 s{sT2}, s{sHKV}, 9')
e(f's_lshl_b32 s3, s{sJOB}, 17')
e('s_waitcnt lgkmcnt(0)')
mk_srd(SX, 4, f's{sT0}', 73728)
put(xt(0))
mk_srd(SWQ, 10, f's{sT2}', 4718592 - 15 * 512)
put(wq_stage(0))
put(xt(1)); put(wq_stage(1))
mk_srd(SK, 6, 's3', 131072)
mk_srd(SV, 8, 's3', 131072)
mk_srd(SDBG, 16, None, 256)
e(f'v_lshl_add_u32 v9, s2, 8, v0')
e('v_lshlrev_b32 v9, 8, v9')
e('v_mov_b32 v10, s100'); e('v_mov_b32 v11, s101')
e('s_cmp_lg_u32 s2, 0')
e('s_cbranch_scc1 L_noepoch')
e(f'buffer_store_dwordx2 v[10:11], v9, {sr(SDBG)}, 0 offen sc1')
e.vm['A'].pop(); e.vm['B'].pop()
e.label('L_noepoch')
if opts['cpf']:
    e(f's_cmp_lg_u32 s{sW}, 3')
    e('s_cbranch_scc1 L_nocpf')
    e('s_getpc_b64 s[98:99]')
    e.label('L_pc')
    e(f's_sub_u32 s98, s98, L_pc-{K}')
    e('s_subb_u32 s99, s99, 0')
    e('s_lshr_b32 s3, s2, 3')
    e('v_and_b32 v9, 15, v0')
    e('v_lshl_add_u32 v9, s3, 4, v9')
    e('v_lshlrev_b32 v9, 7, v9')
    e(f'v_min_u32 v9, L_textend-{K}-4, v9')
    e('s_mov_b64 exec, 0xffff')
    e.raw('    global_load_dword v12, v9, s[98:99]')
    e('s_mov_b64 exec, -1')
    e.label('L_nocpf')

e(f's_mul_i32 s3, s{sHKV}, 294912')
mk_srd(SWO, 12, 's3', 294912)
e(f's_mul_i32 s3, s{sJOB}, 73728')
mk_srd(SWS, 18, 's3', 73728)
e(f's_mul_i32 s3, s{sB}, {36*FG}')
e(f's_add_u32 s3, s3, {FL_OFF}')
mk_srd(SFL, 18, 's3', 36*FG)
e(f's_mul_i32 s3, s{sB}, {16*73728}')
mk_srd(SPR, 18, 's3', 16 * 73728)
e(f's_mul_i32 s3, s{sB}, 73728')
mk_srd(SOUT, 14, 's3', 73728)
sc = math.log2(math.e) / math.sqrt(128.0)
e(f's_mov_b32 s{sSC}, {f32(sc)}'); e(f's_mov_b32 s{sSC+1}, {f32(sc)}')
e('v_bfe_u32 v9, v0, 5, 1')
e('v_and_b32 v10, 31, v0')
e('v_bfe_u32 v11, v0, 2, 2')
e('v_and_b32 v7, 3, v0')
e('v_bfe_u32 v13, v0, 4, 1')
e('v_and_b32 v14, 1, v1')
e('v_lshl_add_u32 v14, v14, 5, v10')
e('v_bfe_u32 v15, v14, 1, 3')
e('v_xor_b32 v15, v15, v9')
e('v_lshlrev_b32 v15, 4, v15')
e(f'v_lshl_add_u32 v{vXRD}, v14, 7, v15')
for ks in range(1, 4): e(f'v_xor_b32 v{vXRD+ks}, {ks*32}, v{vXRD}')
for ks in range(4): e(f'v_add_u32 v{vXRD+4+ks}, 0x10000, v{vXRD+ks}')
e('v_lshrrev_b32 v14, 1, v1')
e('v_lshlrev_b32 v14, 12, v14')
e('v_lshl_add_u32 v14, v9, 11, v14')
e('v_lshl_add_u32 v14, v11, 8, v14')
e('v_lshl_add_u32 v14, v11, 6, v14')
e('v_lshl_add_u32 v14, v13, 5, v14')
e('v_and_b32 v15, 1, v7')
e('v_lshl_add_u32 v14, v15, 4, v14')
e('v_lshrrev_b32 v15, 1, v7')
e('v_lshl_add_u32 v14, v15, 3, v14')
e(f'v_add_u32 v{vWQR}, 0x10000, v14')
for u in range(1, 4): e(f'v_xor_b32 v{vWQR+u}, {u*64}, v{vWQR}')
for u in range(4): e(f'v_add_u32 v{vWQR+4+u}, 0x10000, v{vWQR+u}')
e('v_xor_b32 v14, v9, v5')
e('v_lshlrev_b32 v14, 4, v14')
e(f'v_lshl_add_u32 v{vKR}, v10, 8, v14')
for s in range(1, 8): e(f'v_xor_b32 v{vKR+s}, {s*32}, v{vKR}')
for w_ in (1, 2):
    for s in range(8): e(f'v_add_u32 v{vKR+8*w_+s}, {w_*0x10000}, v{vKR+s}')
e('v_lshlrev_b32 v14, 10, v9')
e('v_lshl_add_u32 v14, v11, 8, v14')
e('v_lshl_add_u32 v14, v11, 6, v14')
e('v_lshl_add_u32 v14, v13, 5, v14')
e(f'v_lshl_add_u32 v{vVR}, v7, 3, v14')
for t in range(1, 4): e(f'v_xor_b32 v{vVR+t}, {t*64}, v{vVR}')
for w_ in (1, 2):
    for t in range(4): e(f'v_add_u32 v{vVR+4*w_+t}, {w_*0x10000}, v{vVR+t}')
e('v_lshrrev_b32 v4, 1, v1')
e('v_lshlrev_b32 v14, 9, v9')
e('v_lshl_add_u32 v14, v11, 7, v14')
e('v_lshrrev_b32 v15, 1, v11')
e('v_xor_b32 v15, v15, v4')
e('v_lshl_add_u32 v14, v15, 6, v14')
e('v_and_b32 v15, 1, v7')
e('v_lshl_add_u32 v14, v15, 5, v14')
e('v_lshl_add_u32 v14, v13, 4, v14')
e('v_lshrrev_b32 v15, 1, v7')
e('v_lshl_add_u32 v14, v15, 3, v14')
e(f'v_lshl_add_u32 v{vWOR}, v4, 14, v14')
e(f'v_xor_b32 v{vWOR+1}, 0x4000, v{vWOR}')
for w_ in (1, 2):
    for o in range(2): e(f'v_add_u32 v{vWOR+2*w_+o}, {w_*0x10000}, v{vWOR+o}')
e('v_and_b32 v14, 63, v0')
e(f'v_lshlrev_b32 v{vL16}, 4, v14')
e(f'v_lshl_add_u32 v{vXW}, v1, 13, v{vL16}')
e(f'v_add_u32 v{vXW}, {XG*32768}, v{vXW}')
e(f'v_xor_b32 v{vXR}, 0x4000, v{vXW}')
e(f'v_lshl_add_u32 v{vSTV}, v1, 11, v{vL16}')
e(f'v_lshlrev_b32 v14, 20, v14')
e(f'v_lshl_add_u32 v14, v1, {FSH+4}, v14')
e(f's_lshl_b32 s3, s{sHKV}, {FSH}')
e(f'v_add_u32 v{vFLV}, s3, v14')
e('v_and_b32 v14, 1, v6')
e('v_lshlrev_b32 v14, 2, v14')
e('v_xor_b32 v14, v14, v3')
e('v_lshl_add_u32 v14, v14, 4, v8')
e('v_mul_u32_u24 v15, 73728, v1')
e(f'v_add_u32 v{vWOV}, v14, v15')
for p in range(1, 4): e(f'v_add_u32 v{vWOV+p}, {p*8192}, v{vWOV}')
e('v_bfe_u32 v14, v0, 2, 1')
e('v_cmp_eq_u32 vcc, v14, v13')
e('v_mov_b32 v14, 0x3f803f80')
e('v_cndmask_b32 v14, 0, v14, vcc')
for i in range(4): e(f'v_accvgpr_write_b32 a{aONE+i}, v14')
e('v_and_b32 v14, 1, v0')
e('v_lshlrev_b32 v14, 4, v14')
e('v_lshlrev_b32 v14, v14, 0x3f80'.replace('v14, 0x3f80', 'v14, v15') if False else 'v_mov_b32 v15, 0x3f80')
e('v_lshlrev_b32 v14, v14, v15')
e('v_bfe_u32 v15, v0, 2, 1')
e('v_xor_b32 v15, v15, v9')
e('v_or_b32 v15, v15, v13')
e('v_lshlrev_b32 v15, 3, v15')
e('v_bfe_u32 v2, v0, 3, 1')
e('v_bfe_u32 v3, v0, 1, 1')
e('v_lshl_add_u32 v2, v2, 1, v3')
e('v_add_u32 v2, v2, v15')
for d in range(4):
    e(f'v_cmp_eq_u32 vcc, {d}, v2')
    e(f'v_cndmask_b32 v3, 0, v14, vcc')
    e(f'v_accvgpr_write_b32 a{aPERM+d}, v3')

def qcvt(u):
    it = []
    for p in range(8):
        r = vO + 16 * u + 2 * p
        if opts['pk']: it.append(f'v_pk_mul_f32 {vr(r, 2)}, {vr(r, 2)}, s[{sSC}:{sSC+1}]')
        else: it += [f'v_mul_f32 v{r}, s{sSC}, v{r}', f'v_mul_f32 v{r+1}, s{sSC}, v{r+1}']
    for p in range(8):
        r = vO + 16 * u + 2 * p
        it.append(f'v_cvt_pk_bf16_f32 v{vQ+8*u+p}, v{r}, v{r+1}')
    return it
def X(*js): return sum((xt(j) for j in js), [])
def KVs(*ns): return sum((kv(n) for n in ns), [])
def RX(*js): return sum((rd_x(j) for j in js), [])
put(X(2, 3, 4)); bar({'X0', 'X1', 'WQ0'}, False)
put(RX(0, 1) + rd_wq(0))
put(X(5, 6, 7)); bar({'WQ1', 'X2'})
e.weave(mf_q(0), [(rd_wq(1) + RX(2), -1, 6)])

def group_body(g):
    e.roles = [g]; set_group(g)
    B1 = opts['b1']
    if g == 'A':
        put(X(8) + KVs(0, 1)); bar({'X3', 'X4', 'X5'})
        e.weave(mf_q(1), [(RX(3, 4, 5), -1, 4)])
        put(KVs(2, 3, 4)); bar({'X6', 'X7', 'X8'})
        put(RX(6, 7, 8))
        put(KVs(*range(5, min(B1, 11)))); bar(set())
        put(KVs(*range(11, B1)))
        put(wq_stage(2) + wq_stage(3) + wq_stage(4))
        qplan = {}
        nxt = B1
        cnt = [int(x) for x in opts['apl'].split(',')]
        wot = [int(x) for x in opts['awo'].split(',')]
        rdt = tuple(int(x) for x in opts['ard'].split(','))
    else:
        put(X(8) + wq_stage(2)); bar({'X3', 'X4', 'X5'})
        e.weave(mf_q(1), [(RX(3, 4, 5), -1, 4)])
        put(wq_stage(3) + wq_stage(4)); bar({'X6', 'X7', 'X8'})
        put(RX(6, 7, 8))
        bar(set())
        LA = opts['la']
        qplan = {15: [0, 1], 16: [2, 3], 17: list(range(4, LA - 1))}
        nxt = LA - 1
        cnt = [1] + [2] * 15
        wot = [int(x) for x in opts['bwo'].split(',')]
        rdt = tuple(int(x) for x in opts['brd'].split(','))
    bar({'WQ2'})
    put(rd_wq(2))
    bar({'WQ3'})
    for s in range(2, 18):
        d = []
        if s + 3 < 18: d += wq_stage(s + 3)
        d += KVs(*qplan.get(s, []))
        if s < 17:
            e.weave(mf_q(s), [(rd_wq(s + 1), -1, 6)] + ([(d, 0, 8)] if d else []))
            tags = set()
            if s + 2 < 18: tags.add(f'WQ{s+2}')
            if s == 16 and g == 'A': tags.add('K0')
            bar(tags)
        elif g == 'A':
            e.weave(mf_q(s, [(ks, u) for u in range(4) for ks in range(2)]),
                    [(rd_k(0), -1, 3), (qcvt(0), 4, 6), (qcvt(1), 6, 8)])
            mark()
            qk0 = mf_qk(0)
            e.weave(qk0[:4], [(qcvt(2), 0, 2), (qcvt(3), 2, 4)])
            e.weave(qk0[4:], [])
        else:
            e.weave(mf_q(s, [(ks, u) for u in range(4) for ks in range(2)]),
                    [(d, 0, 4), (qcvt(0), 4, 6), (qcvt(1), 6, 8)])
            put(qcvt(2) + qcvt(3))
            bar({'K0'})
            put(rd_k(0))
            put(mf_qk(0))
    bar({'K1', 'V0'})
    WORD = {rdt[0]: rd_wo(0)[:16], rdt[0]+1: rd_wo(0)[16:], rdt[1]: rd_wo(1)[:16], rdt[1]+1: rd_wo(1)[16:]}
    assert wot[1] < rdt[0] and wot[3] < rdt[1] and wot[4] >= rdt[0] + 2 and wot[6] >= rdt[1] + 2 and wot[8] >= 12 and wot[10] >= 14
    if g == 'A': assert wot[2] >= 7
    cnt += [2] * 16
    for t in range(16):
        d = []
        for _ in range(cnt[t]):
            if nxt < 32:
                assert nxt < 12 or (nxt - 12 + 1) // 2 <= t, (g, nxt, t)
                assert (nxt - 2 + 1) // 2 > t, (g, nxt, t)
                d += kv(nxt); nxt += 1
        for hi, tt_ in enumerate(wot):
            if tt_ == t: d += wo_half(hi // 2, hi % 2)
        if t == 7:
            d += ['v_mov_b32 v1, 0', (f'buffer_load_dwordx2 {vr(vE, 2)}, v1, {sr(SDBG)}, 0 offen sc1', 'EP')]
        if t == 0:
            put(d); put(rd_k(1)); put(sm_max(0))
            e(f'v_mov_b32 v{vMX+1}, v{vMX}')
            e(f'v_permlane32_swap_b32 v{vMX}, v{vMX+1}')
            e(f'v_max_f32 v{vMX}, v{vMX}, v{vMX+1}')
            for r in range(16): e(f'v_sub_f32 v{vNM+r}, 0, v{vMX}')
            sub = [f'v_sub_f32 v{vS+r}, v{vS+r}, v{vMX}' for r in range(16)]
            e('s_waitcnt lgkmcnt(0)')
            e.weave(mf_qk(1), [(rd_v(0), 0, 6), (sub + sm_exp(0), 0, 8)])
        elif t < 15:
            sm = sm_max(t) + sm_check(t) + sm_exp(t)
            streams = [(rd_k(t + 1) + WORD.get(t, []), 0, 8), (rd_v(t), 10, 16), (sm, 1, 18)]
            if d: streams.append((d, -1, 16 if len(d) > 8 else 9))
            streams.append((['s_waitcnt lgkmcnt(0)'], 9, 10))
            e.weave(mf_pv(t - 1) + mf_qk(t + 1), streams)
        else:
            sm = sm_max(t) + sm_check(t) + sm_exp(t)
            e.weave(mf_pv(14), [(sm, 1, 10), (d, -1, 10)])
        if t < 14:
            tags = {f'K{t+2}', f'V{t+1}'}
            if t == rdt[0] - 1: tags.add('WO0')
            if t == rdt[1] - 1: tags.add('WO1')
            bar(tags)
        elif t == 15: bar({'V15', 'EP'})
    assert nxt == 32

e(f's_and_b32 s3, s{sB}, {opts["gmask"]}')
e('s_cbranch_scc0 L_grpA')
S0 = e.S.clone(); nb0 = nbar[0]
group_body('B')
e('s_branch L_common')
SB = e.S; nb1 = nbar[0]; nbar[0] = nb0
e.label('L_grpA')
e.S = S0
group_body('A')
assert nbar[0] == nb1
e.label('L_common')
e.S = Emit.merge_states(e.S, SB)
e.roles = ['A', 'B']
put(rd_v(15))
e(f'v_or_b32 v1, v{vE}, v{vE+1}')
e('v_cmp_eq_u32 vcc, 0, v1')
e('s_cbranch_vccnz L_epoch_spin')
e.label('L_epoch_ok')
P15 = vP + 8
seq = [mf_l(15, 0), mf_l(15, 1)]
for tt in range(4):
    for a in range(2):
        seq.append(f'{MF} {vr(vO+16*tt, 16)}, {ar(aV + (a*4+tt)*4, 4)}, {vr(P15+4*a, 4)}, {vr(vO+16*tt, 16)}')
def norm(tt):
    it = []
    for a in range(2):
        for p in range(4 * a, 4 * a + 4):
            r = vO + 16 * tt + 2 * p
            if opts['pk']: it.append(f'v_pk_mul_f32 {vr(r, 2)}, {vr(r, 2)}, {vr(vINV, 2)} op_sel_hi:[1,0]')
            else: it += [f'v_mul_f32 v{r}, v{vINV}, v{r}', f'v_mul_f32 v{r+1}, v{vINV}, v{r+1}']
        for p in range(4 * a, 4 * a + 4):
            r = vO + 16 * tt + 2 * p
            it.append(f'v_cvt_pk_bf16_f32 v{vQ+8*tt+p}, v{r}, v{r+1}')
        f = 2 * tt + a
        it.append(f'ds_write_b128 v{vXW}, {vr(vQ+4*f, 4)} offset:{f*1024}')
    return it
mo0 = mf_o(0)
e.weave(seq + mo0[:6], [(['s_waitcnt lgkmcnt(0)', 's_barrier', f'v_rcp_f32 v{vINV}, v{vL}'], 4, 5),
                        (norm(0), 6, 9), (norm(1), 9, 11), (norm(2), 11, 13), (norm(3), 13, 16)])
bar(set())
assert FSH == 3
sU, sCNT, sTODO, sRDY, sI, sOFF, sUA, sLB, sPO, sOO = 20, 21, 22, 23, 24, 25, 26, 27, 28, 29
def unit_setup():
    return [
        f's_lshl_b32 s{sUA}, s{sU}, 10',
        f's_lshr_b32 s{sPO}, s{sU}, 1', f's_lshl_b32 s{sPO}, s{sPO}, 7',
        f's_lshr_b32 s{sOO}, s{sU}, 3', f's_add_u32 s{sOO}, s{sOO}, s{sROT}',
        lambda: (e(f's_sub_u32 s{sI}, s{sOO}, 9'), e(f's_cselect_b32 s{sOO}, s{sOO}, s{sI}')),
        f's_lshl_b32 s{sOO}, s{sOO}, 7',
        f's_bfe_u32 s{sI}, s{sU}, 0x10001', f's_mul_i32 s{sI}, s{sI}, 36864', f's_add_u32 s{sOO}, s{sOO}, s{sI}',
        f's_bfe_u32 s{sI}, s{sU}, 0x10002', f's_lshl_b32 s{sI}, s{sI}, 6', f's_add_u32 s{sOO}, s{sOO}, s{sI}',
        f's_and_b32 s{sI}, s{sU}, 1', f's_lshl_b32 s{sI}, s{sI}, 4', f's_add_u32 s{sOO}, s{sOO}, s{sI}',
        f's_mov_b32 s{sTODO}, 0xffff',
    ]
red_setup = [
    f's_lshl_b32 s{sU}, s{sW}, 4', f's_add_u32 s{sU}, s{sU}, s{sHKV}',
    'v_and_b32 v1, 15, v0', 'v_lshlrev_b32 v1, 3, v1',
    f's_lshl_b32 s{sLB}, s{sW}, 14', f's_add_u32 s{sLB}, s{sLB}, {RG*32768}',
    f'v_add_u32 v3, s{sLB}, v{vL16}',
    'v_and_b32 v2, 31, v0', 'v_mul_u32_u24 v2, 1152, v2', 'v_bfe_u32 v6, v0, 5, 1', 'v_lshl_add_u32 v2, v6, 5, v2',
    f's_mov_b32 s{sCNT}, {opts["spin"]}',
] + unit_setup()
OPLAN = {1: [(6, 0)], 2: [(6, 1)], 3: [(7, 0)], 4: [(7, 1), (8, 0)], 5: [(8, 1)]}
if opts['opl']: OPLAN = {1: [(6, 0), (6, 1)], 2: [(7, 0), (7, 1)], 3: [(8, 0), (8, 1)]}
LAG = opts['lag']
pub = 0
for j in range(9):
    streams = []
    if j == 0:
        e.weave(mo0[6:], [([f'ds_read_b128 {ar(aOO+4*f, 4)}, v{vXR} offset:{f*1024}' for f in range(8)], -1, 1), (red_setup, 1, 10)])
        bar({'WO2'})
        continue
    if j in OPLAN and not opts['nowo']: streams.append((sum((wo_half(*h) for h in OPLAN[j]), []), -1 if opts['opl'] else 0, 10 if opts['opl'] else 15))
    if j < 8: streams.append((rd_wo(j + 1), 0, 14))
    ep = []
    if j == 8: ep.append((f'buffer_load_dwordx2 v[4:5], v1, {sr(SFL)}, s{sPO} offen sc1', 'POLL'))
    if j > 0: ep += ep_o(j - 1)
    if j - 1 - LAG >= 0: ep += publish(pub); pub += 1
    if j == 8 and opts['pollpos']: ep = ep[1:] + ep[:1]
    if ep: streams.append((ep, 8 if (opts['opl'] and j in OPLAN) else 3, 16 if (opts['opl'] and j in OPLAN) else 14))
    e.weave(mf_o(j), streams)
    if j < 7: bar({f'WO{j+2}'})
put(ep_o(8))
mark()
e.wait_vm({'POLL'})
e(f'v_cmp_ne_u64 vcc, v[4:5], {vr(vE, 2)}')
e('s_cbranch_vccnz L_slow')
import copy
vm0 = copy.deepcopy(e.vm); S1 = e.S.clone(); pub0 = pub; nb0 = nbar[0]
e(f's_mov_b32 m0, s{sLB}')
for h in range(16):
    if h and h % 4 == 0: e(f's_add_u32 m0, s{sLB}, {h*1024}')
    off = f' offset:{(h%4)*1024}' if h % 4 else ''
    e(f'buffer_load_dwordx4 v{vL16}, {sr(SPR)}, s{sUA} offen{off} {opts["ld"]} lds', 'RD')
    if h < 15: e(f's_add_u32 s{sUA}, s{sUA}, {73728 - 1024 if h % 4 != 3 else 73728 + 3072}')
while pub < 9: put(publish(pub)); pub += 1
mark(); mark()
e.wait_vm({'RD'})
e('s_branch L_unit')
e.label('L_slow')
e.vm = vm0; e.S = S1; pub = pub0; nbar[0] = nb0
while pub < 9: put(publish(pub)); pub += 1
mark()
e.label('L_poll')
e.S = State()
if opts['sleep']: e(f's_sleep {opts["sleep"]}')
e(f'buffer_load_dwordx2 v[4:5], v1, {sr(SFL)}, s{sPO} offen sc1')
e(f's_sub_u32 s{sCNT}, s{sCNT}, 1')
e('s_cbranch_scc1 L_go')
e('s_waitcnt vmcnt(0)')
e(f'v_cmp_eq_u64 vcc, v[4:5], {vr(vE, 2)}')
e('s_nop 0')
e(f's_and_b32 s{sRDY}, vcc_lo, s{sTODO}')
e('s_cbranch_scc0 L_poll')
e(f's_andn2_b32 s{sTODO}, s{sTODO}, s{sRDY}')
e.label('L_inner')
e(f's_ff1_i32_b32 s{sI}, s{sRDY}')
e(f's_bitset0_b32 s{sRDY}, s{sI}')
e(f's_mul_i32 s{sOFF}, s{sI}, 73728')
e(f's_lshl_b32 s{sI}, s{sI}, 10')
e(f's_add_u32 m0, s{sI}, s{sLB}')
e(f's_add_u32 s{sOFF}, s{sOFF}, s{sUA}')
e(f'buffer_load_dwordx4 v{vL16}, {sr(SPR)}, s{sOFF} offen {opts["ld"]} lds')
e(f's_cmp_lg_u32 s{sRDY}, 0')
e('s_cbranch_scc1 L_inner')
e(f's_cmp_lg_u32 s{sTODO}, 0')
e('s_cbranch_scc1 L_poll')
e.label('L_go')
mark()
e('s_waitcnt vmcnt(0)')
e.label('L_unit')
e.S = State()
mark()
for h in range(16): e(f'ds_read_b128 {ar(4*h, 4)}, v3 offset:{h*1024}')
for h in range(16):
    e(f'{MF} {vr(vS, 16)}, {ar(aPERM, 4)}, {ar(4*h, 4)}, ' + ('0' if h == 0 else vr(vS, 16)))
for p in range(4): e(f'v_cvt_pk_bf16_f32 v{vP+p}, v{vS+2*p}, v{vS+2*p+1}')
e(f'buffer_store_dwordx4 {vr(vP, 4)}, v2, {sr(SOUT)}, s{sOO} offen {opts["out"]}')
e(f's_and_b32 s{sI}, s{sU}, 0x71')
e('s_cbranch_scc1 L_done')
e(f's_lshr_b32 s{sU}, s{sU}, 1')
e(f's_add_u32 s{sU}, s{sU}, 64')
put(unit_setup())
e('s_branch L_poll')
e.label('L_done')
if opts['spinx'] >= 0:
    e('s_waitcnt vmcnt(0)')
    mark()
    e('s_memrealtime s[96:97]')
    e('s_waitcnt lgkmcnt(0)')
    e('s_sub_u32 s98, s98, s100')
    e('s_lshl_b32 s98, s98, 2')
    e('s_add_u32 s98, s98, s96')
    e.label('L_spinx')
    e('s_memrealtime s[96:97]')
    e('s_waitcnt lgkmcnt(0)')
    e('s_sub_u32 s97, s96, s98')
    e('s_cmp_lt_i32 s97, 0')
    e('s_cbranch_scc1 L_spinx')
if PROF:
    mark()
    e('s_waitcnt vmcnt(0)')
    mark(); mark()
    e(f'v_writelane_b32 v{vPA}, s96, 63')
    mk_srd(SWS, 18, None, 0x10000000)
    e('s_lshl_b32 s62, s2, 11')
    e('s_add_u32 s62, s62, 0x9000000')
    e('v_and_b32 v2, 63, v0'); e('v_lshrrev_b32 v3, 6, v0'); e('v_lshlrev_b32 v2, 2, v2'); e('v_lshl_add_u32 v2, v3, 9, v2')
    e(f'buffer_store_dword v{vPA}, v2, {sr(SWS)}, s62 offen')
    e(f'buffer_store_dword v{vPB}, v2, {sr(SWS)}, s62 offen offset:256')
    print('bars', nbar[0], file=sys.stderr)
e.label('L_end')
e('s_endpgm')
e.label('L_epoch_spin')
e.S = State()
e(f's_mov_b32 s3, {opts["spin"]}')
e('v_mov_b32 v1, 0')
e.label('L_epoch_loop')
e(f'buffer_load_dwordx2 {vr(vE, 2)}, v1, {sr(SDBG)}, 0 offen sc1')
e('s_sub_u32 s3, s3, 1')
e('s_cbranch_scc1 L_epoch_ok')
e('s_waitcnt vmcnt(0)')
e(f'v_or_b32 v2, v{vE}, v{vE+1}')
e('v_cmp_eq_u32 vcc, 0, v2')
e('s_cbranch_vccnz L_epoch_loop')
e('s_branch L_epoch_ok')
for t in stubs:
    e.label(f'L_stub{t}')
    e.raw(f'    s_call_b64 s[{sRET}:{sRET+1}], L_rescale')
    e.raw(f'    s_branch L_back{t}')
e.label('L_rescale')
e.S = State()
e('s_nop 15'); e('s_nop 15')
e(f'v_mov_b32 v{vMX+1}, v{vMX}')
e(f'v_permlane32_swap_b32 v{vMX}, v{vMX+1}')
e(f'v_max3_f32 v{vMX}, v{vMX}, v{vMX+1}, 0')
e(f'v_ceil_f32 v{vMX}, v{vMX}')
e(f'v_exp_f32 v{vMX+1}, -v{vMX}')
for r in range(48): e(f'v_sub_f32 v{vS+r}, v{vS+r}, v{vMX}')
for r in range(68): e(f'v_mul_f32 v{vO+r}, v{vO+r}, v{vMX+1}')
for r in range(16):
    e(f'v_lshlrev_b32 v2, 16, v{vP+r}')
    e(f'v_and_b32 v3, 0xffff0000, v{vP+r}')
    e(f'v_mul_f32 v2, v2, v{vMX+1}')
    e(f'v_mul_f32 v3, v3, v{vMX+1}')
    e(f'v_cvt_pk_bf16_f32 v{vP+r}, v2, v3')
e('s_nop 3')
e(f's_setpc_b64 s[{sRET}:{sRET+1}]')
e.label('L_textend')

hdr = f"""; GQA block (Q-proj + cached attention + O-proj + cross-workgroup reduction) for gfx950
; @launch grid=(256,1,1) block=(256,1,1) lds=163840
.amdgcn_target "amdgcn-amd-amdhsa--gfx950"
.text
"""
kd = f""".section .rodata,"a"
.p2align 6
.amdhsa_kernel {K}
  .amdhsa_next_free_vgpr 512
  .amdhsa_next_free_sgpr 102
  .amdhsa_accum_offset 256
  .amdhsa_group_segment_fixed_size 0
  .amdhsa_kernarg_size 64
  .amdhsa_user_sgpr_count 2
  .amdhsa_user_sgpr_kernarg_segment_ptr 1
  .amdhsa_system_sgpr_workgroup_id_x 1
.end_amdhsa_kernel
"""
open(sys.argv[1], 'w').write(hdr + e.text() + kd)
print(e.count, 'nops', e.nops, file=sys.stderr)
```

```python
import re, copy

def _regs(tok):
    tok = tok.strip()
    tok = tok.lstrip('-')
    if tok.startswith('abs(') or tok.startswith('|'):
        tok = tok.strip('|').replace('abs(', '').rstrip(')')
    m = re.fullmatch(r'([vas])(\d+)', tok)
    if m: return [(m.group(1), int(m.group(2)))]
    m = re.fullmatch(r'([vas])\[(\d+):(\d+)\]', tok)
    if m: return [(m.group(1), i) for i in range(int(m.group(2)), int(m.group(3)) + 1)]
    if tok in ('vcc', 'vcc_lo', 'vcc_hi'): return [('s', 'vcc')]
    if tok == 'm0': return [('s', 'm0')]
    if tok == 'exec': return [('s', 'exec')]
    return []

TRANS = ('v_exp_f32', 'v_log_f32', 'v_rcp_f32', 'v_rsq_f32', 'v_sqrt_f32')

class Ins:
    __slots__ = ('text', 'op', 'kind', 'defs', 'uses', 'a', 'b', 'c', 'ws')
    def __init__(s, text):
        s.text = text
        t = text.split(';')[0].strip()
        t = re.sub(r'hwreg\([^)]*\)', 'hwreg', t)
        t = re.sub(r'\s+(op_sel|op_sel_hi|neg_lo|neg_hi):\[[^\]]*\]', '', t)
        parts = t.split(None, 1)
        s.op = op = parts[0]
        rest = parts[1] if len(parts) > 1 else ''
        ops = [o.strip() for o in rest.split(',')] if rest else []
        mods = []
        if ops:
            last = ops[-1].split()
            ops[-1] = last[0]
            mods = last[1:]
        s.defs = []; s.uses = []; s.a = s.b = s.c = []; s.ws = 1
        R = lambda i: _regs(ops[i]) if i < len(ops) else []
        if op.startswith('v_mfma'):
            s.kind = 'mfma'; s.defs = R(0); s.a = R(1); s.b = R(2); s.c = R(3); s.uses = s.a + s.b + s.c
        elif op.startswith('ds_read'):
            s.kind = 'ds_read'; s.defs = R(0); s.uses = R(1)
        elif op.startswith('ds_write'):
            s.kind = 'ds_write'; s.uses = R(0) + R(1)
        elif op.startswith('buffer_load'):
            if 'lds' in mods:
                s.kind = 'dma'; s.uses = R(0) + R(1) + R(2) + [('s', 'm0')]
            else:
                s.kind = 'vload'; s.defs = R(0); s.uses = R(1) + R(2) + R(3)
        elif op.startswith('buffer_store') or op.startswith('buffer_atomic'):
            s.kind = 'vstore'; s.uses = R(0) + R(1) + R(2) + R(3); s.a = R(0)
        elif op.startswith('buffer_'):
            s.kind = 'vmisc'
        elif op.startswith('v_permlane'):
            s.kind = 'permlane'; s.defs = R(0) + R(1); s.uses = R(0) + R(1)
        elif op.startswith('v_writelane'):
            s.kind = 'valu'; s.defs = R(0); s.uses = R(0) + R(1)
        elif op.startswith('v_readfirstlane') or op.startswith('v_readlane'):
            s.kind = 'readlane'; s.defs = R(0); s.uses = R(1)
        elif op.startswith('v_'):
            s.kind = 'trans' if op.replace('_e32', '').replace('_e64', '') in TRANS else 'valu'
            s.defs = R(0); s.uses = sum((R(i) for i in range(1, len(ops))), [])
            if op.startswith('v_fmac') or op.startswith('v_dot2c'): s.uses += R(0)
            if op.startswith('v_cndmask') and len(ops) == 3: s.uses += [('s', 'vcc')]
        elif op == 's_nop':
            s.kind = 'nop'; s.ws = int(ops[0], 0) + 1
        elif op == 's_waitcnt': s.kind = 'wait'
        elif op == 's_barrier': s.kind = 'barrier'
        elif op.startswith('s_cbranch') or op in ('s_branch', 's_endpgm', 's_setpc_b64', 's_sleep', 's_setprio'):
            s.kind = 'branch'
        elif op.startswith('s_cmp') or op.startswith('s_bitcmp'):
            s.kind = 'salu'; s.uses = R(0) + R(1)
        elif op.startswith('s_load') or op.startswith('s_mem'):
            s.kind = 'smem'; s.defs = R(0); s.uses = R(1)
        elif op.startswith('s_'):
            s.kind = 'salu'; s.defs = R(0); s.uses = sum((R(i) for i in range(1, len(ops))), [])
        else:
            raise ValueError('unknown op ' + text)

VALU_KINDS = ('valu', 'trans', 'permlane', 'readlane')

class State:
    def __init__(s):
        s.pos = 0
        s.wr = {}
        s.mfma_c = {}
        s.st = {}
        s.lds = []
    def clone(s): return copy.deepcopy(s)

class Emit:
    def __init__(s):
        s.out = []
        s.S = State()
        s.vm = {'A': [], 'B': []}
        s.roles = ['A', 'B']
        s.count = {}
        s.nops = 0
    def raw(s, text): s.out.append(text)
    def label(s, name): s.out.append(name + ':')
    def comment(s, t): s.out.append('    ; ' + t)
    def _put(s, ins):
        s.out.append('    ' + ins.text)
        s.count[ins.kind] = s.count.get(ins.kind, 0) + 1
        if ins.kind == 'wait':
            m = re.search(r'lgkmcnt\((\d+)\)', ins.text)
            if m:
                n = int(m.group(1))
                if n < len(s.S.lds): s.S.lds = s.S.lds[len(s.S.lds) - n:] if n else []
        S = s.S
        p = S.pos
        if ins.kind in VALU_KINDS or ins.kind in ('mfma', 'salu'):
            for r in ins.defs: S.wr[r] = (p, ins.kind, tuple(ins.defs) if ins.kind == 'mfma' else None)
        elif ins.kind in ('ds_read', 'vload', 'smem'):
            for r in ins.defs: S.wr.pop(r, None)
        if ins.kind == 'mfma':
            for r in ins.c: S.mfma_c[r] = p
        if ins.kind == 'vstore' and len(ins.a) >= 3:
            for r in ins.a: S.st[r] = p
        if ins.kind == 'ds_read': S.lds.append(set(ins.defs))
        if ins.kind == 'ds_write': S.lds.append(set())
        S.pos += ins.ws
    def _need(s, ins):
        S = s.S; need = 0
        def req(pp, n):
            nonlocal need
            d = S.pos - pp - 1
            if d < n: need = max(need, n - d)
        k = ins.kind
        for r in ins.uses:
            w = S.wr.get(r)
            if not w: continue
            pp, wk, ex = w
            if wk == 'mfma':
                if k == 'mfma':
                    if r in ins.a or r in ins.b: req(pp, 12)
                    elif tuple(ins.c) != ex: req(pp, 10)
                else: req(pp, 12)
            elif wk in VALU_KINDS:
                if r[0] in 'va':
                    if k == 'mfma': req(pp, 2)
                    if k == 'permlane': req(pp, 2)
                    if k == 'readlane': req(pp, 1)
                    if wk == 'trans' and k in ('valu', 'permlane', 'readlane', 'mfma', 'vstore', 'ds_write'): req(pp, 1)
                else:
                    if k in ('dma', 'vload', 'vstore'): req(pp, 5)
                    if k in VALU_KINDS: req(pp, 2)
                    if k in ('salu', 'smem'): req(pp, 1)
            elif wk == 'salu':
                if r == ('s', 'm0') and k == 'dma': req(pp, 1)
        for r in ins.defs:
            w = S.wr.get(r)
            if w and w[1] == 'mfma':
                if k == 'mfma':
                    if tuple(ins.c) != w[2] or tuple(ins.defs) != w[2]: req(w[0], 12)
                else: req(w[0], 12)
            if k in VALU_KINDS or k in ('ds_read', 'vload'):
                if r in S.mfma_c: req(S.mfma_c[r], 7)
            if r in S.st: req(S.st[r], 2)
        return need
    def __call__(s, text, tag=None):
        ins = Ins(text)
        touched = set(ins.uses) | set(ins.defs)
        idx = -1
        for i, d in enumerate(s.S.lds):
            if d & touched: idx = i
        if idx >= 0:
            n = len(s.S.lds) - 1 - idx
            s._put(Ins(f's_waitcnt lgkmcnt({min(n, 14)})'))
        n = s._need(ins)
        while n > 0:
            k = min(n, 16)
            s._put(Ins(f's_nop {k - 1}')); s.nops += 1
            n -= k
        if ins.kind in ('dma', 'vload', 'vstore'):
            for r in s.roles: s.vm[r].append(tag)
        s._put(ins)
    def need_regs(s, tok):
        touched = set(_regs(tok)); idx = -1
        for i, d in enumerate(s.S.lds):
            if d & touched: idx = i
        if idx >= 0:
            s._put(Ins(f's_waitcnt lgkmcnt({min(len(s.S.lds) - 1 - idx, 14)})'))
    def wait_vm(s, tags, lgkm0=False):
        N = None
        for r in s.roles:
            q = s.vm[r]
            last = max((i for i, t in enumerate(q) if t in tags), default=None)
            if last is None: continue
            n = len(q) - 1 - last
            N = n if N is None else min(N, n)
        parts = []
        if N is not None: parts.append(f'vmcnt({min(N, 63)})')
        if lgkm0 and s.S.lds: parts.append('lgkmcnt(0)')
        if parts: s('s_waitcnt ' + ' '.join(parts))
    def weave(s, mf, streams):
        n = len(mf)
        slots = {g: [] for g in range(-1, n)}
        for items, g0, g1 in streams:
            m = len(items); span = g1 - g0
            for i, it in enumerate(items):
                g = g0 + (i * span) // m
                slots[g].append(it)
        def put(it):
            if callable(it): it()
            elif isinstance(it, tuple): s(it[0], it[1])
            else: s(it)
        for it in slots[-1]: put(it)
        for g in range(n):
            s(mf[g])
            for it in slots[g]: put(it)
    @staticmethod
    def merge_states(a, b):
        assert [sorted(x) for x in a.lds] == [sorted(x) for x in b.lds], "lds queues differ at join"
        r = State(); r.pos = 1000000; r.lds = copy.deepcopy(a.lds)
        for name in ('wr', 'mfma_c', 'st'):
            da, db, dr = getattr(a, name), getattr(b, name), getattr(r, name)
            for src, st in ((da, a), (db, b)):
                for k, v in src.items():
                    age = st.pos - (v[0] if name == 'wr' else v)
                    if age > 40: continue
                    np_ = r.pos - age
                    if name == 'wr':
                        old = dr.get(k)
                        if old is not None and old[1] != v[1]:
                            raise AssertionError(f"writer kinds differ at join for {k}")
                        if old is None or old[0] < np_: dr[k] = (np_, v[1], v[2])
                    else:
                        if dr.get(k, -1) < np_: dr[k] = np_
        return r
    def text(s): return '\n'.join(s.out) + '\n'


def item_cost(it):
    if callable(it): return getattr(it, 'cost', 9)
    t = it[0] if isinstance(it, tuple) else it
    op = t.split()[0]
    if op.startswith('v_exp') or op.startswith('v_rcp'): return 8
    if op.startswith('ds_read_b128'): return 6
    if op.startswith('ds_read'): return 5
    if op.startswith('ds_write'): return 14
    if op.startswith('buffer_'): return 10
    if op.startswith('s_'): return 4
    if op in ('v_mul_f32', 'v_sub_f32', 'v_add_f32', 'v_max_f32', 'v_mov_b32'): return 4
    return 5

def weave2(s, mf, streams, slack=0):
    n = len(mf)
    dur = [(16 if '16x16x32' in m else 32) - 8 for m in mf]
    st = [dict(items=list(it), g0=g0, g1=g1, i=0) for it, g0, g1 in streams if it]
    def put(it):
        if callable(it): it()
        elif isinstance(it, tuple): s(it[0], it[1])
        else: s(it)
    for x in st:
        while x['g1'] <= 0 and x['i'] < len(x['items']):
            put(x['items'][x['i']]); x['i'] += 1
    total = sum(item_cost(it) for x in st for it in x['items'][x['i']:])
    scale = max(1.0, total / max(1, sum(dur)))
    carry = 0.0
    for g in range(n):
        s(mf[g])
        budget = dur[g] * scale + carry + slack
        while True:
            cand = []
            for x in st:
                if x['i'] >= len(x['items']) or g < x['g0']: continue
                rem = sum(item_cost(it) for it in x['items'][x['i']:])
                room = sum(dur[g + 1:min(x['g1'], n)])
                cand.append((1e9 if room <= 0 else rem / room, x))
            cand.sort(key=lambda c: -c[0])
            pick = None
            for u, x in cand:
                if u >= 1e9 or item_cost(x['items'][x['i']]) <= budget + 2:
                    pick = x; break
            if pick is None: break
            budget -= item_cost(pick['items'][pick['i']])
            put(pick['items'][pick['i']]); pick['i'] += 1
        carry = min(budget - slack, 0) if budget < slack else 0
    for x in st: assert x['i'] == len(x['items']), "unplaced items"
Emit.weave2 = weave2
```

```python
import sys, math, struct
from emit import Emit, State

NAME = "standalone__gqa_block_cached__near_ridge"
opts = dict(kv="nt", wq="", x="", wo="", st="sc1", ld="sc1", T=8.0, prof=0, cpf=1, lag=9,
            kvplan="a", spin=200000, spinx=-1, fsh=3, sleep=0, allrdy=0, gmask=1, b1=14, la=9, one=0, pm='', pk=0, nost=0, nowo=0, nopub=0, apl='0,1,1,1,1,2,2,2,2,2,2,2', bwo='1,3,5,7,12,12,13,13,14,14,15,15', awo='0,0,4,4,12,12,13,13,14,14,15,15', brd='7,10', ard='2,8', opl=1, pollpos=0, out='', krot=0, qrot=0, sent=0, w2=1, slack=0, x_=0, half=0, kv0=0, thr=0, nofast=0, roto=1, rtrace=0, r0=2, pg=13, one_flag=1, fls=7, two=0, pp='sc1', fp='sc1', full=0, tlb=-1, tsh=16)
for a in sys.argv[2:]:
    k, v = a.split('=')
    opts[k] = type(opts[k])(v) if not isinstance(opts[k], str) else v.replace('+', ' ')
PROF = opts['prof']
TM = 's_memrealtime' if PROF == 2 else 's_memtime'
PM = set(int(x) for x in opts['pm'].split(',')) if opts['pm'] else None
def f32(x): return '0x%08x' % struct.unpack('<I', struct.pack('<f', x))[0]

e = Emit(); e.roles = ['A', 'B']
SX, SK, SV, SWQ, SWO, SWS = 20, 24, 28, 32, 36, 40
SFL, SPR, SOUT, SDBG = 80, 84, 88, 92
sW, sHKV, sB, sROT = 44, 45, 46, 47
sT0, sT1, sT2 = 48, 49, 52
sRET = 50
sWQ, sWO, sST = 53, 54, 55
sM0W, sM0T = 56, 57
sSC = 58
sXO, sFL, sM0Q, sJOB = 60, 61, 62, 63
sTILE = 64
vKR = 16; vVR = 40
vKa, vKb, vVc = 52, 53, 54
vWOR = 55; vXW, vXR = 61, 62; vWOV = 63; vSTV = 67
vMX = 68; vINV = 70
vPA, vPB = 72, 73
vE = 74
vFLV = 76
vL16 = 77
vS = 80; vNM = 112; vP = 128; vO = 144; vL = 208; vQ = 224
vXRD = 80; vWQR = 88; vXa, vXb = 96, 97; vWQV = 100
aX = 0; aWQ = 144; aONE = 240; aPERM = 244
aK = 0; aV = 32; aWO = 64; aOO = 192
def aVB(t): return aV if t % 2 else aOO
FL_OFF = 256 * 73728
FSH = opts['fsh']; FG = 16 << FSH

def vr(b, n): return f'v[{b}:{b+n-1}]'
def ar(b, n): return f'a[{b}:{b+n-1}]'
def sr(b, n=4): return f's[{b}:{b+n-1}]'
MF = 'v_mfma_f32_32x32x16_bf16'
def win(off): return off >> 16, off & 0xffff

nbar = [0]
def mark():
    if not PROF or (PM is not None and nbar[0] not in PM):
        if nbar[0] == opts['spinx']: e('s_memrealtime s[98:99]')
        nbar[0] += 1
        return
    if PM is not None:
        i = nbar[0]; nbar[0] += 1
        e(f'{TM} s[98:99]'); e('s_waitcnt lgkmcnt(0)'); e(f'v_writelane_b32 v{vPB}, s98, {i}')
        return
    i = nbar[0]; nbar[0] += 1
    e(f'{TM} s[98:99]'); e('s_waitcnt lgkmcnt(0)')
    e(f'v_writelane_b32 v{vPA}, s98, {i}')
    if i > 0: e(f'v_writelane_b32 v{vPB}, s100, {i-1}')
    e(f'{TM} s[100:101]')
def bar(tags, lgkm0=True):
    if not PROF or PM is not None:
        e.wait_vm(tags, lgkm0=lgkm0); e('s_barrier')
        mark()
        return
    i = nbar[0]; nbar[0] += 1
    e(f'{TM} s[98:99]'); e('s_waitcnt lgkmcnt(0)')
    e(f'v_writelane_b32 v{vPA}, s98, {i}')
    if i > 0: e(f'v_writelane_b32 v{vPB}, s100, {i-1}')
    e.wait_vm(tags, lgkm0=lgkm0); e('s_barrier')
    e(f'{TM} s[100:101]')

def put(items):
    for it in items:
        if callable(it): it()
        elif isinstance(it, tuple): e(it[0], it[1])
        else: e(it)
def wrap_adv(r, step, lim, tmp):
    def f():
        e(f's_sub_u32 s{tmp}, s{r}, {lim}')
        e(f's_cselect_b32 s{r}, s{r}, s{tmp}')
    return [f's_add_u32 s{r}, s{r}, {step}', f]
def dma(v, srd, so, off, pol, tag):
    o = f' offset:{off}' if off else ''
    p = f' {pol}' if pol else ''
    return (f'buffer_load_dwordx4 v{v}, {sr(srd)}, {so} offen{o}{p} lds', tag)

KVORD = ['K0'] + sum(([f'K{t+1}', f'V{t}'] for t in range(15)), []) + ['V15']
KVSLOT = {}
def set_group(g):
    for n, nm in enumerate(KVORD):
        KVSLOT[nm] = n if (g == 'A' and n in (12, 13)) else (n + 4) % 12
XSLOT = [9, 10, 11, 0, 1, 2, 3, 12, 13]
def kv(n):
    nm = KVORD[n]; t = int(nm[1:]); isk = nm[0] == 'K'
    srd = SK if isk else SV
    return [f's_add_u32 m0, s{sM0W}, {KVSLOT[nm]*8192}',
            dma(vKa if isk else vVc, srd, f's{sTILE+t}', 0, opts['kv'], nm),
            dma(vKb if isk else vVc, srd, f's{sTILE+t}', 1024, opts['kv'], nm)]
def xt(j):
    return [f's_add_u32 m0, s{sM0W}, {XSLOT[j]*8192}',
            dma(vXa, SX, f's{sXO}', 0, opts['x'], f'X{j}'),
            dma(vXb, SX, f's{sXO}', 1024, opts['x'], f'X{j}')] + wrap_adv(sXO, 128, 1152, sT1)
def wq_stage(s):
    it = [f's_add_u32 m0, s{sM0Q}, {(14 + 2*(s%3))*8192}']
    it += [dma(vWQV + p, SWQ, f's{sWQ}', p * 1024, opts['wq'], f'WQ{s}') for p in range(4)]
    return it + wrap_adv(sWQ, 2 * 131072, 36 * 131072, sT1)
WOG = [4, 4, 3, 4, 0, 1, 2, 3, 4]
XG = 2
RG = 1
def wo_half(j, half):
    it = [f's_add_u32 m0, s{sM0T}, {4*WOG[j]*8192 + half*4096}']
    if half: it.append(f's_add_u32 s{sT0}, s{sWO}, 36864')
    it += [dma(vWOV + p, SWO, f's{sT0 if half else sWO}', p * 1024, opts['wo'], f'WO{j}') for p in range(4)]
    return it + (wrap_adv(sWO, 128, 1152, sT1) if half else [])
def wo_cb(j): return wo_half(j, 0) + wo_half(j, 1)

def mk_srd(d, ptr, addlo, nbytes):
    if addlo is None:
        e(f's_mov_b32 s{d}, s{ptr}'); e(f's_and_b32 s{d+1}, s{ptr+1}, 0xffff')
    else:
        e(f's_add_u32 s{d}, s{ptr}, {addlo}')
        e(f's_addc_u32 s{d+1}, s{ptr+1}, 0')
        e(f's_and_b32 s{d+1}, s{d+1}, 0xffff')
    e(f's_mov_b32 s{d+2}, {nbytes}')
    e(f's_mov_b32 s{d+3}, 0x00020000')

def rd_x(j):
    w_, o = win(XSLOT[j] * 8192)
    return [f'ds_read_b128 {ar(aX+4*(4*j+ks), 4)}, v{vXRD + 4*w_ + ks} offset:{o}' for ks in range(4)]
def rd_wq(stage):
    it = []
    for ks in range(2):
        w_, o = win((14 + 2 * (stage % 3) + ks) * 8192)
        for u in range(4):
            d = aWQ + 32 * (stage % 2) + (ks * 4 + u) * 4
            for sec in range(2):
                it.append(f'ds_read_b64_tr_b16 {ar(d+2*sec, 2)}, v{vWQR + 4*(w_-1) + u} offset:{o + sec*1024}')
    return it
def mf_q(stage, order=None):
    it = []
    idx = [(ks, u) for ks in range(2) for u in range(4)] if order is None else order
    for ks, u in idx:
        d = aWQ + 32 * (stage % 2) + (ks * 4 + u) * 4
        c = '0' if (stage == 0 and ks == 0) else vr(vO + 16 * u, 16)
        it.append(f'{MF} {vr(vO+16*u, 16)}, {ar(d, 4)}, {ar(aX + 4*(2*stage+ks), 4)}, {c}')
    return it
def rd_k(t):
    w_, o = win(KVSLOT[f'K{t}'] * 8192)
    return [f'ds_read_b128 {ar(aK+4*s, 4)}, v{vKR + 8*w_ + s} offset:{o}' for s in range(8)]
def rd_v(t):
    w_, o = win(KVSLOT[f'V{t}'] * 8192)
    it = []
    for a in range(2):
        for tt in range(4):
            d = aVB(t) + (a * 4 + tt) * 4
            for sec in range(2):
                it.append(f'ds_read_b64_tr_b16 {ar(d+2*sec, 2)}, v{vVR + 4*w_ + tt} offset:{o + a*4096 + sec*2048}')
    return it
def mf_qk(t):
    S = vS + 16 * (t % 2)
    return [f'{MF} {vr(S, 16)}, {ar(aK+4*s, 4)}, {vr(vQ+4*s, 4)}, ' + (vr(S, 16) if s else ('0' if t == 0 else vr(vNM, 16))) for s in range(8)]
def mf_pv(t):
    P = vP + 8 * (t % 2)
    it = []
    for a in range(2):
        for tt in range(4):
            c = '0' if (t == 0 and a == 0) else vr(vO + 16 * tt, 16)
            it.append(f'{MF} {vr(vO+16*tt, 16)}, {ar(aVB(t) + (a*4+tt)*4, 4)}, {vr(P+4*a, 4)}, {c}')
        it.append(mf_l(t, a))
    return it
def mf_l(t, a):
    P = vP + 8 * (t % 2)
    c = '0' if (t == 0 and a == 0) else vr(vL, 4)
    return f'v_mfma_f32_16x16x32_bf16 {vr(vL, 4)}, {ar(aONE, 4)}, {vr(P+4*a, 4)}, {c}'
def sm_max(t):
    S = vS + 16 * (t % 2)
    it = [f'v_max3_f32 v{vMX}, v{S}, v{S+1}, v{S+2}', f'v_max3_f32 v{vMX+1}, v{S+3}, v{S+4}, v{S+5}']
    k = 6; d = 0
    while k < 16:
        it.append(f'v_max3_f32 v{vMX+d}, v{vMX+d}, v{S+k}, v{S+k+1}'); k += 2; d ^= 1
    it.append(f'v_max_f32 v{vMX}, v{vMX}, v{vMX+1}')
    return it
stubs = []
def sm_check(t0):
    t = f'{e.roles[0]}{t0}'
    def f():
        e(f'v_cmp_lt_f32 vcc, {f32(opts["T"])}, v{vMX}')
        e(f's_cbranch_vccnz L_stub{t}')
        e.label(f'L_back{t}')
        stubs.append(t)
    return [f]
def sm_exp(t):
    S = vS + 16 * (t % 2); P = vP + 8 * (t % 2)
    it = [f'v_exp_f32 v{S}, v{S}', f'v_exp_f32 v{S+1}, v{S+1}']
    for p in range(8):
        if p < 7: it += [f'v_exp_f32 v{S+2*p+2}, v{S+2*p+2}', f'v_exp_f32 v{S+2*p+3}, v{S+2*p+3}']
        it.append(f'v_cvt_pk_bf16_f32 v{P+p}, v{S+2*p}, v{S+2*p+1}')
    return it
def rd_wo(j):
    w_, o = win(WOG[j] * 32768)
    it = []
    for oth in range(2):
        for f in range(8):
            d = aWO + 64 * (j % 2) + (oth * 8 + f) * 4
            for sec in range(2):
                it.append(f'ds_read_b64_tr_b16 {ar(d+2*sec, 2)}, v{vWOR + 2*w_ + oth} offset:{o + f*2048 + sec*1024}')
    return it
def mf_o(j):
    acc = vS + 16 * (j % 2)
    it = []
    for oth in range(2):
        for f in range(8):
            d = aWO + 64 * (j % 2) + (oth * 8 + f) * 4
            b = vr(vQ + 4 * f, 4) if oth == 0 else ar(aOO + 4 * f, 4)
            c = '0' if (oth == 0 and f == 0) else vr(acc, 16)
            it.append(f'{MF} {vr(acc, 16)}, {ar(d, 4)}, {b}, {c}')
    return it
def ep_o(j):
    acc = vS + 16 * (j % 2); P = vP + 8 * (j % 2)
    it = []
    for h in range(2):
        for p in range(4):
            it.append(f'v_cvt_pk_bf16_f32 v{P+4*h+p}, v{acc+8*h+2*p}, v{acc+8*h+2*p+1}')
        off = ' offset:1024' if h else ''
        if not opts['nost'] and not (opts['half'] and j in (1, 2, 3, 4)): it.append((f'buffer_store_dwordx4 {vr(P+4*h, 4)}, v{vSTV}, {sr(SWS)}, s{sTILE+j} offen{off} {opts["st"]}', f'ST{j}'))
    return it
def publish(j):
    def f():
        if opts['one_flag']:
            FLS = opts['fls']
            if j == 8 or (opts['two'] and j == opts['two']):
                e.wait_vm({f'ST{j}'})
                so = '0' if j == 8 else f's{sFL}'
                e(f'buffer_store_dwordx2 {vr(vE, 2)}, v{vFLV}, {sr(SFL)}, {so} offen {opts["fp"]}', 'FL')
            return
        e.wait_vm({f'ST{j}'})
        so, off = ('0', j * 512) if j < 8 else (f's{sFL}', 0)
        e(f'buffer_store_dwordx2 {vr(vE, 2)}, v{vFLV}, {sr(SFL)}, {so} offen offset:{off} sc1', 'FL')
    return [f]

K = NAME + '_kernel'
e.raw(f'.globl {K}\n.p2align 8\n.type {K},@function\n{K}:')
e('s_cmp_ge_u32 s2, 256')
e('s_cbranch_scc1 L_end')
e('s_load_dwordx8 s[4:11], s[0:1], 0')
e('s_load_dwordx8 s[12:19], s[0:1], 32')
e('s_memrealtime s[100:101]')
if PROF: e(f'{TM} s[96:97]')
e('v_lshrrev_b32 v1, 6, v0')
e(f's_and_b32 s{sHKV}, s2, 7')
e(f'v_readfirstlane_b32 s{sW}, v1')
e(f's_lshl_b32 s{sHKV}, s{sHKV}, 1')
e(f's_bfe_u32 s{sT0}, s2, 0x10003')
e(f's_add_u32 s{sHKV}, s{sHKV}, s{sT0}')
e(f's_lshr_b32 s{sB}, s2, 4')
e(f's_sub_u32 s{sT0}, s{sB}, 9')
e(f's_cselect_b32 s{sROT}, s{sB}, s{sT0}')
e(f's_lshl_b32 s{sM0W}, s{sW}, 11')
e(f's_lshl_b32 s{sM0Q}, s{sW}, 12')
e(f's_lshl_b32 s{sM0T}, s{sW}, 13')
e('v_bfe_u32 v2, v0, 3, 3')
e('v_and_b32 v3, 7, v0')
e('v_bfe_u32 v4, v0, 4, 2')
e('v_and_b32 v5, 15, v0')
e('v_lshrrev_b32 v6, 1, v2')
e('v_xor_b32 v7, v3, v6')
e('v_lshlrev_b32 v7, 4, v7')
e('v_mul_u32_u24 v8, 1152, v2')
e('v_mul_u32_u24 v9, 18432, v1')
e('v_add_u32 v9, v9, v8')
e(f'v_add_u32 v{vXa}, v9, v7')
e('v_xor_b32 v7, 64, v7')
e(f'v_add3_u32 v{vXb}, v9, v7, 0')
e(f'v_add_u32 v{vXb}, 8192, v{vXb}')
e('v_lshlrev_b32 v7, 2, v4')
e('v_xor_b32 v7, v5, v7')
e('v_lshlrev_b32 v7, 4, v7')
e('v_lshl_add_u32 v9, v4, 13, v7')
e('v_lshrrev_b32 v10, 1, v1')
e('v_lshl_add_u32 v9, v10, 17, v9')
e('v_and_b32 v10, 1, v1')
e(f'v_lshl_add_u32 v{vWQV}, v10, 8, v9')
for p in range(1, 4): e(f'v_add_u32 v{vWQV+p}, {p*31744}, v{vWQV}')
e('v_lshl_add_u32 v9, v4, 8, v7')
e(f'v_lshl_add_u32 v{vVc}, v1, 11, v9')
e('v_xor_b32 v7, v5, v4')
e('v_lshlrev_b32 v7, 4, v7')
e('v_lshl_add_u32 v9, v4, 8, v7')
e('v_lshlrev_b32 v10, 7, v10')
e('v_xor_b32 v9, v9, v10')
e(f'v_lshl_add_u32 v{vKa}, v1, 11, v9')
e(f'v_xor_b32 v{vKb}, 64, v{vKa}')
if not opts['krot']:
    for t in range(16): e(f's_mov_b32 s{sTILE+t}, {t*8192}')
if opts['qrot']:
    e(f's_and_b32 s3, s{sHKV}, 1')
    e(f's_mul_i32 s3, s3, {opts["qrot"]}')
    e(f's_add_u32 s3, s3, s{sROT}')
    e(f's_sub_u32 s{sT0}, s3, 9')
    e(f's_cselect_b32 s3, s3, s{sT0}')
else: e(f's_mov_b32 s3, s{sROT}')
e(f's_lshl_b32 s{sWQ}, s3, 19')
if opts['roto']: e(f's_lshr_b32 s{sROT}, s{sB}, 1')
e(f's_lshl_b32 s{sWO}, s{sROT}, 7')
e(f's_lshl_b32 s{sXO}, s3, 7')
e(f's_mov_b32 s{sFL}, ' + (str(64 << opts['fls']) if opts['one_flag'] else '0x1000'))
e(f's_lshl_b32 s{sJOB}, s{sB}, 4')
e(f's_add_u32 s{sJOB}, s{sJOB}, s{sHKV}')
e(f's_mul_i32 s{sT0}, s{sB}, 73728')
e(f's_lshl_b32 s{sT2}, s{sHKV}, 9')
e(f's_lshl_b32 s3, s{sJOB}, 17' if not opts['kv0'] else f's_lshl_b32 s3, s{sHKV}, 17')
e('s_waitcnt lgkmcnt(0)')
mk_srd(SX, 4, f's{sT0}', 73728)
put(xt(0))
mk_srd(SWQ, 10, f's{sT2}', 4718592 - 15 * 512)
put(wq_stage(0))
put(xt(1)); put(wq_stage(1))
mk_srd(SK, 6, 's3', 131072)
mk_srd(SV, 8, 's3', 131072)
mk_srd(SDBG, 16, None, 256)
e(f'v_lshl_add_u32 v9, s2, 8, v0')
e('v_lshlrev_b32 v9, 8, v9')
e('v_mov_b32 v10, s100'); e('v_mov_b32 v11, s101')
e('s_cmp_lg_u32 s2, 0')
e('s_cbranch_scc1 L_noepoch')
e(f'buffer_store_dwordx2 v[10:11], v9, {sr(SDBG)}, 0 offen sc1')
e.vm['A'].pop(); e.vm['B'].pop()
e.label('L_noepoch')
if opts['cpf']:
    e(f's_cmp_lg_u32 s{sW}, 3')
    e('s_cbranch_scc1 L_nocpf')
    e('s_getpc_b64 s[98:99]')
    e.label('L_pc')
    e(f's_sub_u32 s98, s98, L_pc-{K}')
    e('s_subb_u32 s99, s99, 0')
    e('s_lshr_b32 s3, s2, 3')
    e('v_and_b32 v9, 15, v0')
    e('v_lshl_add_u32 v9, s3, 4, v9')
    e('v_lshlrev_b32 v9, 7, v9')
    e(f'v_min_u32 v9, L_textend-{K}-4, v9')
    e('s_mov_b64 exec, 0xffff')
    e.raw('    global_load_dword v12, v9, s[98:99]')
    e('s_mov_b64 exec, -1')
    e.label('L_nocpf')

if opts['krot']:
    e(f's_mul_i32 s3, s{sJOB}, {opts["krot"]}')
    e(f's_lshr_b32 s{sT0}, s{sJOB}, 4')
    e(f's_add_u32 s3, s3, s{sT0}')
    e('s_lshl_b32 s3, s3, 13')
    for t in range(16):
        e(f's_add_u32 s{sTILE+t}, s3, {t*8192}')
        e(f's_and_b32 s{sTILE+t}, s{sTILE+t}, 0x1e000')
e(f's_mul_i32 s3, s{sHKV}, 294912')
mk_srd(SWO, 12, 's3', 294912)
e(f's_mul_i32 s3, s{sJOB}, 73728')
mk_srd(SWS, 18, 's3', 73728)
FB = (128 << opts['fls']) if opts['one_flag'] else 36 * FG
e(f's_mul_i32 s3, s{sB}, {FB}')
e(f's_add_u32 s3, s3, {FL_OFF}')
mk_srd(SFL, 18, 's3', FB)
e(f's_mul_i32 s3, s{sB}, {16*73728}')
mk_srd(SPR, 18, 's3', 16 * 73728)
e(f's_mul_i32 s3, s{sB}, 73728')
mk_srd(SOUT, 14, 's3', 73728)
sc = math.log2(math.e) / math.sqrt(128.0)
e(f's_mov_b32 s{sSC}, {f32(sc)}'); e(f's_mov_b32 s{sSC+1}, {f32(sc)}')
e('v_bfe_u32 v9, v0, 5, 1')
e('v_and_b32 v10, 31, v0')
e('v_bfe_u32 v11, v0, 2, 2')
e('v_and_b32 v7, 3, v0')
e('v_bfe_u32 v13, v0, 4, 1')
e('v_and_b32 v14, 1, v1')
e('v_lshl_add_u32 v14, v14, 5, v10')
e('v_bfe_u32 v15, v14, 1, 3')
e('v_xor_b32 v15, v15, v9')
e('v_lshlrev_b32 v15, 4, v15')
e(f'v_lshl_add_u32 v{vXRD}, v14, 7, v15')
for ks in range(1, 4): e(f'v_xor_b32 v{vXRD+ks}, {ks*32}, v{vXRD}')
for ks in range(4): e(f'v_add_u32 v{vXRD+4+ks}, 0x10000, v{vXRD+ks}')
e('v_lshrrev_b32 v14, 1, v1')
e('v_lshlrev_b32 v14, 12, v14')
e('v_lshl_add_u32 v14, v9, 11, v14')
e('v_lshl_add_u32 v14, v11, 8, v14')
e('v_lshl_add_u32 v14, v11, 6, v14')
e('v_lshl_add_u32 v14, v13, 5, v14')
e('v_and_b32 v15, 1, v7')
e('v_lshl_add_u32 v14, v15, 4, v14')
e('v_lshrrev_b32 v15, 1, v7')
e('v_lshl_add_u32 v14, v15, 3, v14')
e(f'v_add_u32 v{vWQR}, 0x10000, v14')
for u in range(1, 4): e(f'v_xor_b32 v{vWQR+u}, {u*64}, v{vWQR}')
for u in range(4): e(f'v_add_u32 v{vWQR+4+u}, 0x10000, v{vWQR+u}')
e('v_xor_b32 v14, v9, v5')
e('v_lshlrev_b32 v14, 4, v14')
e(f'v_lshl_add_u32 v{vKR}, v10, 8, v14')
for s in range(1, 8): e(f'v_xor_b32 v{vKR+s}, {s*32}, v{vKR}')
for w_ in (1, 2):
    for s in range(8): e(f'v_add_u32 v{vKR+8*w_+s}, {w_*0x10000}, v{vKR+s}')
e('v_lshlrev_b32 v14, 10, v9')
e('v_lshl_add_u32 v14, v11, 8, v14')
e('v_lshl_add_u32 v14, v11, 6, v14')
e('v_lshl_add_u32 v14, v13, 5, v14')
e(f'v_lshl_add_u32 v{vVR}, v7, 3, v14')
for t in range(1, 4): e(f'v_xor_b32 v{vVR+t}, {t*64}, v{vVR}')
for w_ in (1, 2):
    for t in range(4): e(f'v_add_u32 v{vVR+4*w_+t}, {w_*0x10000}, v{vVR+t}')
e('v_lshrrev_b32 v4, 1, v1')
e('v_lshlrev_b32 v14, 9, v9')
e('v_lshl_add_u32 v14, v11, 7, v14')
e('v_lshrrev_b32 v15, 1, v11')
e('v_xor_b32 v15, v15, v4')
e('v_lshl_add_u32 v14, v15, 6, v14')
e('v_and_b32 v15, 1, v7')
e('v_lshl_add_u32 v14, v15, 5, v14')
e('v_lshl_add_u32 v14, v13, 4, v14')
e('v_lshrrev_b32 v15, 1, v7')
e('v_lshl_add_u32 v14, v15, 3, v14')
e(f'v_lshl_add_u32 v{vWOR}, v4, 14, v14')
e(f'v_xor_b32 v{vWOR+1}, 0x4000, v{vWOR}')
for w_ in (1, 2):
    for o in range(2): e(f'v_add_u32 v{vWOR+2*w_+o}, {w_*0x10000}, v{vWOR+o}')
e('v_and_b32 v14, 63, v0')
e(f'v_lshlrev_b32 v{vL16}, 4, v14')
e(f'v_lshl_add_u32 v{vXW}, v1, 13, v{vL16}')
e(f'v_add_u32 v{vXW}, {XG*32768}, v{vXW}')
e(f'v_xor_b32 v{vXR}, 0x4000, v{vXW}')
e(f'v_lshl_add_u32 v{vSTV}, v1, 11, v{vL16}')
if opts['full']:
    e('v_lshrrev_b32 v14, 4, v14')
    e('v_lshlrev_b32 v14, 20, v14')
    e('v_lshl_add_u32 v14, v5, 3, v14')
else: e(f'v_lshlrev_b32 v14, 20, v14')
e(f'v_lshl_add_u32 v14, v1, {opts["fls"] if opts["one_flag"] else FSH+4}, v14')
e(f's_lshl_b32 s3, s{sHKV}, {opts["fls"]+2 if opts["one_flag"] else FSH}')
e(f'v_add_u32 v{vFLV}, s3, v14')
e('v_and_b32 v14, 1, v6')
e('v_lshlrev_b32 v14, 2, v14')
e('v_xor_b32 v14, v14, v3')
e('v_lshl_add_u32 v14, v14, 4, v8')
e('v_mul_u32_u24 v15, 73728, v1')
e(f'v_add_u32 v{vWOV}, v14, v15')
for p in range(1, 4): e(f'v_add_u32 v{vWOV+p}, {p*8192}, v{vWOV}')
e('v_bfe_u32 v14, v0, 2, 1')
e('v_cmp_eq_u32 vcc, v14, v13')
e('v_mov_b32 v14, 0x3f803f80')
e('v_cndmask_b32 v14, 0, v14, vcc')
for i in range(4): e(f'v_accvgpr_write_b32 a{aONE+i}, v14')
e('v_and_b32 v14, 1, v0')
e('v_lshlrev_b32 v14, 4, v14')
e('v_lshlrev_b32 v14, v14, 0x3f80'.replace('v14, 0x3f80', 'v14, v15') if False else 'v_mov_b32 v15, 0x3f80')
e('v_lshlrev_b32 v14, v14, v15')
e('v_bfe_u32 v15, v0, 2, 1')
e('v_xor_b32 v15, v15, v9')
e('v_or_b32 v15, v15, v13')
e('v_lshlrev_b32 v15, 3, v15')
e('v_bfe_u32 v2, v0, 3, 1')
e('v_bfe_u32 v3, v0, 1, 1')
e('v_lshl_add_u32 v2, v2, 1, v3')
e('v_add_u32 v2, v2, v15')
for d in range(4):
    e(f'v_cmp_eq_u32 vcc, {d}, v2')
    e(f'v_cndmask_b32 v3, 0, v14, vcc')
    e(f'v_accvgpr_write_b32 a{aPERM+d}, v3')

def qcvt(u):
    it = []
    for p in range(8):
        r = vO + 16 * u + 2 * p
        if opts['pk']: it.append(f'v_pk_mul_f32 {vr(r, 2)}, {vr(r, 2)}, s[{sSC}:{sSC+1}]')
        else: it += [f'v_mul_f32 v{r}, s{sSC}, v{r}', f'v_mul_f32 v{r+1}, s{sSC}, v{r+1}']
    for p in range(8):
        r = vO + 16 * u + 2 * p
        it.append(f'v_cvt_pk_bf16_f32 v{vQ+8*u+p}, v{r}, v{r+1}')
    return it
def X(*js): return sum((xt(j) for j in js), [])
def KVs(*ns): return sum((kv(n) for n in ns), [])
def RX(*js): return sum((rd_x(j) for j in js), [])
if opts['rtrace']: e(f'v_mov_b32 v{vPA}, 0')
put(X(2, 3, 4)); bar({'X0', 'X1', 'WQ0'}, False)
put(RX(0, 1) + rd_wq(0))
put(X(5, 6, 7)); bar({'WQ1', 'X2'})
e.weave(mf_q(0), [(rd_wq(1) + RX(2), -1, 6)])

def group_body(g):
    e.roles = [g]; set_group(g)
    WOG[0] = 4 if g == 'A' else 3
    B1 = opts['b1']
    if g == 'A':
        put(X(8) + KVs(0, 1)); bar({'X3', 'X4', 'X5'})
        e.weave(mf_q(1), [(RX(3, 4, 5), -1, 4)])
        put(KVs(2, 3, 4)); bar({'X6', 'X7', 'X8'})
        put(RX(6, 7, 8))
        put(KVs(*range(5, min(B1, 11)))); bar(set())
        put(KVs(*range(11, B1)))
        put(wq_stage(2) + wq_stage(3) + wq_stage(4))
        qplan = {}
        nxt = B1
        cnt = [int(x) for x in opts['apl'].split(',')]
        wot = [int(x) for x in opts['awo'].split(',')]
        rdt = tuple(int(x) for x in opts['ard'].split(','))
    else:
        put(X(8) + wq_stage(2)); bar({'X3', 'X4', 'X5'})
        e.weave(mf_q(1), [(RX(3, 4, 5), -1, 4)])
        put(wq_stage(3) + wq_stage(4)); bar({'X6', 'X7', 'X8'})
        put(RX(6, 7, 8))
        bar(set())
        LA = opts['la']
        qplan = {14: [0, 1], 15: [2, 3], 16: [4, 5], 17: list(range(6, LA - 1))}
        nxt = LA - 1
        cnt = [1] + [2] * 15
        wot = [int(x) for x in opts['bwo'].split(',')]
        rdt = tuple(int(x) for x in opts['brd'].split(','))
    bar({'WQ2'})
    put(rd_wq(2))
    bar({'WQ3'})
    for s in range(2, 18):
        d = []
        if s + 3 < 18: d += wq_stage(s + 3)
        d += KVs(*qplan.get(s, []))
        if s < 17:
            e.weave(mf_q(s), [(rd_wq(s + 1), -1, 6)] + ([(d, 0, 8)] if d else []))
            tags = set()
            if s + 2 < 18: tags.add(f'WQ{s+2}')
            if s == 16 and g == 'A': tags.add('K0')
            bar(tags)
        elif g == 'A':
            e.weave(mf_q(s, [(ks, u) for u in range(4) for ks in range(2)]),
                    [(rd_k(0), -1, 3), (qcvt(0), 4, 6), (qcvt(1), 6, 8)])
            mark()
            qk0 = mf_qk(0)
            e.weave(qk0[:4], [(qcvt(2), 0, 2), (qcvt(3), 2, 4)])
            e.weave(qk0[4:], [])
        else:
            e.weave(mf_q(s, [(ks, u) for u in range(4) for ks in range(2)]),
                    [(d, 0, 4), (qcvt(0), 4, 6), (qcvt(1), 6, 8)])
            put(qcvt(2) + qcvt(3))
            bar({'K0'})
            put(rd_k(0))
            put(mf_qk(0))
    bar({'K1', 'V0'})
    WORD = {rdt[0]: rd_wo(0)[:16], rdt[0]+1: rd_wo(0)[16:], rdt[1]: rd_wo(1)[:16], rdt[1]+1: rd_wo(1)[16:]}
    assert wot[1] < rdt[0] and wot[3] < rdt[1] and wot[4] >= rdt[0] + 2 and wot[6] >= rdt[1] + 2 and wot[8] >= 12 and wot[10] >= 14
    if g == 'A': assert wot[2] >= rdt[0] + 2 and wot[4] >= 7
    cnt += [2] * 16
    for t in range(16):
        d = []
        for _ in range(cnt[t]):
            if nxt < 32:
                assert nxt < 12 or (nxt - 12 + 1) // 2 <= t, (g, nxt, t)
                assert (nxt - 2 + 1) // 2 > t, (g, nxt, t)
                d += kv(nxt); nxt += 1
        for hi, tt_ in enumerate(wot):
            if tt_ == t: d += wo_half(hi // 2, hi % 2)
        if t == opts['tlb']:
            d += [f'v_lshlrev_b32 v1, {opts["tsh"]}, v0',
                  (f'buffer_load_dword v218, v1, {sr(SFL)}, 0 offen', 'TL'),
                  (f'buffer_load_dword v219, v1, {sr(SPR)}, 0 offen', 'TL'),
                  (f'buffer_load_dword v220, v1, {sr(SOUT)}, 0 offen', 'TL')]
        if t == 7:
            d += ['v_mov_b32 v1, 0', (f'buffer_load_dwordx2 {vr(vE, 2)}, v1, {sr(SDBG)}, 0 offen sc1', 'EP')]
        if t == 0:
            put(d); put(rd_k(1)); put(sm_max(0))
            e(f'v_mov_b32 v{vMX+1}, v{vMX}')
            e(f'v_permlane32_swap_b32 v{vMX}, v{vMX+1}')
            e(f'v_max_f32 v{vMX}, v{vMX}, v{vMX+1}')
            for r in range(16): e(f'v_sub_f32 v{vNM+r}, 0, v{vMX}')
            sub = [f'v_sub_f32 v{vS+r}, v{vS+r}, v{vMX}' for r in range(16)]
            e('s_waitcnt lgkmcnt(0)')
            e.weave(mf_qk(1), [(rd_v(0), 0, 6), (sub + sm_exp(0), 0, 8)])
        elif t < 15:
            sm = sm_max(t) + sm_check(t) + sm_exp(t)
            kw = lambda: e.need_regs(ar(aK + 28, 4))
            kw.cost = 4
            X_ = opts['x_']
            if X_ & 1: sm = [i for i in sm if callable(i) or not i.startswith('v_exp')]
            if X_ & 2: sm = [i for i in sm if callable(i) or not i.startswith('v_cvt')]
            if X_ & 4: sm = [i for i in sm if not callable(i) and not i.startswith('v_max')]
            rk, rv = rd_k(t + 1), rd_v(t)
            if X_ & 8: rk = []
            if X_ & 16: rv = []
            streams = [(rk, 0, 8), (rv + WORD.get(t, []), 1, 16), (sm, 1, 18), (d, 0, 17), ([kw], 9, 10)]
            e.weave2(mf_pv(t - 1) + mf_qk(t + 1), streams, opts['slack'])
        else:
            sm = sm_max(t) + sm_check(t) + sm_exp(t)
            e.weave2(mf_pv(14), [(rd_v(15), 0, 8), (sm, 1, 10), (d, 0, 10)])
        if t < 15:
            tags = {f'K{t+2}', f'V{t+1}'}
            if t == rdt[0] - 1: tags.add('WO0')
            if t == rdt[1] - 1: tags.add('WO1')
            if t == 14: tags.add('EP')
            bar(tags)
    assert nxt == 32

e(f's_and_b32 s3, s{sB}, {opts["gmask"]}')
e('s_cbranch_scc0 L_grpA')
S0 = e.S.clone(); nb0 = nbar[0]
group_body('B')
e('s_branch L_common')
SB = e.S; nb1 = nbar[0]; nbar[0] = nb0
e.label('L_grpA')
e.S = S0
group_body('A')
assert nbar[0] == nb1
e.label('L_common')
e.S = Emit.merge_states(e.S, SB)
e.roles = ['A', 'B']
e(f'v_or_b32 v1, v{vE}, v{vE+1}')
e('v_cmp_eq_u32 vcc, 0, v1')
e('s_cbranch_vccnz L_epoch_spin')
e.label('L_epoch_ok')
P15 = vP + 8
seq = [mf_l(15, 0), mf_l(15, 1)]
for tt in range(4):
    for a in range(2):
        seq.append(f'{MF} {vr(vO+16*tt, 16)}, {ar(aVB(15) + (a*4+tt)*4, 4)}, {vr(P15+4*a, 4)}, {vr(vO+16*tt, 16)}')
def norm(tt):
    it = []
    for a in range(2):
        for p in range(4 * a, 4 * a + 4):
            r = vO + 16 * tt + 2 * p
            if opts['pk']: it.append(f'v_pk_mul_f32 {vr(r, 2)}, {vr(r, 2)}, {vr(vINV, 2)} op_sel_hi:[1,0]')
            else: it += [f'v_mul_f32 v{r}, v{vINV}, v{r}', f'v_mul_f32 v{r+1}, v{vINV}, v{r+1}']
        for p in range(4 * a, 4 * a + 4):
            r = vO + 16 * tt + 2 * p
            it.append(f'v_cvt_pk_bf16_f32 v{vQ+8*tt+p}, v{r}, v{r+1}')
        f = 2 * tt + a
        it.append(f'ds_write_b128 v{vXW}, {vr(vQ+4*f, 4)} offset:{f*1024}')
    return it
mo0 = mf_o(0); mo1 = mf_o(1)
own = sum(([mo0[f], mo1[f]] for f in range(8)), [])
e('s_waitcnt lgkmcnt(0)'); e('s_barrier')
e.weave(seq + own[:12], [([f'v_rcp_f32 v{vINV}, v{vL}'], 4, 5),
                         (norm(0), 5, 9), (norm(1), 9, 13), (norm(2), 13, 17), (norm(3), 17, 21)])
bar({'WO2'})
sU, sCNT, sTODO, sRDY, sI, sOFF, sUA, sLB, sOO, sOM, sMB = 20, 21, 22, 23, 24, 25, 26, 27, 28, 29, 32
vMV, vMR, vMO = 212, 213, 214
red_setup = [
    f's_lshl_b32 s{sU}, s{sW}, 4', f's_add_u32 s{sU}, s{sU}, s{sHKV}',
    f's_lshl_b32 s{sUA}, s{sU}, 10',
    f's_lshr_b32 s{sOO}, s{sU}, 3', f's_add_u32 s{sOO}, s{sOO}, s{sROT}',
    lambda: (e(f's_sub_u32 s{sI}, s{sOO}, 9'), e(f's_cselect_b32 s{sOO}, s{sOO}, s{sI}')),
    f's_lshl_b32 s{sOO}, s{sOO}, 7',
    f's_bfe_u32 s{sI}, s{sU}, 0x10001', f's_mul_i32 s{sI}, s{sI}, 36864', f's_add_u32 s{sOO}, s{sOO}, s{sI}',
    f's_bfe_u32 s{sI}, s{sU}, 0x10002', f's_lshl_b32 s{sI}, s{sI}, 6', f's_add_u32 s{sOO}, s{sOO}, s{sI}',
    f's_and_b32 s{sI}, s{sU}, 1', f's_lshl_b32 s{sI}, s{sI}, 4', f's_add_u32 s{sOO}, s{sOO}, s{sI}',
    lambda: (e(f's_sub_u32 s{sOM}, s{sROT}, 1'), e(f's_cselect_b32 s{sOM}, 8, s{sOM}')),
    f's_lshl_b32 s{sOM}, s{sOM}, 7',
    f's_and_b32 s{sI}, s{sW}, 1', f's_mul_i32 s{sI}, s{sI}, 36864', f's_add_u32 s{sOM}, s{sOM}, s{sI}',
    f's_and_b32 s{sI}, s{sHKV}, 3', f's_mul_i32 s{sI}, s{sI}, 9216', f's_add_u32 s{sOM}, s{sOM}, s{sI}',
    f's_lshr_b32 s{sI}, s{sW}, 1', f's_lshl_b32 s{sI}, s{sI}, 6', f's_add_u32 s{sOM}, s{sOM}, s{sI}',
    f's_bfe_u32 s{sI}, s{sHKV}, 0x10002', f's_lshl_b32 s{sI}, s{sI}, 5', f's_add_u32 s{sOM}, s{sOM}, s{sI}',
    f's_lshr_b32 s{sI}, s{sHKV}, 3', f's_lshl_b32 s{sI}, s{sI}, 4', f's_add_u32 s{sOM}, s{sOM}, s{sI}',
    f's_lshl_b32 s{sMB}, s{sU}, 7', f's_add_u32 s{sMB}, s{sMB}, 65536',
    f's_mov_b32 s{sTODO}, -1',
] + ([
    f's_bfe_u32 s{sI}, s{sU}, 0x20001', f's_lshl_b32 s{sI}, s{sI}, {opts["fls"]}',
] + ([lambda: (e(f's_cmp_lt_u32 s{sU}, {8*(opts["two"]+1)}'), e(f's_cselect_b32 s{sOFF}, s{sFL}, 0')), f's_add_u32 s{sI}, s{sI}, s{sOFF}'] if opts['two'] else []) + [
    f's_lshl_b32 s{sOFF}, s{sW}, {opts["fls"]}', f's_sub_u32 s{sOFF}, s{sOFF}, s{sI}',
    'v_and_b32 v1, 15, v0', f'v_lshlrev_b32 v1, {opts["fls"]+2}, v1', f'v_add_u32 v1, s{sI}, v1',
    'v_bfe_u32 v2, v0, 4, 1', f'v_mul_lo_u32 v2, s{sOFF}, v2', 'v_add_u32 v1, v1, v2',
] if opts['one_flag'] else [
    f's_lshr_b32 s{sI}, s{sU}, 1', f's_lshl_b32 s{sI}, s{sI}, 7',
    f's_lshl_b32 s{sOFF}, s{sW}, 7', f's_add_u32 s{sOFF}, s{sOFF}, 4096', f's_sub_u32 s{sOFF}, s{sOFF}, s{sI}',
    'v_and_b32 v1, 15, v0', 'v_lshlrev_b32 v1, 3, v1', f'v_add_u32 v1, s{sI}, v1',
    'v_bfe_u32 v2, v0, 4, 1', f'v_mul_u32_u24 v2, s{sOFF}, v2', 'v_add_u32 v1, v1, v2',
]) + [
    f's_mul_i32 s{sLB}, s{sW}, 18432', f's_add_u32 s{sLB}, s{sLB}, {RG*32768}',
    f'v_add_u32 v3, s{sLB}, v{vL16}',
    'v_and_b32 v2, 31, v0', 'v_lshlrev_b32 v7, 20, v2', 'v_mul_u32_u24 v2, 1152, v2', 'v_bfe_u32 v6, v0, 5, 1', 'v_lshl_add_u32 v2, v6, 5, v2',
    'v_mul_u32_u24 v8, 2304, v6', f'v_add_u32 v{vMO}, v7, v8',
    'v_bfe_u32 v7, v0, 3, 3', 'v_mul_u32_u24 v7, 73728, v7', 'v_and_b32 v8, 7, v0', f'v_lshl_add_u32 v{vMV}, v8, 4, v7',
    'v_lshlrev_b32 v7, 10, v6', 'v_bfe_u32 v8, v0, 2, 2', 'v_lshl_add_u32 v7, v8, 7, v7',
    'v_and_b32 v8, 1, v0', 'v_lshl_add_u32 v7, v8, 5, v7', 'v_bfe_u32 v8, v0, 4, 1', 'v_lshl_add_u32 v7, v8, 4, v7',
    'v_bfe_u32 v8, v0, 1, 1', 'v_lshl_add_u32 v7, v8, 3, v7', f'v_add_u32 v{vMR}, s{sLB}, v7',
    f's_mov_b32 s{sCNT}, {opts["spin"]}',
] + [f'v_mov_b32 v{vNM+i}, 0x3f803f80' for i in range(4)]
OPLAN = {2: [(6, 0), (6, 1)], 3: [(7, 0), (7, 1)], 4: [(8, 0), (8, 1)]}
LAG = opts['lag']
pub = 0
r2 = rd_wo(2)
e.weave(own[12:] + mo0[8:] + mo1[8:],
        [([f'ds_read_b128 {ar(aOO+4*f, 4)}, v{vXR} offset:{f*1024}' for f in range(8)], -1, 1),
         (r2[:16], 4, 12), (r2[16:], 12, 18), (ep_o(0), 14, 20)])
mark()
bar({'WO3'})
nrs = (len(red_setup) + 2) // 3
for j in range(2, 9):
    streams = []
    if j in OPLAN: streams.append((sum((wo_half(*h) for h in OPLAN[j]), []), -1, 10))
    if j < 8: streams.append((rd_wo(j + 1), 0, 14))
    ep = ep_o(j - 1)
    if j - 1 - LAG >= 0: ep += publish(pub); pub += 1
    streams.append((ep, 8 if j in OPLAN else 3, 16 if j in OPLAN else 12))
    if j in (5, 6, 7): streams.append((red_setup[(j-5)*nrs:(j-4)*nrs], 0, 16))
    if j == 8 and opts['r0'] == 1: streams.append(([(f'buffer_load_dwordx2 v[4:5], v1, {sr(SFL)}, 0 offen sc1', 'POLL')], opts['pg'], opts['pg'] + 1))
    e.weave(mf_o(j), streams)
    if j < 7: bar({f'WO{j+2}'})
put(ep_o(8))
mark()
def masked_round():
    e(f's_mov_b32 s{sOFF}, s{sUA}')
    for h in range(16):
        if h % 4 == 0: e(f's_add_u32 m0, s{sLB}, {h*1024}')
        e(f's_bitcmp1_b32 s{sRDY}, {h}')
        e('s_cselect_b64 exec, -1, 0')
        off = f' offset:{(h%4)*1024}' if h % 4 else ''
        if opts['thr'] and h >= opts['thr']: e(f's_waitcnt vmcnt({opts["thr"]-1})')
        e(f'buffer_load_dwordx4 v{vL16}, {sr(SPR)}, s{sOFF} offen{off} {opts["ld"]} lds', 'RD')
        if h < 15: e(f's_add_u32 s{sOFF}, s{sOFF}, {73728 - 1024 if h % 4 != 3 else 73728 + 3072}')
    e('s_mov_b64 exec, -1')
if opts['r0'] == 2: e(f'buffer_load_dwordx2 v[4:5], v1, {sr(SFL)}, 0 offen sc1', 'POLL')
if opts['r0'] == 1:
    e.wait_vm({'POLL'})
    e(f'v_cmp_eq_u64 vcc, v[4:5], {vr(vE, 2)}')
    e('s_nop 0')
    e(f's_and_b32 s{sRDY}, vcc_lo, 0xffff')
    e(f's_andn2_b32 s{sTODO}, s{sTODO}, s{sRDY}')
    masked_round()
while pub < 9: put(publish(pub)); pub += 1
mark()
if opts['r0'] == 2:
    e.wait_vm({'POLL'})
    e('s_branch L_chk')
e.label('L_poll')
e.S = State()
if opts['sleep']: e(f's_sleep {opts["sleep"]}')
e(f'buffer_load_dwordx2 v[4:5], v1, {sr(SFL)}, 0 offen {opts["pp"]}')
e(f's_sub_u32 s{sCNT}, s{sCNT}, 1')
e('s_cbranch_scc1 L_go')
e('s_waitcnt vmcnt(0)')
e.label('L_chk')
e(f'v_cmp_eq_u64 vcc, v[4:5], {vr(vE, 2)}')
e('s_nop 0')
if opts['rtrace']:
    e('s_memrealtime s[98:99]'); e('s_waitcnt lgkmcnt(0)')
    e(f's_sub_u32 s30, {opts["spin"]}, s{sCNT}')
    e('s_min_u32 s30, s30, 30')
    e(f's_and_b32 s31, vcc_lo, s{sTODO}')
    e('s_mov_b32 m0, s30')
    e(f'v_writelane_b32 v{vPA}, s98, m0')
    e('s_add_u32 m0, s30, 31')
    e(f'v_writelane_b32 v{vPA}, s31, m0')
e(f's_and_b32 s{sRDY}, vcc_lo, s{sTODO}')
if opts['allrdy'] == 1:
    e(f's_cmp_eq_u32 s{sRDY}, -1')
    e('s_cbranch_scc0 L_poll')
if opts['allrdy'] == 2:
    e(f's_and_b32 s{sI}, s{sRDY}, 0xffff')
    e(f's_cmp_eq_u32 s{sI}, 0xffff')
    e(f's_cselect_b32 s{sI}, -1, 0xffff0000')
    e(f's_and_b32 s{sRDY}, s{sRDY}, s{sI}')
e(f's_cmp_ge_u32 s{sRDY}, 0xffff0000')
e('s_cbranch_scc0 L_nomini')
e(f's_add_u32 m0, s{sLB}, 16384')
e(f's_add_u32 s{sOFF}, s{sMB}, {8*73728 - 1024}')
e(f'buffer_load_dwordx4 v{vMV}, {sr(SPR)}, s{sMB} offen {opts["ld"]} lds')
e(f'buffer_load_dwordx4 v{vMV}, {sr(SPR)}, s{sOFF} offen offset:1024 {opts["ld"]} lds')
e(f's_and_b32 s{sTODO}, s{sTODO}, 0xffff')
e.label('L_nomini')
e(f's_and_b32 s{sRDY}, s{sRDY}, 0xffff')
e('s_cbranch_scc0 L_noround')
e(f's_andn2_b32 s{sTODO}, s{sTODO}, s{sRDY}')
masked_round()
e.label('L_noround')
e(f's_cmp_lg_u32 s{sTODO}, 0')
e('s_cbranch_scc1 L_poll')
e.label('L_go')
mark()
e('s_waitcnt vmcnt(0)')
mark()
for m in range(2):
    for sec in range(2): e(f'ds_read_b64_tr_b16 {ar(64+4*m+2*sec, 2)}, v{vMR} offset:{16384 + m*64 + sec*512}')
for h in range(16): e(f'ds_read_b128 {ar(4*h, 4)}, v3 offset:{h*1024}')
for m in range(2): e(f'{MF} {vr(vO+16*m, 16)}, {ar(64+4*m, 4)}, {vr(vNM, 4)}, 0')
mini = []
for m in range(2):
    for c in range(2):
        d = vO + 32 + 8 * m + 4 * c
        mini += [f'v_cvt_pk_bf16_f32 v{d+p}, v{vO+16*m+8*c+2*p}, v{vO+16*m+8*c+2*p+1}' for p in range(4)]
        if m == 1 and c == 0: mini.append(f's_add_u32 s{sOM}, s{sOM}, 4608')
        mini.append(f'buffer_store_dwordx4 {vr(d, 4)}, v{vMO}, {sr(SOUT)}, s{sOM} offen offset:{c*1152} {opts["out"]}')
e.weave([f'{MF} {vr(vS, 16)}, {ar(aPERM, 4)}, {ar(4*h, 4)}, ' + ('0' if h == 0 else vr(vS, 16)) for h in range(16)], [(mini, 4, 14)])
for p in range(4): e(f'v_cvt_pk_bf16_f32 v{vP+p}, v{vS+2*p}, v{vS+2*p+1}')
e(f'buffer_store_dwordx4 {vr(vP, 4)}, v2, {sr(SOUT)}, s{sOO} offen {opts["out"]}')
e.label('L_done')
if opts['spinx'] >= 0:
    e('s_waitcnt vmcnt(0)')
    mark()
    e('s_memrealtime s[96:97]')
    e('s_waitcnt lgkmcnt(0)')
    e('s_sub_u32 s98, s98, s100')
    e('s_lshl_b32 s98, s98, 2')
    e('s_add_u32 s98, s98, s96')
    e.label('L_spinx')
    e('s_memrealtime s[96:97]')
    e('s_waitcnt lgkmcnt(0)')
    e('s_sub_u32 s97, s96, s98')
    e('s_cmp_lt_i32 s97, 0')
    e('s_cbranch_scc1 L_spinx')
if PROF:
    mark()
    e('s_waitcnt vmcnt(0)')
    mark(); mark()
    e(f'v_writelane_b32 v{vPA}, s96, 63')
    mk_srd(SWS, 18, None, 0x10000000)
    e('s_lshl_b32 s62, s2, 11')
    e('s_add_u32 s62, s62, 0x9000000')
    e('v_and_b32 v2, 63, v0'); e('v_lshrrev_b32 v3, 6, v0'); e('v_lshlrev_b32 v2, 2, v2'); e('v_lshl_add_u32 v2, v3, 9, v2')
    e(f'buffer_store_dword v{vPA}, v2, {sr(SWS)}, s62 offen')
    e(f'buffer_store_dword v{vPB}, v2, {sr(SWS)}, s62 offen offset:256')
    print('bars', nbar[0], file=sys.stderr)
e.label('L_end')
e('s_endpgm')
e.label('L_epoch_spin')
e.S = State()
e(f's_mov_b32 s3, {opts["spin"]}')
e('v_mov_b32 v1, 0')
e.label('L_epoch_loop')
e(f'buffer_load_dwordx2 {vr(vE, 2)}, v1, {sr(SDBG)}, 0 offen sc1')
e('s_sub_u32 s3, s3, 1')
e('s_cbranch_scc1 L_epoch_ok')
e('s_waitcnt vmcnt(0)')
e(f'v_or_b32 v2, v{vE}, v{vE+1}')
e('v_cmp_eq_u32 vcc, 0, v2')
e('s_cbranch_vccnz L_epoch_loop')
e('s_branch L_epoch_ok')
for t in stubs:
    e.label(f'L_stub{t}')
    e.raw(f'    s_call_b64 s[{sRET}:{sRET+1}], L_rescale')
    e.raw(f'    s_branch L_back{t}')
e.label('L_rescale')
e.S = State()
e('s_nop 15'); e('s_nop 15')
e(f'v_mov_b32 v{vMX+1}, v{vMX}')
e(f'v_permlane32_swap_b32 v{vMX}, v{vMX+1}')
e(f'v_max3_f32 v{vMX}, v{vMX}, v{vMX+1}, 0')
e(f'v_ceil_f32 v{vMX}, v{vMX}')
e(f'v_exp_f32 v{vMX+1}, -v{vMX}')
for r in range(48): e(f'v_sub_f32 v{vS+r}, v{vS+r}, v{vMX}')
for r in range(68): e(f'v_mul_f32 v{vO+r}, v{vO+r}, v{vMX+1}')
for r in range(16):
    e(f'v_lshlrev_b32 v2, 16, v{vP+r}')
    e(f'v_and_b32 v3, 0xffff0000, v{vP+r}')
    e(f'v_mul_f32 v2, v2, v{vMX+1}')
    e(f'v_mul_f32 v3, v3, v{vMX+1}')
    e(f'v_cvt_pk_bf16_f32 v{vP+r}, v2, v3')
e('s_nop 3')
e(f's_setpc_b64 s[{sRET}:{sRET+1}]')
e.label('L_textend')

hdr = f"""; GQA block (Q-proj + cached attention + O-proj + cross-workgroup reduction) for gfx950
; @launch grid=(256,1,1) block=(256,1,1) lds=163840
.amdgcn_target "amdgcn-amd-amdhsa--gfx950"
.text
"""
kd = f""".section .rodata,"a"
.p2align 6
.amdhsa_kernel {K}
  .amdhsa_next_free_vgpr 512
  .amdhsa_next_free_sgpr 102
  .amdhsa_accum_offset 256
  .amdhsa_group_segment_fixed_size 0
  .amdhsa_kernarg_size 64
  .amdhsa_user_sgpr_count 2
  .amdhsa_user_sgpr_kernarg_segment_ptr 1
  .amdhsa_system_sgpr_workgroup_id_x 1
.end_amdhsa_kernel
"""
open(sys.argv[1], 'w').write(hdr + e.text() + kd)
print(e.count, 'nops', e.nops, file=sys.stderr)
```

```python
import sys, math, struct
from emit import Emit, State

NAME = "standalone__gqa_block_cached__near_ridge"
opts = dict(kv="nt", wq="", x="", wo="", st="sc1", ld="sc1", T=8.0, prof=0, cpf=1, lag=9,
            kvplan="a", spin=200000, spinx=-1, fsh=3, sleep=0, allrdy=0, gmask=1, b1=14, la=9, one=0, pm='', pk=0, nost=0, nowo=0, nopub=0, apl='0,1,1,1,1,2,2,2,2,2,2,2', bwo='1,3,5,7,12,12,13,13,14,14,15,15', awo='0,0,4,4,12,12,13,13,14,14,15,15', brd='7,10', ard='2,8', opl=1, pollpos=0, out='', krot=0, qrot=0, sent=0, w2=1, slack=0, x_=0, half=0, kv0=0, thr=0, nofast=0, roto=1, rtrace=0, r0=2, pg=13, one_flag=1, fls=7, two=0, pp='sc1', fp='sc1', full=0, tlb=-1, tsh=16, pp0=0, wqfirst=0)
for a in sys.argv[2:]:
    k, v = a.split('=')
    opts[k] = type(opts[k])(v) if not isinstance(opts[k], str) else v.replace('+', ' ')
PROF = opts['prof']
TM = 's_memrealtime' if PROF == 2 else 's_memtime'
PM = set(int(x) for x in opts['pm'].split(',')) if opts['pm'] else None
def f32(x): return '0x%08x' % struct.unpack('<I', struct.pack('<f', x))[0]

e = Emit(); e.roles = ['A', 'B']
SX, SK, SV, SWQ, SWO, SWS = 20, 24, 28, 32, 36, 40
SFL, SPR, SOUT, SDBG = 80, 84, 88, 92
sW, sHKV, sB, sROT = 44, 45, 46, 47
sT0, sT1, sT2 = 48, 49, 52
sRET = 50
sWQ, sWO, sST = 53, 54, 55
sM0W, sM0T = 56, 57
sSC = 58
sXO, sFL, sM0Q, sJOB = 60, 61, 62, 63
sTILE = 64
vKR = 16; vVR = 40
vKa, vKb, vVc = 52, 53, 54
vWOR = 55; vXW, vXR = 61, 62; vWOV = 63; vSTV = 67
vMX = 68; vINV = 70
vPA, vPB = 72, 73
vE = 74
vFLV = 76
vL16 = 77
vS = 80; vNM = 112; vP = 128; vO = 144; vL = 208; vQ = 224
vXRD = 80; vWQR = 88; vXa, vXb = 96, 97; vWQV = 100
aX = 0; aWQ = 144; aONE = 240; aPERM = 244
aK = 0; aV = 32; aWO = 64; aOO = 192
def aVB(t): return aV if t % 2 else aOO
FL_OFF = 256 * 73728
FSH = opts['fsh']; FG = 16 << FSH

def vr(b, n): return f'v[{b}:{b+n-1}]'
def ar(b, n): return f'a[{b}:{b+n-1}]'
def sr(b, n=4): return f's[{b}:{b+n-1}]'
MF = 'v_mfma_f32_32x32x16_bf16'
def win(off): return off >> 16, off & 0xffff

nbar = [0]
def mark():
    if not PROF or (PM is not None and nbar[0] not in PM):
        if nbar[0] == opts['spinx']: e('s_memrealtime s[98:99]')
        nbar[0] += 1
        return
    if PM is not None:
        i = nbar[0]; nbar[0] += 1
        e(f'{TM} s[98:99]'); e('s_waitcnt lgkmcnt(0)'); e(f'v_writelane_b32 v{vPB}, s98, {i}')
        return
    i = nbar[0]; nbar[0] += 1
    e(f'{TM} s[98:99]'); e('s_waitcnt lgkmcnt(0)')
    e(f'v_writelane_b32 v{vPA}, s98, {i}')
    if i > 0: e(f'v_writelane_b32 v{vPB}, s100, {i-1}')
    e(f'{TM} s[100:101]')
def bar(tags, lgkm0=True):
    if not PROF or PM is not None:
        e.wait_vm(tags, lgkm0=lgkm0); e('s_barrier')
        mark()
        return
    i = nbar[0]; nbar[0] += 1
    e(f'{TM} s[98:99]'); e('s_waitcnt lgkmcnt(0)')
    e(f'v_writelane_b32 v{vPA}, s98, {i}')
    if i > 0: e(f'v_writelane_b32 v{vPB}, s100, {i-1}')
    e.wait_vm(tags, lgkm0=lgkm0); e('s_barrier')
    e(f'{TM} s[100:101]')

def put(items):
    for it in items:
        if callable(it): it()
        elif isinstance(it, tuple): e(it[0], it[1])
        else: e(it)
def wrap_adv(r, step, lim, tmp):
    def f():
        e(f's_sub_u32 s{tmp}, s{r}, {lim}')
        e(f's_cselect_b32 s{r}, s{r}, s{tmp}')
    return [f's_add_u32 s{r}, s{r}, {step}', f]
def dma(v, srd, so, off, pol, tag):
    o = f' offset:{off}' if off else ''
    p = f' {pol}' if pol else ''
    return (f'buffer_load_dwordx4 v{v}, {sr(srd)}, {so} offen{o}{p} lds', tag)

KVORD = ['K0'] + sum(([f'K{t+1}', f'V{t}'] for t in range(15)), []) + ['V15']
KVSLOT = {}
def set_group(g):
    for n, nm in enumerate(KVORD):
        KVSLOT[nm] = n if (g == 'A' and n in (12, 13)) else (n + 4) % 12
XSLOT = [9, 10, 11, 0, 1, 2, 3, 12, 13]
def kv(n):
    nm = KVORD[n]; t = int(nm[1:]); isk = nm[0] == 'K'
    srd = SK if isk else SV
    return [f's_add_u32 m0, s{sM0W}, {KVSLOT[nm]*8192}',
            dma(vKa if isk else vVc, srd, f's{sTILE+t}', 0, opts['kv'], nm),
            dma(vKb if isk else vVc, srd, f's{sTILE+t}', 1024, opts['kv'], nm)]
def xt(j):
    return [f's_add_u32 m0, s{sM0W}, {XSLOT[j]*8192}',
            dma(vXa, SX, f's{sXO}', 0, opts['x'], f'X{j}'),
            dma(vXb, SX, f's{sXO}', 1024, opts['x'], f'X{j}')] + wrap_adv(sXO, 128, 1152, sT1)
def wq_stage(s):
    it = [f's_add_u32 m0, s{sM0Q}, {(14 + 2*(s%3))*8192}']
    it += [dma(vWQV + p, SWQ, f's{sWQ}', p * 1024, opts['wq'], f'WQ{s}') for p in range(4)]
    return it + wrap_adv(sWQ, 2 * 131072, 36 * 131072, sT1)
WOG = [4, 4, 3, 4, 0, 1, 2, 3, 4]
XG = 2
RG = 1
def wo_half(j, half):
    it = [f's_add_u32 m0, s{sM0T}, {4*WOG[j]*8192 + half*4096}']
    if half: it.append(f's_add_u32 s{sT0}, s{sWO}, 36864')
    it += [dma(vWOV + p, SWO, f's{sT0 if half else sWO}', p * 1024, opts['wo'], f'WO{j}') for p in range(4)]
    return it + (wrap_adv(sWO, 128, 1152, sT1) if half else [])
def wo_cb(j): return wo_half(j, 0) + wo_half(j, 1)

def mk_srd(d, ptr, addlo, nbytes):
    if addlo is None:
        e(f's_mov_b32 s{d}, s{ptr}'); e(f's_and_b32 s{d+1}, s{ptr+1}, 0xffff')
    else:
        e(f's_add_u32 s{d}, s{ptr}, {addlo}')
        e(f's_addc_u32 s{d+1}, s{ptr+1}, 0')
        e(f's_and_b32 s{d+1}, s{d+1}, 0xffff')
    e(f's_mov_b32 s{d+2}, {nbytes}')
    e(f's_mov_b32 s{d+3}, 0x00020000')

def rd_x(j):
    w_, o = win(XSLOT[j] * 8192)
    return [f'ds_read_b128 {ar(aX+4*(4*j+ks), 4)}, v{vXRD + 4*w_ + ks} offset:{o}' for ks in range(4)]
def rd_wq(stage):
    it = []
    for ks in range(2):
        w_, o = win((14 + 2 * (stage % 3) + ks) * 8192)
        for u in range(4):
            d = aWQ + 32 * (stage % 2) + (ks * 4 + u) * 4
            for sec in range(2):
                it.append(f'ds_read_b64_tr_b16 {ar(d+2*sec, 2)}, v{vWQR + 4*(w_-1) + u} offset:{o + sec*1024}')
    return it
def mf_q(stage, order=None):
    it = []
    idx = [(ks, u) for ks in range(2) for u in range(4)] if order is None else order
    for ks, u in idx:
        d = aWQ + 32 * (stage % 2) + (ks * 4 + u) * 4
        c = '0' if (stage == 0 and ks == 0) else vr(vO + 16 * u, 16)
        it.append(f'{MF} {vr(vO+16*u, 16)}, {ar(d, 4)}, {ar(aX + 4*(2*stage+ks), 4)}, {c}')
    return it
def rd_k(t):
    w_, o = win(KVSLOT[f'K{t}'] * 8192)
    return [f'ds_read_b128 {ar(aK+4*s, 4)}, v{vKR + 8*w_ + s} offset:{o}' for s in range(8)]
def rd_v(t):
    w_, o = win(KVSLOT[f'V{t}'] * 8192)
    it = []
    for a in range(2):
        for tt in range(4):
            d = aVB(t) + (a * 4 + tt) * 4
            for sec in range(2):
                it.append(f'ds_read_b64_tr_b16 {ar(d+2*sec, 2)}, v{vVR + 4*w_ + tt} offset:{o + a*4096 + sec*2048}')
    return it
def mf_qk(t):
    S = vS + 16 * (t % 2)
    return [f'{MF} {vr(S, 16)}, {ar(aK+4*s, 4)}, {vr(vQ+4*s, 4)}, ' + (vr(S, 16) if s else ('0' if t == 0 else vr(vNM, 16))) for s in range(8)]
def mf_pv(t):
    P = vP + 8 * (t % 2)
    it = []
    for a in range(2):
        for tt in range(4):
            c = '0' if (t == 0 and a == 0) else vr(vO + 16 * tt, 16)
            it.append(f'{MF} {vr(vO+16*tt, 16)}, {ar(aVB(t) + (a*4+tt)*4, 4)}, {vr(P+4*a, 4)}, {c}')
        it.append(mf_l(t, a))
    return it
def mf_l(t, a):
    P = vP + 8 * (t % 2)
    c = '0' if (t == 0 and a == 0) else vr(vL, 4)
    return f'v_mfma_f32_16x16x32_bf16 {vr(vL, 4)}, {ar(aONE, 4)}, {vr(P+4*a, 4)}, {c}'
def sm_max(t):
    S = vS + 16 * (t % 2)
    it = [f'v_max3_f32 v{vMX}, v{S}, v{S+1}, v{S+2}', f'v_max3_f32 v{vMX+1}, v{S+3}, v{S+4}, v{S+5}']
    k = 6; d = 0
    while k < 16:
        it.append(f'v_max3_f32 v{vMX+d}, v{vMX+d}, v{S+k}, v{S+k+1}'); k += 2; d ^= 1
    it.append(f'v_max_f32 v{vMX}, v{vMX}, v{vMX+1}')
    return it
stubs = []
def sm_check(t0):
    t = f'{e.roles[0]}{t0}'
    def f():
        e(f'v_cmp_lt_f32 vcc, {f32(opts["T"])}, v{vMX}')
        e(f's_cbranch_vccnz L_stub{t}')
        e.label(f'L_back{t}')
        stubs.append(t)
    return [f]
def sm_exp(t):
    S = vS + 16 * (t % 2); P = vP + 8 * (t % 2)
    it = [f'v_exp_f32 v{S}, v{S}', f'v_exp_f32 v{S+1}, v{S+1}']
    for p in range(8):
        if p < 7: it += [f'v_exp_f32 v{S+2*p+2}, v{S+2*p+2}', f'v_exp_f32 v{S+2*p+3}, v{S+2*p+3}']
        it.append(f'v_cvt_pk_bf16_f32 v{P+p}, v{S+2*p}, v{S+2*p+1}')
    return it
def rd_wo(j):
    w_, o = win(WOG[j] * 32768)
    it = []
    for oth in range(2):
        for f in range(8):
            d = aWO + 64 * (j % 2) + (oth * 8 + f) * 4
            for sec in range(2):
                it.append(f'ds_read_b64_tr_b16 {ar(d+2*sec, 2)}, v{vWOR + 2*w_ + oth} offset:{o + f*2048 + sec*1024}')
    return it
def mf_o(j):
    acc = vS + 16 * (j % 2)
    it = []
    for oth in range(2):
        for f in range(8):
            d = aWO + 64 * (j % 2) + (oth * 8 + f) * 4
            b = vr(vQ + 4 * f, 4) if oth == 0 else ar(aOO + 4 * f, 4)
            c = '0' if (oth == 0 and f == 0) else vr(acc, 16)
            it.append(f'{MF} {vr(acc, 16)}, {ar(d, 4)}, {b}, {c}')
    return it
def ep_o(j):
    acc = vS + 16 * (j % 2); P = vP + 8 * (j % 2)
    it = []
    for h in range(2):
        for p in range(4):
            it.append(f'v_cvt_pk_bf16_f32 v{P+4*h+p}, v{acc+8*h+2*p}, v{acc+8*h+2*p+1}')
        off = ' offset:1024' if h else ''
        if not opts['nost'] and not (opts['half'] and j in (1, 2, 3, 4)): it.append((f'buffer_store_dwordx4 {vr(P+4*h, 4)}, v{vSTV}, {sr(SWS)}, s{sTILE+j} offen{off} {opts["st"]}', f'ST{j}'))
    return it
def publish(j):
    def f():
        if opts['one_flag']:
            FLS = opts['fls']
            if j == 8 or (opts['two'] and j == opts['two']):
                e.wait_vm({f'ST{j}'})
                so = '0' if j == 8 else f's{sFL}'
                e(f'buffer_store_dwordx2 {vr(vE, 2)}, v{vFLV}, {sr(SFL)}, {so} offen {opts["fp"]}', 'FL')
            return
        e.wait_vm({f'ST{j}'})
        so, off = ('0', j * 512) if j < 8 else (f's{sFL}', 0)
        e(f'buffer_store_dwordx2 {vr(vE, 2)}, v{vFLV}, {sr(SFL)}, {so} offen offset:{off} sc1', 'FL')
    return [f]

K = NAME + '_kernel'
e.raw(f'.globl {K}\n.p2align 8\n.type {K},@function\n{K}:')
e('s_cmp_ge_u32 s2, 256')
e('s_cbranch_scc1 L_end')
e('s_load_dwordx8 s[4:11], s[0:1], 0')
e('s_load_dwordx8 s[12:19], s[0:1], 32')
e('s_memrealtime s[100:101]')
if PROF: e(f'{TM} s[96:97]')
if opts['cpf']:
    e('s_getpc_b64 s[98:99]')
    e.label('L_pc')
    e('s_lshr_b32 s3, s2, 3')
    e('v_lshl_add_u32 v9, s3, 4, v0')
    e('v_lshlrev_b32 v9, 7, v9')
    e(f'v_min_u32 v9, L_textend-L_pc-4, v9')
    e('v_cmp_gt_u32 vcc, 16, v0')
    e('s_and_saveexec_b64 s[20:21], vcc')
    e('s_cbranch_execz L_nocpf')
    e.raw('    global_load_dword v12, v9, s[98:99]')
    e.label('L_nocpf')
    e('s_mov_b64 exec, -1')
e('v_lshrrev_b32 v1, 6, v0')
e(f's_lshr_b32 s{sB}, s2, 4')
e(f'v_readfirstlane_b32 s{sW}, v1')
e(f's_sub_u32 s{sT0}, s{sB}, 9')
e(f's_cselect_b32 s3, s{sB}, s{sT0}')
e(f's_lshl_b32 s{sWQ}, s3, 19')
e(f's_lshl_b32 s{sXO}, s3, 7')
e(f's_mul_i32 s{sT0}, s{sB}, 73728')
e(f's_lshl_b32 s{sM0W}, s{sW}, 11')
e('v_bfe_u32 v2, v0, 3, 3')
e('v_and_b32 v3, 7, v0')
e('v_lshrrev_b32 v6, 1, v2')
e('v_xor_b32 v7, v3, v6')
e('v_lshlrev_b32 v7, 4, v7')
e('v_mul_u32_u24 v8, 1152, v2')
e('v_mul_u32_u24 v9, 18432, v1')
e('v_add_u32 v9, v9, v8')
e(f'v_add_u32 v{vXa}, v9, v7')
e('v_xor_b32 v7, 64, v7')
e(f'v_add_u32 v{vXb}, v9, v7')
e(f'v_add_u32 v{vXb}, 8192, v{vXb}')
e(f's_and_b32 s{sHKV}, s2, 7')
e(f's_lshl_b32 s{sHKV}, s{sHKV}, 1')
e(f's_bfe_u32 s{sT2}, s2, 0x10003')
e(f's_add_u32 s{sHKV}, s{sHKV}, s{sT2}')
e(f's_lshl_b32 s{sM0Q}, s{sW}, 12')
e(f's_lshl_b32 s{sT2}, s{sHKV}, 9')
e('v_bfe_u32 v4, v0, 4, 2')
e('v_and_b32 v5, 15, v0')
e('v_lshlrev_b32 v7, 2, v4')
e('v_xor_b32 v7, v5, v7')
e('v_lshlrev_b32 v7, 4, v7')
e('v_lshl_add_u32 v9, v4, 13, v7')
e('v_lshrrev_b32 v10, 1, v1')
e('v_lshl_add_u32 v9, v10, 17, v9')
e('v_and_b32 v10, 1, v1')
e(f'v_lshl_add_u32 v{vWQV}, v10, 8, v9')
for p in range(1, 4): e(f'v_add_u32 v{vWQV+p}, {p*31744}, v{vWQV}')
def pmark(i):
    if opts['pp0']:
        e(f'{TM} s[98:99]'); e('s_waitcnt lgkmcnt(0)'); e(f'v_writelane_b32 v{vPB}, s98, {i}')
e('s_waitcnt lgkmcnt(0)')
pmark(54)
if opts['wqfirst']:
    mk_srd(SWQ, 10, f's{sT2}', 4718592 - 15 * 512)
    put(wq_stage(0)); put(wq_stage(1))
    mk_srd(SX, 4, f's{sT0}', 73728)
    put(xt(0)); put(xt(1))
else:
    mk_srd(SX, 4, f's{sT0}', 73728)
    put(xt(0))
    mk_srd(SWQ, 10, f's{sT2}', 4718592 - 15 * 512)
    put(wq_stage(0))
    put(xt(1)); put(wq_stage(1))
pmark(55)
e('v_lshl_add_u32 v9, v4, 8, v7')
e(f'v_lshl_add_u32 v{vVc}, v1, 11, v9')
e('v_xor_b32 v7, v5, v4')
e('v_lshlrev_b32 v7, 4, v7')
e('v_lshl_add_u32 v9, v4, 8, v7')
e('v_lshlrev_b32 v10, 7, v10')
e('v_xor_b32 v9, v9, v10')
e(f'v_lshl_add_u32 v{vKa}, v1, 11, v9')
e(f'v_xor_b32 v{vKb}, 64, v{vKa}')
for t in range(16): e(f's_mov_b32 s{sTILE+t}, {t*8192}')
e(f's_lshl_b32 s{sM0T}, s{sW}, 13')
e(f's_lshr_b32 s{sROT}, s{sB}, 1')
e(f's_lshl_b32 s{sWO}, s{sROT}, 7')
e(f's_lshl_b32 s{sJOB}, s{sB}, 4')
e(f's_add_u32 s{sJOB}, s{sJOB}, s{sHKV}')
e(f's_lshl_b32 s3, s{sJOB}, 17')
mk_srd(SK, 6, 's3', 131072)
mk_srd(SV, 8, 's3', 131072)
mk_srd(SDBG, 16, None, 256)
e('s_cmp_lg_u32 s2, 0')
e('s_cbranch_scc1 L_noepoch')
e('v_lshlrev_b32 v9, 8, v0')
e('v_mov_b32 v10, s100'); e('v_mov_b32 v11, s101')
e(f'buffer_store_dwordx2 v[10:11], v9, {sr(SDBG)}, 0 offen sc1')
e.vm['A'].pop(); e.vm['B'].pop()
e.label('L_noepoch')

if opts['krot']:
    e(f's_mul_i32 s3, s{sJOB}, {opts["krot"]}')
    e(f's_lshr_b32 s{sT0}, s{sJOB}, 4')
    e(f's_add_u32 s3, s3, s{sT0}')
    e('s_lshl_b32 s3, s3, 13')
    for t in range(16):
        e(f's_add_u32 s{sTILE+t}, s3, {t*8192}')
        e(f's_and_b32 s{sTILE+t}, s{sTILE+t}, 0x1e000')
e(f's_mul_i32 s3, s{sHKV}, 294912')
mk_srd(SWO, 12, 's3', 294912)
e(f's_mul_i32 s3, s{sJOB}, 73728')
mk_srd(SWS, 18, 's3', 73728)
FB = (128 << opts['fls']) if opts['one_flag'] else 36 * FG
e(f's_mul_i32 s3, s{sB}, {FB}')
e(f's_add_u32 s3, s3, {FL_OFF}')
mk_srd(SFL, 18, 's3', FB)
e(f's_mul_i32 s3, s{sB}, {16*73728}')
mk_srd(SPR, 18, 's3', 16 * 73728)
e(f's_mul_i32 s3, s{sB}, 73728')
mk_srd(SOUT, 14, 's3', 73728)
sc = math.log2(math.e) / math.sqrt(128.0)
e(f's_mov_b32 s{sSC}, {f32(sc)}'); e(f's_mov_b32 s{sSC+1}, {f32(sc)}')
e('v_bfe_u32 v9, v0, 5, 1')
e('v_and_b32 v10, 31, v0')
e('v_bfe_u32 v11, v0, 2, 2')
e('v_and_b32 v7, 3, v0')
e('v_bfe_u32 v13, v0, 4, 1')
e('v_and_b32 v14, 1, v1')
e('v_lshl_add_u32 v14, v14, 5, v10')
e('v_bfe_u32 v15, v14, 1, 3')
e('v_xor_b32 v15, v15, v9')
e('v_lshlrev_b32 v15, 4, v15')
e(f'v_lshl_add_u32 v{vXRD}, v14, 7, v15')
for ks in range(1, 4): e(f'v_xor_b32 v{vXRD+ks}, {ks*32}, v{vXRD}')
for ks in range(4): e(f'v_add_u32 v{vXRD+4+ks}, 0x10000, v{vXRD+ks}')
e('v_lshrrev_b32 v14, 1, v1')
e('v_lshlrev_b32 v14, 12, v14')
e('v_lshl_add_u32 v14, v9, 11, v14')
e('v_lshl_add_u32 v14, v11, 8, v14')
e('v_lshl_add_u32 v14, v11, 6, v14')
e('v_lshl_add_u32 v14, v13, 5, v14')
e('v_and_b32 v15, 1, v7')
e('v_lshl_add_u32 v14, v15, 4, v14')
e('v_lshrrev_b32 v15, 1, v7')
e('v_lshl_add_u32 v14, v15, 3, v14')
e(f'v_add_u32 v{vWQR}, 0x10000, v14')
for u in range(1, 4): e(f'v_xor_b32 v{vWQR+u}, {u*64}, v{vWQR}')
for u in range(4): e(f'v_add_u32 v{vWQR+4+u}, 0x10000, v{vWQR+u}')
e('v_xor_b32 v14, v9, v5')
e('v_lshlrev_b32 v14, 4, v14')
e(f'v_lshl_add_u32 v{vKR}, v10, 8, v14')
for s in range(1, 8): e(f'v_xor_b32 v{vKR+s}, {s*32}, v{vKR}')
for w_ in (1, 2):
    for s in range(8): e(f'v_add_u32 v{vKR+8*w_+s}, {w_*0x10000}, v{vKR+s}')
e('v_lshlrev_b32 v14, 10, v9')
e('v_lshl_add_u32 v14, v11, 8, v14')
e('v_lshl_add_u32 v14, v11, 6, v14')
e('v_lshl_add_u32 v14, v13, 5, v14')
e(f'v_lshl_add_u32 v{vVR}, v7, 3, v14')
for t in range(1, 4): e(f'v_xor_b32 v{vVR+t}, {t*64}, v{vVR}')
for w_ in (1, 2):
    for t in range(4): e(f'v_add_u32 v{vVR+4*w_+t}, {w_*0x10000}, v{vVR+t}')
e('v_lshrrev_b32 v4, 1, v1')
e('v_lshlrev_b32 v14, 9, v9')
e('v_lshl_add_u32 v14, v11, 7, v14')
e('v_lshrrev_b32 v15, 1, v11')
e('v_xor_b32 v15, v15, v4')
e('v_lshl_add_u32 v14, v15, 6, v14')
e('v_and_b32 v15, 1, v7')
e('v_lshl_add_u32 v14, v15, 5, v14')
e('v_lshl_add_u32 v14, v13, 4, v14')
e('v_lshrrev_b32 v15, 1, v7')
e('v_lshl_add_u32 v14, v15, 3, v14')
e(f'v_lshl_add_u32 v{vWOR}, v4, 14, v14')
e(f'v_xor_b32 v{vWOR+1}, 0x4000, v{vWOR}')
for w_ in (1, 2):
    for o in range(2): e(f'v_add_u32 v{vWOR+2*w_+o}, {w_*0x10000}, v{vWOR+o}')
e('v_and_b32 v14, 63, v0')
e(f'v_lshlrev_b32 v{vL16}, 4, v14')
e(f'v_lshl_add_u32 v{vXW}, v1, 13, v{vL16}')
e(f'v_add_u32 v{vXW}, {XG*32768}, v{vXW}')
e(f'v_xor_b32 v{vXR}, 0x4000, v{vXW}')
e(f'v_lshl_add_u32 v{vSTV}, v1, 11, v{vL16}')
if opts['full']:
    e('v_lshrrev_b32 v14, 4, v14')
    e('v_lshlrev_b32 v14, 20, v14')
    e('v_lshl_add_u32 v14, v5, 3, v14')
else: e(f'v_lshlrev_b32 v14, 20, v14')
e(f'v_lshl_add_u32 v14, v1, {opts["fls"] if opts["one_flag"] else FSH+4}, v14')
e(f's_lshl_b32 s3, s{sHKV}, {opts["fls"]+2 if opts["one_flag"] else FSH}')
e(f'v_add_u32 v{vFLV}, s3, v14')
e('v_and_b32 v14, 1, v6')
e('v_lshlrev_b32 v14, 2, v14')
e('v_xor_b32 v14, v14, v3')
e('v_lshl_add_u32 v14, v14, 4, v8')
e('v_mul_u32_u24 v15, 73728, v1')
e(f'v_add_u32 v{vWOV}, v14, v15')
for p in range(1, 4): e(f'v_add_u32 v{vWOV+p}, {p*8192}, v{vWOV}')
e('v_bfe_u32 v14, v0, 2, 1')
e('v_cmp_eq_u32 vcc, v14, v13')
e('v_mov_b32 v14, 0x3f803f80')
e('v_cndmask_b32 v14, 0, v14, vcc')
for i in range(4): e(f'v_accvgpr_write_b32 a{aONE+i}, v14')
e('v_and_b32 v14, 1, v0')
e('v_lshlrev_b32 v14, 4, v14')
e('v_lshlrev_b32 v14, v14, 0x3f80'.replace('v14, 0x3f80', 'v14, v15') if False else 'v_mov_b32 v15, 0x3f80')
e('v_lshlrev_b32 v14, v14, v15')
e('v_bfe_u32 v15, v0, 2, 1')
e('v_xor_b32 v15, v15, v9')
e('v_or_b32 v15, v15, v13')
e('v_lshlrev_b32 v15, 3, v15')
e('v_bfe_u32 v2, v0, 3, 1')
e('v_bfe_u32 v3, v0, 1, 1')
e('v_lshl_add_u32 v2, v2, 1, v3')
e('v_add_u32 v2, v2, v15')
for d in range(4):
    e(f'v_cmp_eq_u32 vcc, {d}, v2')
    e(f'v_cndmask_b32 v3, 0, v14, vcc')
    e(f'v_accvgpr_write_b32 a{aPERM+d}, v3')

def qcvt(u):
    it = []
    for p in range(8):
        r = vO + 16 * u + 2 * p
        if opts['pk']: it.append(f'v_pk_mul_f32 {vr(r, 2)}, {vr(r, 2)}, s[{sSC}:{sSC+1}]')
        else: it += [f'v_mul_f32 v{r}, s{sSC}, v{r}', f'v_mul_f32 v{r+1}, s{sSC}, v{r+1}']
    for p in range(8):
        r = vO + 16 * u + 2 * p
        it.append(f'v_cvt_pk_bf16_f32 v{vQ+8*u+p}, v{r}, v{r+1}')
    return it
def X(*js): return sum((xt(j) for j in js), [])
def KVs(*ns): return sum((kv(n) for n in ns), [])
def RX(*js): return sum((rd_x(j) for j in js), [])
if opts['rtrace']: e(f'v_mov_b32 v{vPA}, 0')
pmark(59)
put(X(2, 3, 4)); bar({'X0', 'X1', 'WQ0'}, False)
put(RX(0, 1) + rd_wq(0))
put(X(5, 6, 7)); bar({'WQ1', 'X2'})
e.weave(mf_q(0), [(rd_wq(1) + RX(2), -1, 6)])

def group_body(g):
    e.roles = [g]; set_group(g)
    WOG[0] = 4 if g == 'A' else 3
    B1 = opts['b1']
    if g == 'A':
        put(X(8) + KVs(0, 1)); bar({'X3', 'X4', 'X5'})
        e.weave(mf_q(1), [(RX(3, 4, 5), -1, 4)])
        put(KVs(2, 3, 4)); bar({'X6', 'X7', 'X8'})
        put(RX(6, 7, 8))
        put(KVs(*range(5, min(B1, 11)))); bar(set())
        put(KVs(*range(11, B1)))
        put(wq_stage(2) + wq_stage(3) + wq_stage(4))
        qplan = {}
        nxt = B1
        cnt = [int(x) for x in opts['apl'].split(',')]
        wot = [int(x) for x in opts['awo'].split(',')]
        rdt = tuple(int(x) for x in opts['ard'].split(','))
    else:
        put(X(8) + wq_stage(2)); bar({'X3', 'X4', 'X5'})
        e.weave(mf_q(1), [(RX(3, 4, 5), -1, 4)])
        put(wq_stage(3) + wq_stage(4)); bar({'X6', 'X7', 'X8'})
        put(RX(6, 7, 8))
        bar(set())
        LA = opts['la']
        qplan = {14: [0, 1], 15: [2, 3], 16: [4, 5], 17: list(range(6, LA - 1))}
        nxt = LA - 1
        cnt = [1] + [2] * 15
        wot = [int(x) for x in opts['bwo'].split(',')]
        rdt = tuple(int(x) for x in opts['brd'].split(','))
    bar({'WQ2'})
    put(rd_wq(2))
    bar({'WQ3'})
    for s in range(2, 18):
        d = []
        if s + 3 < 18: d += wq_stage(s + 3)
        d += KVs(*qplan.get(s, []))
        if s < 17:
            e.weave(mf_q(s), [(rd_wq(s + 1), -1, 6)] + ([(d, 0, 8)] if d else []))
            tags = set()
            if s + 2 < 18: tags.add(f'WQ{s+2}')
            if s == 16 and g == 'A': tags.add('K0')
            bar(tags)
        elif g == 'A':
            e.weave(mf_q(s, [(ks, u) for u in range(4) for ks in range(2)]),
                    [(rd_k(0), -1, 3), (qcvt(0), 4, 6), (qcvt(1), 6, 8)])
            mark()
            qk0 = mf_qk(0)
            e.weave(qk0[:4], [(qcvt(2), 0, 2), (qcvt(3), 2, 4)])
            e.weave(qk0[4:], [])
        else:
            e.weave(mf_q(s, [(ks, u) for u in range(4) for ks in range(2)]),
                    [(d, 0, 4), (qcvt(0), 4, 6), (qcvt(1), 6, 8)])
            put(qcvt(2) + qcvt(3))
            bar({'K0'})
            put(rd_k(0))
            put(mf_qk(0))
    bar({'K1', 'V0'})
    WORD = {rdt[0]: rd_wo(0)[:16], rdt[0]+1: rd_wo(0)[16:], rdt[1]: rd_wo(1)[:16], rdt[1]+1: rd_wo(1)[16:]}
    assert wot[1] < rdt[0] and wot[3] < rdt[1] and wot[4] >= rdt[0] + 2 and wot[6] >= rdt[1] + 2 and wot[8] >= 12 and wot[10] >= 14
    if g == 'A': assert wot[2] >= rdt[0] + 2 and wot[4] >= 7
    cnt += [2] * 16
    for t in range(16):
        d = []
        for _ in range(cnt[t]):
            if nxt < 32:
                assert nxt < 12 or (nxt - 12 + 1) // 2 <= t, (g, nxt, t)
                assert (nxt - 2 + 1) // 2 > t, (g, nxt, t)
                d += kv(nxt); nxt += 1
        for hi, tt_ in enumerate(wot):
            if tt_ == t: d += wo_half(hi // 2, hi % 2)
        if t == opts['tlb']:
            d += [f'v_lshlrev_b32 v1, {opts["tsh"]}, v0',
                  (f'buffer_load_dword v218, v1, {sr(SFL)}, 0 offen', 'TL'),
                  (f'buffer_load_dword v219, v1, {sr(SPR)}, 0 offen', 'TL'),
                  (f'buffer_load_dword v220, v1, {sr(SOUT)}, 0 offen', 'TL')]
        if t == 7:
            d += ['v_mov_b32 v1, 0', (f'buffer_load_dwordx2 {vr(vE, 2)}, v1, {sr(SDBG)}, 0 offen sc1', 'EP')]
        if t == 0:
            put(d); put(rd_k(1)); put(sm_max(0))
            e(f'v_mov_b32 v{vMX+1}, v{vMX}')
            e(f'v_permlane32_swap_b32 v{vMX}, v{vMX+1}')
            e(f'v_max_f32 v{vMX}, v{vMX}, v{vMX+1}')
            for r in range(16): e(f'v_sub_f32 v{vNM+r}, 0, v{vMX}')
            sub = [f'v_sub_f32 v{vS+r}, v{vS+r}, v{vMX}' for r in range(16)]
            e('s_waitcnt lgkmcnt(0)')
            e.weave(mf_qk(1), [(rd_v(0), 0, 6), (sub + sm_exp(0), 0, 8)])
        elif t < 15:
            sm = sm_max(t) + sm_check(t) + sm_exp(t)
            kw = lambda: e.need_regs(ar(aK + 28, 4))
            kw.cost = 4
            X_ = opts['x_']
            if X_ & 1: sm = [i for i in sm if callable(i) or not i.startswith('v_exp')]
            if X_ & 2: sm = [i for i in sm if callable(i) or not i.startswith('v_cvt')]
            if X_ & 4: sm = [i for i in sm if not callable(i) and not i.startswith('v_max')]
            rk, rv = rd_k(t + 1), rd_v(t)
            if X_ & 8: rk = []
            if X_ & 16: rv = []
            streams = [(rk, 0, 8), (rv + WORD.get(t, []), 1, 16), (sm, 1, 18), (d, 0, 17), ([kw], 9, 10)]
            e.weave2(mf_pv(t - 1) + mf_qk(t + 1), streams, opts['slack'])
        else:
            sm = sm_max(t) + sm_check(t) + sm_exp(t)
            e.weave2(mf_pv(14), [(rd_v(15), 0, 8), (sm, 1, 10), (d, 0, 10)])
        if t < 15:
            tags = {f'K{t+2}', f'V{t+1}'}
            if t == rdt[0] - 1: tags.add('WO0')
            if t == rdt[1] - 1: tags.add('WO1')
            if t == 14: tags.add('EP')
            bar(tags)
    assert nxt == 32

e(f's_and_b32 s3, s{sB}, {opts["gmask"]}')
e('s_cbranch_scc0 L_grpA')
S0 = e.S.clone(); nb0 = nbar[0]
group_body('B')
e('s_branch L_common')
SB = e.S; nb1 = nbar[0]; nbar[0] = nb0
e.label('L_grpA')
e.S = S0
group_body('A')
assert nbar[0] == nb1
e.label('L_common')
e.S = Emit.merge_states(e.S, SB)
e.roles = ['A', 'B']
e(f'v_or_b32 v1, v{vE}, v{vE+1}')
e('v_cmp_eq_u32 vcc, 0, v1')
e('s_cbranch_vccnz L_epoch_spin')
e.label('L_epoch_ok')
P15 = vP + 8
seq = [mf_l(15, 0), mf_l(15, 1)]
for tt in range(4):
    for a in range(2):
        seq.append(f'{MF} {vr(vO+16*tt, 16)}, {ar(aVB(15) + (a*4+tt)*4, 4)}, {vr(P15+4*a, 4)}, {vr(vO+16*tt, 16)}')
def norm(tt):
    it = []
    for a in range(2):
        for p in range(4 * a, 4 * a + 4):
            r = vO + 16 * tt + 2 * p
            if opts['pk']: it.append(f'v_pk_mul_f32 {vr(r, 2)}, {vr(r, 2)}, {vr(vINV, 2)} op_sel_hi:[1,0]')
            else: it += [f'v_mul_f32 v{r}, v{vINV}, v{r}', f'v_mul_f32 v{r+1}, v{vINV}, v{r+1}']
        for p in range(4 * a, 4 * a + 4):
            r = vO + 16 * tt + 2 * p
            it.append(f'v_cvt_pk_bf16_f32 v{vQ+8*tt+p}, v{r}, v{r+1}')
        f = 2 * tt + a
        it.append(f'ds_write_b128 v{vXW}, {vr(vQ+4*f, 4)} offset:{f*1024}')
    return it
mo0 = mf_o(0); mo1 = mf_o(1)
own = sum(([mo0[f], mo1[f]] for f in range(8)), [])
e('s_waitcnt lgkmcnt(0)'); e('s_barrier')
e.weave(seq + own[:12], [([f'v_rcp_f32 v{vINV}, v{vL}'], 4, 5),
                         (norm(0), 5, 9), (norm(1), 9, 13), (norm(2), 13, 17), (norm(3), 17, 21)])
bar({'WO2'})
sU, sCNT, sTODO, sRDY, sI, sOFF, sUA, sLB, sOO, sOM, sMB = 20, 21, 22, 23, 24, 25, 26, 27, 28, 29, 32
vMV, vMR, vMO = 212, 213, 214
red_setup = [
    f's_lshl_b32 s{sU}, s{sW}, 4', f's_add_u32 s{sU}, s{sU}, s{sHKV}',
    f's_lshl_b32 s{sUA}, s{sU}, 10',
    f's_lshr_b32 s{sOO}, s{sU}, 3', f's_add_u32 s{sOO}, s{sOO}, s{sROT}',
    lambda: (e(f's_sub_u32 s{sI}, s{sOO}, 9'), e(f's_cselect_b32 s{sOO}, s{sOO}, s{sI}')),
    f's_lshl_b32 s{sOO}, s{sOO}, 7',
    f's_bfe_u32 s{sI}, s{sU}, 0x10001', f's_mul_i32 s{sI}, s{sI}, 36864', f's_add_u32 s{sOO}, s{sOO}, s{sI}',
    f's_bfe_u32 s{sI}, s{sU}, 0x10002', f's_lshl_b32 s{sI}, s{sI}, 6', f's_add_u32 s{sOO}, s{sOO}, s{sI}',
    f's_and_b32 s{sI}, s{sU}, 1', f's_lshl_b32 s{sI}, s{sI}, 4', f's_add_u32 s{sOO}, s{sOO}, s{sI}',
    lambda: (e(f's_sub_u32 s{sOM}, s{sROT}, 1'), e(f's_cselect_b32 s{sOM}, 8, s{sOM}')),
    f's_lshl_b32 s{sOM}, s{sOM}, 7',
    f's_and_b32 s{sI}, s{sW}, 1', f's_mul_i32 s{sI}, s{sI}, 36864', f's_add_u32 s{sOM}, s{sOM}, s{sI}',
    f's_and_b32 s{sI}, s{sHKV}, 3', f's_mul_i32 s{sI}, s{sI}, 9216', f's_add_u32 s{sOM}, s{sOM}, s{sI}',
    f's_lshr_b32 s{sI}, s{sW}, 1', f's_lshl_b32 s{sI}, s{sI}, 6', f's_add_u32 s{sOM}, s{sOM}, s{sI}',
    f's_bfe_u32 s{sI}, s{sHKV}, 0x10002', f's_lshl_b32 s{sI}, s{sI}, 5', f's_add_u32 s{sOM}, s{sOM}, s{sI}',
    f's_lshr_b32 s{sI}, s{sHKV}, 3', f's_lshl_b32 s{sI}, s{sI}, 4', f's_add_u32 s{sOM}, s{sOM}, s{sI}',
    f's_lshl_b32 s{sMB}, s{sU}, 7', f's_add_u32 s{sMB}, s{sMB}, 65536',
    f's_mov_b32 s{sTODO}, -1',
] + ([
    f's_bfe_u32 s{sI}, s{sU}, 0x20001', f's_lshl_b32 s{sI}, s{sI}, {opts["fls"]}',
] + ([lambda: (e(f's_cmp_lt_u32 s{sU}, {8*(opts["two"]+1)}'), e(f's_cselect_b32 s{sOFF}, s{sFL}, 0')), f's_add_u32 s{sI}, s{sI}, s{sOFF}'] if opts['two'] else []) + [
    f's_lshl_b32 s{sOFF}, s{sW}, {opts["fls"]}', f's_sub_u32 s{sOFF}, s{sOFF}, s{sI}',
    'v_and_b32 v1, 15, v0', f'v_lshlrev_b32 v1, {opts["fls"]+2}, v1', f'v_add_u32 v1, s{sI}, v1',
    'v_bfe_u32 v2, v0, 4, 1', f'v_mul_lo_u32 v2, s{sOFF}, v2', 'v_add_u32 v1, v1, v2',
] if opts['one_flag'] else [
    f's_lshr_b32 s{sI}, s{sU}, 1', f's_lshl_b32 s{sI}, s{sI}, 7',
    f's_lshl_b32 s{sOFF}, s{sW}, 7', f's_add_u32 s{sOFF}, s{sOFF}, 4096', f's_sub_u32 s{sOFF}, s{sOFF}, s{sI}',
    'v_and_b32 v1, 15, v0', 'v_lshlrev_b32 v1, 3, v1', f'v_add_u32 v1, s{sI}, v1',
    'v_bfe_u32 v2, v0, 4, 1', f'v_mul_u32_u24 v2, s{sOFF}, v2', 'v_add_u32 v1, v1, v2',
]) + [
    f's_mul_i32 s{sLB}, s{sW}, 18432', f's_add_u32 s{sLB}, s{sLB}, {RG*32768}',
    f'v_add_u32 v3, s{sLB}, v{vL16}',
    'v_and_b32 v2, 31, v0', 'v_lshlrev_b32 v7, 20, v2', 'v_mul_u32_u24 v2, 1152, v2', 'v_bfe_u32 v6, v0, 5, 1', 'v_lshl_add_u32 v2, v6, 5, v2',
    'v_mul_u32_u24 v8, 2304, v6', f'v_add_u32 v{vMO}, v7, v8',
    'v_bfe_u32 v7, v0, 3, 3', 'v_mul_u32_u24 v7, 73728, v7', 'v_and_b32 v8, 7, v0', f'v_lshl_add_u32 v{vMV}, v8, 4, v7',
    'v_lshlrev_b32 v7, 10, v6', 'v_bfe_u32 v8, v0, 2, 2', 'v_lshl_add_u32 v7, v8, 7, v7',
    'v_and_b32 v8, 1, v0', 'v_lshl_add_u32 v7, v8, 5, v7', 'v_bfe_u32 v8, v0, 4, 1', 'v_lshl_add_u32 v7, v8, 4, v7',
    'v_bfe_u32 v8, v0, 1, 1', 'v_lshl_add_u32 v7, v8, 3, v7', f'v_add_u32 v{vMR}, s{sLB}, v7',
    f's_mov_b32 s{sCNT}, {opts["spin"]}',
] + [f'v_mov_b32 v{vNM+i}, 0x3f803f80' for i in range(4)]
OPLAN = {2: [(6, 0), (6, 1)], 3: [(7, 0), (7, 1)], 4: [(8, 0), (8, 1)]}
LAG = opts['lag']
pub = 0
r2 = rd_wo(2)
e.weave(own[12:] + mo0[8:] + mo1[8:],
        [([f'ds_read_b128 {ar(aOO+4*f, 4)}, v{vXR} offset:{f*1024}' for f in range(8)], -1, 1),
         (r2[:16], 4, 12), (r2[16:], 12, 18), (ep_o(0), 14, 20)])
mark()
bar({'WO3'})
nrs = (len(red_setup) + 2) // 3
for j in range(2, 9):
    streams = []
    if j in OPLAN: streams.append((sum((wo_half(*h) for h in OPLAN[j]), []), -1, 10))
    if j < 8: streams.append((rd_wo(j + 1), 0, 14))
    ep = ep_o(j - 1)
    if j - 1 - LAG >= 0: ep += publish(pub); pub += 1
    streams.append((ep, 8 if j in OPLAN else 3, 16 if j in OPLAN else 12))
    if j in (5, 6, 7): streams.append((red_setup[(j-5)*nrs:(j-4)*nrs], 0, 16))
    if j == 8 and opts['r0'] == 1: streams.append(([(f'buffer_load_dwordx2 v[4:5], v1, {sr(SFL)}, 0 offen sc1', 'POLL')], opts['pg'], opts['pg'] + 1))
    e.weave(mf_o(j), streams)
    if j < 7: bar({f'WO{j+2}'})
put(ep_o(8))
mark()
def masked_round():
    e(f's_mov_b32 s{sOFF}, s{sUA}')
    for h in range(16):
        if h % 4 == 0: e(f's_add_u32 m0, s{sLB}, {h*1024}')
        e(f's_bitcmp1_b32 s{sRDY}, {h}')
        e('s_cselect_b64 exec, -1, 0')
        off = f' offset:{(h%4)*1024}' if h % 4 else ''
        if opts['thr'] and h >= opts['thr']: e(f's_waitcnt vmcnt({opts["thr"]-1})')
        e(f'buffer_load_dwordx4 v{vL16}, {sr(SPR)}, s{sOFF} offen{off} {opts["ld"]} lds', 'RD')
        if h < 15: e(f's_add_u32 s{sOFF}, s{sOFF}, {73728 - 1024 if h % 4 != 3 else 73728 + 3072}')
    e('s_mov_b64 exec, -1')
if opts['r0'] == 2: e(f'buffer_load_dwordx2 v[4:5], v1, {sr(SFL)}, 0 offen sc1', 'POLL')
if opts['r0'] == 1:
    e.wait_vm({'POLL'})
    e(f'v_cmp_eq_u64 vcc, v[4:5], {vr(vE, 2)}')
    e('s_nop 0')
    e(f's_and_b32 s{sRDY}, vcc_lo, 0xffff')
    e(f's_andn2_b32 s{sTODO}, s{sTODO}, s{sRDY}')
    masked_round()
while pub < 9: put(publish(pub)); pub += 1
mark()
if opts['r0'] == 2:
    e.wait_vm({'POLL'})
    e('s_branch L_chk')
e.label('L_poll')
e.S = State()
if opts['sleep']: e(f's_sleep {opts["sleep"]}')
e(f'buffer_load_dwordx2 v[4:5], v1, {sr(SFL)}, 0 offen {opts["pp"]}')
e(f's_sub_u32 s{sCNT}, s{sCNT}, 1')
e('s_cbranch_scc1 L_go')
e('s_waitcnt vmcnt(0)')
e.label('L_chk')
e(f'v_cmp_eq_u64 vcc, v[4:5], {vr(vE, 2)}')
e('s_nop 0')
if opts['rtrace']:
    e('s_memrealtime s[98:99]'); e('s_waitcnt lgkmcnt(0)')
    e(f's_sub_u32 s30, {opts["spin"]}, s{sCNT}')
    e('s_min_u32 s30, s30, 30')
    e(f's_and_b32 s31, vcc_lo, s{sTODO}')
    e('s_mov_b32 m0, s30')
    e(f'v_writelane_b32 v{vPA}, s98, m0')
    e('s_add_u32 m0, s30, 31')
    e(f'v_writelane_b32 v{vPA}, s31, m0')
e(f's_and_b32 s{sRDY}, vcc_lo, s{sTODO}')
if opts['allrdy'] == 1:
    e(f's_cmp_eq_u32 s{sRDY}, -1')
    e('s_cbranch_scc0 L_poll')
if opts['allrdy'] == 2:
    e(f's_and_b32 s{sI}, s{sRDY}, 0xffff')
    e(f's_cmp_eq_u32 s{sI}, 0xffff')
    e(f's_cselect_b32 s{sI}, -1, 0xffff0000')
    e(f's_and_b32 s{sRDY}, s{sRDY}, s{sI}')
e(f's_cmp_ge_u32 s{sRDY}, 0xffff0000')
e('s_cbranch_scc0 L_nomini')
e(f's_add_u32 m0, s{sLB}, 16384')
e(f's_add_u32 s{sOFF}, s{sMB}, {8*73728 - 1024}')
e(f'buffer_load_dwordx4 v{vMV}, {sr(SPR)}, s{sMB} offen {opts["ld"]} lds')
e(f'buffer_load_dwordx4 v{vMV}, {sr(SPR)}, s{sOFF} offen offset:1024 {opts["ld"]} lds')
e(f's_and_b32 s{sTODO}, s{sTODO}, 0xffff')
e.label('L_nomini')
e(f's_and_b32 s{sRDY}, s{sRDY}, 0xffff')
e('s_cbranch_scc0 L_noround')
e(f's_andn2_b32 s{sTODO}, s{sTODO}, s{sRDY}')
masked_round()
e.label('L_noround')
e(f's_cmp_lg_u32 s{sTODO}, 0')
e('s_cbranch_scc1 L_poll')
e.label('L_go')
mark()
e('s_waitcnt vmcnt(0)')
mark()
for m in range(2):
    for sec in range(2): e(f'ds_read_b64_tr_b16 {ar(64+4*m+2*sec, 2)}, v{vMR} offset:{16384 + m*64 + sec*512}')
for h in range(16): e(f'ds_read_b128 {ar(4*h, 4)}, v3 offset:{h*1024}')
for m in range(2): e(f'{MF} {vr(vO+16*m, 16)}, {ar(64+4*m, 4)}, {vr(vNM, 4)}, 0')
mini = []
for m in range(2):
    for c in range(2):
        d = vO + 32 + 8 * m + 4 * c
        mini += [f'v_cvt_pk_bf16_f32 v{d+p}, v{vO+16*m+8*c+2*p}, v{vO+16*m+8*c+2*p+1}' for p in range(4)]
        if m == 1 and c == 0: mini.append(f's_add_u32 s{sOM}, s{sOM}, 4608')
        mini.append(f'buffer_store_dwordx4 {vr(d, 4)}, v{vMO}, {sr(SOUT)}, s{sOM} offen offset:{c*1152} {opts["out"]}')
e.weave([f'{MF} {vr(vS, 16)}, {ar(aPERM, 4)}, {ar(4*h, 4)}, ' + ('0' if h == 0 else vr(vS, 16)) for h in range(16)], [(mini, 4, 14)])
for p in range(4): e(f'v_cvt_pk_bf16_f32 v{vP+p}, v{vS+2*p}, v{vS+2*p+1}')
e(f'buffer_store_dwordx4 {vr(vP, 4)}, v2, {sr(SOUT)}, s{sOO} offen {opts["out"]}')
e.label('L_done')
if opts['spinx'] >= 0:
    e('s_waitcnt vmcnt(0)')
    mark()
    e('s_memrealtime s[96:97]')
    e('s_waitcnt lgkmcnt(0)')
    e('s_sub_u32 s98, s98, s100')
    e('s_lshl_b32 s98, s98, 2')
    e('s_add_u32 s98, s98, s96')
    e.label('L_spinx')
    e('s_memrealtime s[96:97]')
    e('s_waitcnt lgkmcnt(0)')
    e('s_sub_u32 s97, s96, s98')
    e('s_cmp_lt_i32 s97, 0')
    e('s_cbranch_scc1 L_spinx')
if PROF:
    mark()
    e('s_waitcnt vmcnt(0)')
    mark(); mark()
    e(f'v_writelane_b32 v{vPA}, s96, 63')
    mk_srd(SWS, 18, None, 0x10000000)
    e('s_lshl_b32 s62, s2, 11')
    e('s_add_u32 s62, s62, 0x9000000')
    e('v_and_b32 v2, 63, v0'); e('v_lshrrev_b32 v3, 6, v0'); e('v_lshlrev_b32 v2, 2, v2'); e('v_lshl_add_u32 v2, v3, 9, v2')
    e(f'buffer_store_dword v{vPA}, v2, {sr(SWS)}, s62 offen')
    e(f'buffer_store_dword v{vPB}, v2, {sr(SWS)}, s62 offen offset:256')
    print('bars', nbar[0], file=sys.stderr)
e.label('L_end')
e('s_endpgm')
e.label('L_epoch_spin')
e.S = State()
e(f's_mov_b32 s3, {opts["spin"]}')
e('v_mov_b32 v1, 0')
e.label('L_epoch_loop')
e(f'buffer_load_dwordx2 {vr(vE, 2)}, v1, {sr(SDBG)}, 0 offen sc1')
e('s_sub_u32 s3, s3, 1')
e('s_cbranch_scc1 L_epoch_ok')
e('s_waitcnt vmcnt(0)')
e(f'v_or_b32 v2, v{vE}, v{vE+1}')
e('v_cmp_eq_u32 vcc, 0, v2')
e('s_cbranch_vccnz L_epoch_loop')
e('s_branch L_epoch_ok')
for t in stubs:
    e.label(f'L_stub{t}')
    e.raw(f'    s_call_b64 s[{sRET}:{sRET+1}], L_rescale')
    e.raw(f'    s_branch L_back{t}')
e.label('L_rescale')
e.S = State()
e('s_nop 15'); e('s_nop 15')
e(f'v_mov_b32 v{vMX+1}, v{vMX}')
e(f'v_permlane32_swap_b32 v{vMX}, v{vMX+1}')
e(f'v_max3_f32 v{vMX}, v{vMX}, v{vMX+1}, 0')
e(f'v_ceil_f32 v{vMX}, v{vMX}')
e(f'v_exp_f32 v{vMX+1}, -v{vMX}')
for r in range(48): e(f'v_sub_f32 v{vS+r}, v{vS+r}, v{vMX}')
for r in range(68): e(f'v_mul_f32 v{vO+r}, v{vO+r}, v{vMX+1}')
for r in range(16):
    e(f'v_lshlrev_b32 v2, 16, v{vP+r}')
    e(f'v_and_b32 v3, 0xffff0000, v{vP+r}')
    e(f'v_mul_f32 v2, v2, v{vMX+1}')
    e(f'v_mul_f32 v3, v3, v{vMX+1}')
    e(f'v_cvt_pk_bf16_f32 v{vP+r}, v2, v3')
e('s_nop 3')
e(f's_setpc_b64 s[{sRET}:{sRET+1}]')
e.label('L_textend')

hdr = f"""; GQA block (Q-proj + cached attention + O-proj + cross-workgroup reduction) for gfx950
; @launch grid=(256,1,1) block=(256,1,1) lds=163840
.amdgcn_target "amdgcn-amd-amdhsa--gfx950"
.text
"""
kd = f""".section .rodata,"a"
.p2align 6
.amdhsa_kernel {K}
  .amdhsa_next_free_vgpr 512
  .amdhsa_next_free_sgpr 102
  .amdhsa_accum_offset 256
  .amdhsa_group_segment_fixed_size 0
  .amdhsa_kernarg_size 64
  .amdhsa_user_sgpr_count 2
  .amdhsa_user_sgpr_kernarg_segment_ptr 1
  .amdhsa_system_sgpr_workgroup_id_x 1
.end_amdhsa_kernel
"""
open(sys.argv[1], 'w').write(hdr + e.text() + kd)
print(e.count, 'nops', e.nops, file=sys.stderr)
```

```python
import sys, math, struct
from emit import Emit, State

NAME = "standalone__gqa_block_cached__near_ridge"
opts = dict(kv="nt", wq="", x="", wo="", st="sc1", ld="sc1", T=8.0, prof=0, cpf=1, lag=9,
            kvplan="a", spin=200000, spinx=-1, fsh=3, sleep=0, allrdy=0, gmask=1, b1=14, la=9, one=0, pm='', pk=0, nost=0, nowo=0, nopub=0, apl='0,1,1,1,1,2,2,2,2,2,2,2', bwo='1,3,5,7,12,12,13,13,15,15', awo='1,1,5,5,11,12,12,13,13,15', brd='7,10', ard='3,8', opl=1, pollpos=0, out='', krot=0, qrot=0, sent=0, w2=1, slack=0, x_=0, half=0, kv0=0, thr=0, nofast=0, roto=1, rtrace=0, r0=2, pg=13, one_flag=1, fls=7, two=0, pp='sc1', fp='sc1', full=0, tlb=-1, tsh=16, pp0=0, wqfirst=1, qrd=6)
for a in sys.argv[2:]:
    k, v = a.split('=')
    opts[k] = type(opts[k])(v) if not isinstance(opts[k], str) else v.replace('+', ' ')
PROF = opts['prof']
TM = 's_memrealtime' if PROF == 2 else 's_memtime'
PM = set(int(x) for x in opts['pm'].split(',')) if opts['pm'] else None
def f32(x): return '0x%08x' % struct.unpack('<I', struct.pack('<f', x))[0]

e = Emit(); e.roles = ['A', 'B']
SX, SK, SV, SWQ, SWO, SWS = 20, 24, 28, 32, 36, 40
SFL, SPR, SOUT, SDBG = 80, 84, 88, 92
sW, sHKV, sB, sROT = 44, 45, 46, 47
sT0, sT1, sT2 = 48, 49, 52
sRET = 50
sWQ, sWO, sST = 53, 54, 55
sM0W, sM0T = 56, 57
sSC = 58
sXO, sFL, sM0Q, sJOB = 60, 61, 62, 63
sTILE = 64
vKR = 16; vVR = 40
vKa, vKb, vVc = 52, 53, 54
vWOR = 55; vXW, vXR = 61, 62; vWOV = 63; vSTV = 67
vMX = 68; vINV = 70
vPA, vPB = 72, 73
vE = 74
vFLV = 76
vL16 = 77
vS = 80; vNM = 112; vP = 128; vO = 144; vL = 208; vQ = 224
vXRD = 80; vWQR = 88; vXa, vXb = 96, 97; vWQV = 100
aX = 0; aWQ = 144; aONE = 240; aPERM = 244
aK = 0; aV = 32; aWO = 64; aOO = 192
def aVB(t): return aV if t % 2 else aOO
FL_OFF = 256 * 73728
FSH = opts['fsh']; FG = 16 << FSH

def vr(b, n): return f'v[{b}:{b+n-1}]'
def ar(b, n): return f'a[{b}:{b+n-1}]'
def sr(b, n=4): return f's[{b}:{b+n-1}]'
MF = 'v_mfma_f32_32x32x16_bf16'
def win(off): return off >> 16, off & 0xffff

nbar = [0]
def mark():
    if not PROF or (PM is not None and nbar[0] not in PM):
        if nbar[0] == opts['spinx']: e('s_memrealtime s[98:99]')
        nbar[0] += 1
        return
    if PM is not None:
        i = nbar[0]; nbar[0] += 1
        e(f'{TM} s[98:99]'); e('s_waitcnt lgkmcnt(0)'); e(f'v_writelane_b32 v{vPB}, s98, {i}')
        return
    i = nbar[0]; nbar[0] += 1
    e(f'{TM} s[98:99]'); e('s_waitcnt lgkmcnt(0)')
    e(f'v_writelane_b32 v{vPA}, s98, {i}')
    if i > 0: e(f'v_writelane_b32 v{vPB}, s100, {i-1}')
    e(f'{TM} s[100:101]')
def bar(tags, lgkm0=True):
    if not PROF or PM is not None:
        e.wait_vm(tags, lgkm0=lgkm0); e('s_barrier')
        mark()
        return
    i = nbar[0]; nbar[0] += 1
    e(f'{TM} s[98:99]'); e('s_waitcnt lgkmcnt(0)')
    e(f'v_writelane_b32 v{vPA}, s98, {i}')
    if i > 0: e(f'v_writelane_b32 v{vPB}, s100, {i-1}')
    e.wait_vm(tags, lgkm0=lgkm0); e('s_barrier')
    e(f'{TM} s[100:101]')

def put(items):
    for it in items:
        if callable(it): it()
        elif isinstance(it, tuple): e(it[0], it[1])
        else: e(it)
def wrap_adv(r, step, lim, tmp):
    def f():
        e(f's_sub_u32 s{tmp}, s{r}, {lim}')
        e(f's_cselect_b32 s{r}, s{r}, s{tmp}')
    return [f's_add_u32 s{r}, s{r}, {step}', f]
def dma(v, srd, so, off, pol, tag):
    o = f' offset:{off}' if off else ''
    p = f' {pol}' if pol else ''
    return (f'buffer_load_dwordx4 v{v}, {sr(srd)}, {so} offen{o}{p} lds', tag)

KVORD = ['K0'] + sum(([f'K{t+1}', f'V{t}'] for t in range(15)), []) + ['V15']
KVSLOT = {}
def set_group(g):
    for n, nm in enumerate(KVORD):
        KVSLOT[nm] = n if (g == 'A' and n in (12, 13)) else (n + 4) % 12
XSLOT = [9, 10, 11, 0, 1, 2, 3, 12, 13]
def kv(n):
    nm = KVORD[n]; t = int(nm[1:]); isk = nm[0] == 'K'
    srd = SK if isk else SV
    return [f's_add_u32 m0, s{sM0W}, {KVSLOT[nm]*8192}',
            dma(vKa if isk else vVc, srd, f's{sTILE+t}', 0, opts['kv'], nm),
            dma(vKb if isk else vVc, srd, f's{sTILE+t}', 1024, opts['kv'], nm)]
def xt(j):
    return [f's_add_u32 m0, s{sM0W}, {XSLOT[j]*8192}',
            dma(vXa, SX, f's{sXO}', 0, opts['x'], f'X{j}'),
            dma(vXb, SX, f's{sXO}', 1024, opts['x'], f'X{j}')] + wrap_adv(sXO, 128, 1152, sT1)
def wq_stage(s):
    it = [f's_add_u32 m0, s{sM0Q}, {(14 + 2*(s%3))*8192}']
    it += [dma(vWQV + p, SWQ, f's{sWQ}', p * 1024, opts['wq'], f'WQ{s}') for p in range(4)]
    return it + wrap_adv(sWQ, 2 * 131072, 36 * 131072, sT1)
WOG = [4, 4, 3, 4, 0, 1, 2, 3, 4]
XG = 2
RG = 1
def wo_half(j, half):
    it = [f's_add_u32 m0, s{sM0T}, {4*WOG[j]*8192 + half*4096}']
    if half: it.append(f's_add_u32 s{sT0}, s{sWO}, 36864')
    it += [dma(vWOV + p, SWO, f's{sT0 if half else sWO}', p * 1024, opts['wo'], f'WO{j}') for p in range(4)]
    return it + (wrap_adv(sWO, 128, 1152, sT1) if half else [])
def wo_cb(j): return wo_half(j, 0) + wo_half(j, 1)

def mk_srd(d, ptr, addlo, nbytes):
    if addlo is None:
        e(f's_mov_b32 s{d}, s{ptr}'); e(f's_and_b32 s{d+1}, s{ptr+1}, 0xffff')
    else:
        e(f's_add_u32 s{d}, s{ptr}, {addlo}')
        e(f's_addc_u32 s{d+1}, s{ptr+1}, 0')
        e(f's_and_b32 s{d+1}, s{d+1}, 0xffff')
    e(f's_mov_b32 s{d+2}, {nbytes}')
    e(f's_mov_b32 s{d+3}, 0x00020000')

def rd_x(j):
    w_, o = win(XSLOT[j] * 8192)
    return [f'ds_read_b128 {ar(aX+4*(4*j+ks), 4)}, v{vXRD + 4*w_ + ks} offset:{o}' for ks in range(4)]
def rd_wq(stage):
    it = []
    for ks in range(2):
        w_, o = win((14 + 2 * (stage % 3) + ks) * 8192)
        for u in range(4):
            d = aWQ + 32 * (stage % 2) + (ks * 4 + u) * 4
            for sec in range(2):
                it.append(f'ds_read_b64_tr_b16 {ar(d+2*sec, 2)}, v{vWQR + 4*(w_-1) + u} offset:{o + sec*1024}')
    return it
def mf_q(stage, order=None):
    it = []
    idx = [(ks, u) for ks in range(2) for u in range(4)] if order is None else order
    for ks, u in idx:
        d = aWQ + 32 * (stage % 2) + (ks * 4 + u) * 4
        c = '0' if (stage == 0 and ks == 0) else vr(vO + 16 * u, 16)
        it.append(f'{MF} {vr(vO+16*u, 16)}, {ar(d, 4)}, {ar(aX + 4*(2*stage+ks), 4)}, {c}')
    return it
def aKB(t): return aV if t == 1 else aK
def rd_k(t):
    w_, o = win(KVSLOT[f'K{t}'] * 8192)
    return [f'ds_read_b128 {ar(aKB(t)+4*s, 4)}, v{vKR + 8*w_ + s} offset:{o}' for s in range(8)]
def rd_v(t):
    w_, o = win(KVSLOT[f'V{t}'] * 8192)
    it = []
    for a in range(2):
        for tt in range(4):
            d = aVB(t) + (a * 4 + tt) * 4
            for sec in range(2):
                it.append(f'ds_read_b64_tr_b16 {ar(d+2*sec, 2)}, v{vVR + 4*w_ + tt} offset:{o + a*4096 + sec*2048}')
    return it
def mf_qk(t):
    S = vS + 16 * (t % 2)
    return [f'{MF} {vr(S, 16)}, {ar(aKB(t)+4*s, 4)}, {vr(vQ+4*s, 4)}, ' + (vr(S, 16) if s else ('0' if t <= 1 else vr(vNM, 16))) for s in range(8)]
def mf_pv(t):
    P = vP + 8 * (t % 2)
    it = []
    for a in range(2):
        for tt in range(4):
            c = '0' if (t == 0 and a == 0) else vr(vO + 16 * tt, 16)
            it.append(f'{MF} {vr(vO+16*tt, 16)}, {ar(aVB(t) + (a*4+tt)*4, 4)}, {vr(P+4*a, 4)}, {c}')
        it.append(mf_l(t, a))
    return it
def mf_l(t, a):
    P = vP + 8 * (t % 2)
    c = '0' if (t == 0 and a == 0) else vr(vL, 4)
    return f'v_mfma_f32_16x16x32_bf16 {vr(vL, 4)}, {ar(aONE, 4)}, {vr(P+4*a, 4)}, {c}'
def sm_max(t):
    S = vS + 16 * (t % 2)
    it = [f'v_max3_f32 v{vMX}, v{S}, v{S+1}, v{S+2}', f'v_max3_f32 v{vMX+1}, v{S+3}, v{S+4}, v{S+5}']
    k = 6; d = 0
    while k < 16:
        it.append(f'v_max3_f32 v{vMX+d}, v{vMX+d}, v{S+k}, v{S+k+1}'); k += 2; d ^= 1
    it.append(f'v_max_f32 v{vMX}, v{vMX}, v{vMX+1}')
    return it
stubs = []
def sm_check(t0):
    t = f'{e.roles[0]}{t0}'
    def f():
        e(f'v_cmp_lt_f32 vcc, {f32(opts["T"])}, v{vMX}')
        e(f's_cbranch_vccnz L_stub{t}')
        e.label(f'L_back{t}')
        stubs.append(t)
    return [f]
def sm_exp(t):
    S = vS + 16 * (t % 2); P = vP + 8 * (t % 2)
    it = [f'v_exp_f32 v{S}, v{S}', f'v_exp_f32 v{S+1}, v{S+1}']
    for p in range(8):
        if p < 7: it += [f'v_exp_f32 v{S+2*p+2}, v{S+2*p+2}', f'v_exp_f32 v{S+2*p+3}, v{S+2*p+3}']
        it.append(f'v_cvt_pk_bf16_f32 v{P+p}, v{S+2*p}, v{S+2*p+1}')
    return it
def rd_wo(j):
    w_, o = win(WOG[j] * 32768)
    it = []
    for oth in range(2):
        for f in range(8):
            d = aWO + 64 * (j % 2) + (oth * 8 + f) * 4
            for sec in range(2):
                it.append(f'ds_read_b64_tr_b16 {ar(d+2*sec, 2)}, v{vWOR + 2*w_ + oth} offset:{o + f*2048 + sec*1024}')
    return it
def mf_o(j):
    acc = vS + 16 * (j % 2)
    it = []
    for oth in range(2):
        for f in range(8):
            d = aWO + 64 * (j % 2) + (oth * 8 + f) * 4
            b = vr(vQ + 4 * f, 4) if oth == 0 else ar(aOO + 4 * f, 4)
            c = '0' if (oth == 0 and f == 0) else vr(acc, 16)
            it.append(f'{MF} {vr(acc, 16)}, {ar(d, 4)}, {b}, {c}')
    return it
def ep_o(j):
    acc = vS + 16 * (j % 2); P = vP + 8 * (j % 2)
    it = []
    for h in range(2):
        for p in range(4):
            it.append(f'v_cvt_pk_bf16_f32 v{P+4*h+p}, v{acc+8*h+2*p}, v{acc+8*h+2*p+1}')
        off = ' offset:1024' if h else ''
        if not opts['nost'] and not (opts['half'] and j in (1, 2, 3, 4)): it.append((f'buffer_store_dwordx4 {vr(P+4*h, 4)}, v{vSTV}, {sr(SWS)}, s{sTILE+j} offen{off} {opts["st"]}', f'ST{j}'))
    return it
def publish(j):
    def f():
        if opts['one_flag']:
            FLS = opts['fls']
            if j == 8 or (opts['two'] and j == opts['two']):
                if j == 8: e('s_waitcnt vmcnt(0)')
                else: e.wait_vm({f'ST{j}'})
                so = '0' if j == 8 else f's{sFL}'
                e(f'buffer_store_dwordx2 {vr(vE, 2)}, v{vFLV}, {sr(SFL)}, {so} offen {opts["fp"]}', 'FL')
            return
        e.wait_vm({f'ST{j}'})
        so, off = ('0', j * 512) if j < 8 else (f's{sFL}', 0)
        e(f'buffer_store_dwordx2 {vr(vE, 2)}, v{vFLV}, {sr(SFL)}, {so} offen offset:{off} sc1', 'FL')
    return [f]

K = NAME + '_kernel'
e.raw(f'.globl {K}\n.p2align 8\n.type {K},@function\n{K}:')
e('s_cmp_ge_u32 s2, 256')
e('s_cbranch_scc1 L_end')
e('s_load_dwordx8 s[4:11], s[0:1], 0')
e('s_load_dwordx8 s[12:19], s[0:1], 32')
e('s_memrealtime s[100:101]')
if PROF: e(f'{TM} s[96:97]')
if opts['cpf']:
    e('s_getpc_b64 s[98:99]')
    e.label('L_pc')
    e('s_lshr_b32 s3, s2, 3')
    e('v_lshl_add_u32 v9, s3, 4, v0')
    e('v_lshlrev_b32 v9, 7, v9')
    e(f'v_min_u32 v9, L_textend-L_pc-4, v9')
    e('v_cmp_gt_u32 vcc, 16, v0')
    e('s_and_saveexec_b64 s[20:21], vcc')
    e('s_cbranch_execz L_nocpf')
    e.raw('    global_load_dword v12, v9, s[98:99]')
    e.label('L_nocpf')
    e('s_mov_b64 exec, -1')
e('v_lshrrev_b32 v1, 6, v0')
e(f's_lshr_b32 s{sB}, s2, 4')
e(f'v_readfirstlane_b32 s{sW}, v1')
e(f's_sub_u32 s{sT0}, s{sB}, 9')
e(f's_cselect_b32 s3, s{sB}, s{sT0}')
e(f's_lshl_b32 s{sWQ}, s3, 19')
e(f's_lshl_b32 s{sXO}, s3, 7')
e(f's_mul_i32 s{sT0}, s{sB}, 73728')
e(f's_lshl_b32 s{sM0W}, s{sW}, 11')
e('v_bfe_u32 v2, v0, 3, 3')
e('v_and_b32 v3, 7, v0')
e('v_lshrrev_b32 v6, 1, v2')
e('v_xor_b32 v7, v3, v6')
e('v_lshlrev_b32 v7, 4, v7')
e('v_mul_u32_u24 v8, 1152, v2')
e('v_mul_u32_u24 v9, 18432, v1')
e('v_add_u32 v9, v9, v8')
e(f'v_add_u32 v{vXa}, v9, v7')
e('v_xor_b32 v7, 64, v7')
e(f'v_add_u32 v{vXb}, v9, v7')
e(f'v_add_u32 v{vXb}, 8192, v{vXb}')
e(f's_and_b32 s{sHKV}, s2, 7')
e(f's_lshl_b32 s{sHKV}, s{sHKV}, 1')
e(f's_bfe_u32 s{sT2}, s2, 0x10003')
e(f's_add_u32 s{sHKV}, s{sHKV}, s{sT2}')
e(f's_lshl_b32 s{sM0Q}, s{sW}, 12')
e(f's_lshl_b32 s{sT2}, s{sHKV}, 9')
e('v_bfe_u32 v4, v0, 4, 2')
e('v_and_b32 v5, 15, v0')
e('v_lshlrev_b32 v7, 2, v4')
e('v_xor_b32 v7, v5, v7')
e('v_lshlrev_b32 v7, 4, v7')
e('v_lshl_add_u32 v9, v4, 13, v7')
e('v_lshrrev_b32 v10, 1, v1')
e('v_lshl_add_u32 v9, v10, 17, v9')
e('v_and_b32 v10, 1, v1')
e(f'v_lshl_add_u32 v{vWQV}, v10, 8, v9')
for p in range(1, 4): e(f'v_add_u32 v{vWQV+p}, {p*31744}, v{vWQV}')
def pmark(i):
    if opts['pp0']:
        e(f'{TM} s[98:99]'); e('s_waitcnt lgkmcnt(0)'); e(f'v_writelane_b32 v{vPB}, s98, {i}')
e('s_waitcnt lgkmcnt(0)')
pmark(54)
if opts['wqfirst']:
    mk_srd(SWQ, 10, f's{sT2}', 4718592 - 15 * 512)
    put(wq_stage(0)); put(wq_stage(1))
    mk_srd(SX, 4, f's{sT0}', 73728)
    put(xt(0)); put(xt(1))
else:
    mk_srd(SX, 4, f's{sT0}', 73728)
    put(xt(0))
    mk_srd(SWQ, 10, f's{sT2}', 4718592 - 15 * 512)
    put(wq_stage(0))
    put(xt(1)); put(wq_stage(1))
pmark(55)
e('v_lshl_add_u32 v9, v4, 8, v7')
e(f'v_lshl_add_u32 v{vVc}, v1, 11, v9')
e('v_xor_b32 v7, v5, v4')
e('v_lshlrev_b32 v7, 4, v7')
e('v_lshl_add_u32 v9, v4, 8, v7')
e('v_lshlrev_b32 v10, 7, v10')
e('v_xor_b32 v9, v9, v10')
e(f'v_lshl_add_u32 v{vKa}, v1, 11, v9')
e(f'v_xor_b32 v{vKb}, 64, v{vKa}')
for t in range(16): e(f's_mov_b32 s{sTILE+t}, {t*8192}')
e(f's_lshl_b32 s{sM0T}, s{sW}, 13')
e(f's_lshr_b32 s{sROT}, s{sB}, 1')
e(f's_lshl_b32 s{sWO}, s{sROT}, 7')
e(f's_lshl_b32 s{sJOB}, s{sB}, 4')
e(f's_add_u32 s{sJOB}, s{sJOB}, s{sHKV}')
e(f's_lshl_b32 s3, s{sJOB}, 17')
mk_srd(SK, 6, 's3', 131072)
mk_srd(SV, 8, 's3', 131072)
mk_srd(SDBG, 16, None, 256)
e('s_cmp_lg_u32 s2, 0')
e('s_cbranch_scc1 L_noepoch')
e('v_lshlrev_b32 v9, 8, v0')
e('v_mov_b32 v10, s100'); e('v_mov_b32 v11, s101')
e(f'buffer_store_dwordx2 v[10:11], v9, {sr(SDBG)}, 0 offen sc1')
e.vm['A'].pop(); e.vm['B'].pop()
e.label('L_noepoch')

if opts['krot']:
    e(f's_mul_i32 s3, s{sJOB}, {opts["krot"]}')
    e(f's_lshr_b32 s{sT0}, s{sJOB}, 4')
    e(f's_add_u32 s3, s3, s{sT0}')
    e('s_lshl_b32 s3, s3, 13')
    for t in range(16):
        e(f's_add_u32 s{sTILE+t}, s3, {t*8192}')
        e(f's_and_b32 s{sTILE+t}, s{sTILE+t}, 0x1e000')
e(f's_mul_i32 s3, s{sHKV}, 294912')
mk_srd(SWO, 12, 's3', 294912)
e(f's_mul_i32 s3, s{sJOB}, 73728')
mk_srd(SWS, 18, 's3', 73728)
FB = (128 << opts['fls']) if opts['one_flag'] else 36 * FG
e(f's_mul_i32 s3, s{sB}, {FB}')
e(f's_add_u32 s3, s3, {FL_OFF}')
mk_srd(SFL, 18, 's3', FB)
e(f's_mul_i32 s3, s{sB}, {16*73728}')
mk_srd(SPR, 18, 's3', 16 * 73728)
e(f's_mul_i32 s3, s{sB}, 73728')
mk_srd(SOUT, 14, 's3', 73728)
sc = math.log2(math.e) / math.sqrt(128.0)
e(f's_mov_b32 s{sSC}, {f32(sc)}'); e(f's_mov_b32 s{sSC+1}, {f32(sc)}')
e('v_bfe_u32 v9, v0, 5, 1')
e('v_and_b32 v10, 31, v0')
e('v_bfe_u32 v11, v0, 2, 2')
e('v_and_b32 v7, 3, v0')
e('v_bfe_u32 v13, v0, 4, 1')
e('v_and_b32 v14, 1, v1')
e('v_lshl_add_u32 v14, v14, 5, v10')
e('v_bfe_u32 v15, v14, 1, 3')
e('v_xor_b32 v15, v15, v9')
e('v_lshlrev_b32 v15, 4, v15')
e(f'v_lshl_add_u32 v{vXRD}, v14, 7, v15')
for ks in range(1, 4): e(f'v_xor_b32 v{vXRD+ks}, {ks*32}, v{vXRD}')
for ks in range(4): e(f'v_add_u32 v{vXRD+4+ks}, 0x10000, v{vXRD+ks}')
e('v_lshrrev_b32 v14, 1, v1')
e('v_lshlrev_b32 v14, 12, v14')
e('v_lshl_add_u32 v14, v9, 11, v14')
e('v_lshl_add_u32 v14, v11, 8, v14')
e('v_lshl_add_u32 v14, v11, 6, v14')
e('v_lshl_add_u32 v14, v13, 5, v14')
e('v_and_b32 v15, 1, v7')
e('v_lshl_add_u32 v14, v15, 4, v14')
e('v_lshrrev_b32 v15, 1, v7')
e('v_lshl_add_u32 v14, v15, 3, v14')
e(f'v_add_u32 v{vWQR}, 0x10000, v14')
for u in range(1, 4): e(f'v_xor_b32 v{vWQR+u}, {u*64}, v{vWQR}')
for u in range(4): e(f'v_add_u32 v{vWQR+4+u}, 0x10000, v{vWQR+u}')
e('v_xor_b32 v14, v9, v5')
e('v_lshlrev_b32 v14, 4, v14')
e(f'v_lshl_add_u32 v{vKR}, v10, 8, v14')
for s in range(1, 8): e(f'v_xor_b32 v{vKR+s}, {s*32}, v{vKR}')
for w_ in (1, 2):
    for s in range(8): e(f'v_add_u32 v{vKR+8*w_+s}, {w_*0x10000}, v{vKR+s}')
e('v_lshlrev_b32 v14, 10, v9')
e('v_lshl_add_u32 v14, v11, 8, v14')
e('v_lshl_add_u32 v14, v11, 6, v14')
e('v_lshl_add_u32 v14, v13, 5, v14')
e(f'v_lshl_add_u32 v{vVR}, v7, 3, v14')
for t in range(1, 4): e(f'v_xor_b32 v{vVR+t}, {t*64}, v{vVR}')
for w_ in (1, 2):
    for t in range(4): e(f'v_add_u32 v{vVR+4*w_+t}, {w_*0x10000}, v{vVR+t}')
e('v_lshrrev_b32 v4, 1, v1')
e('v_lshlrev_b32 v14, 9, v9')
e('v_lshl_add_u32 v14, v11, 7, v14')
e('v_lshrrev_b32 v15, 1, v11')
e('v_xor_b32 v15, v15, v4')
e('v_lshl_add_u32 v14, v15, 6, v14')
e('v_and_b32 v15, 1, v7')
e('v_lshl_add_u32 v14, v15, 5, v14')
e('v_lshl_add_u32 v14, v13, 4, v14')
e('v_lshrrev_b32 v15, 1, v7')
e('v_lshl_add_u32 v14, v15, 3, v14')
e(f'v_lshl_add_u32 v{vWOR}, v4, 14, v14')
e(f'v_xor_b32 v{vWOR+1}, 0x4000, v{vWOR}')
for w_ in (1, 2):
    for o in range(2): e(f'v_add_u32 v{vWOR+2*w_+o}, {w_*0x10000}, v{vWOR+o}')
e('v_and_b32 v14, 63, v0')
e(f'v_lshlrev_b32 v{vL16}, 4, v14')
e(f'v_lshl_add_u32 v{vXW}, v1, 13, v{vL16}')
e(f'v_add_u32 v{vXW}, {XG*32768}, v{vXW}')
e(f'v_xor_b32 v{vXR}, 0x4000, v{vXW}')
e(f'v_lshl_add_u32 v{vSTV}, v1, 11, v{vL16}')
if opts['full']:
    e('v_lshrrev_b32 v14, 4, v14')
    e('v_lshlrev_b32 v14, 20, v14')
    e('v_lshl_add_u32 v14, v5, 3, v14')
else: e(f'v_lshlrev_b32 v14, 20, v14')
e(f'v_lshl_add_u32 v14, v1, {opts["fls"] if opts["one_flag"] else FSH+4}, v14')
e(f's_lshl_b32 s3, s{sHKV}, {opts["fls"]+2 if opts["one_flag"] else FSH}')
e(f'v_add_u32 v{vFLV}, s3, v14')
e('v_and_b32 v14, 1, v6')
e('v_lshlrev_b32 v14, 2, v14')
e('v_xor_b32 v14, v14, v3')
e('v_lshl_add_u32 v14, v14, 4, v8')
e('v_mul_u32_u24 v15, 73728, v1')
e(f'v_add_u32 v{vWOV}, v14, v15')
for p in range(1, 4): e(f'v_add_u32 v{vWOV+p}, {p*8192}, v{vWOV}')
e('v_bfe_u32 v14, v0, 2, 1')
e('v_cmp_eq_u32 vcc, v14, v13')
e('v_mov_b32 v14, 0x3f803f80')
e('v_cndmask_b32 v14, 0, v14, vcc')
for i in range(4): e(f'v_accvgpr_write_b32 a{aONE+i}, v14')
e('v_and_b32 v14, 1, v0')
e('v_lshlrev_b32 v14, 4, v14')
e('v_lshlrev_b32 v14, v14, 0x3f80'.replace('v14, 0x3f80', 'v14, v15') if False else 'v_mov_b32 v15, 0x3f80')
e('v_lshlrev_b32 v14, v14, v15')
e('v_bfe_u32 v15, v0, 2, 1')
e('v_xor_b32 v15, v15, v9')
e('v_or_b32 v15, v15, v13')
e('v_lshlrev_b32 v15, 3, v15')
e('v_bfe_u32 v2, v0, 3, 1')
e('v_bfe_u32 v3, v0, 1, 1')
e('v_lshl_add_u32 v2, v2, 1, v3')
e('v_add_u32 v2, v2, v15')
for d in range(4):
    e(f'v_cmp_eq_u32 vcc, {d}, v2')
    e(f'v_cndmask_b32 v3, 0, v14, vcc')
    e(f'v_accvgpr_write_b32 a{aPERM+d}, v3')

def qcvt(u):
    it = []
    for p in range(8):
        r = vO + 16 * u + 2 * p
        if opts['pk']: it.append(f'v_pk_mul_f32 {vr(r, 2)}, {vr(r, 2)}, s[{sSC}:{sSC+1}]')
        else: it += [f'v_mul_f32 v{r}, s{sSC}, v{r}', f'v_mul_f32 v{r+1}, s{sSC}, v{r+1}']
    for p in range(8):
        r = vO + 16 * u + 2 * p
        it.append(f'v_cvt_pk_bf16_f32 v{vQ+8*u+p}, v{r}, v{r+1}')
    return it
def X(*js): return sum((xt(j) for j in js), [])
def KVs(*ns): return sum((kv(n) for n in ns), [])
def RX(*js): return sum((rd_x(j) for j in js), [])
if opts['rtrace']: e(f'v_mov_b32 v{vPA}, 0')
pmark(59)
put(X(2, 3, 4)); bar({'X0', 'X1', 'WQ0'}, False)
put(RX(0, 1) + rd_wq(0))
put(X(5, 6, 7)); bar({'WQ1', 'X2'})
e.weave(mf_q(0), [(rd_wq(1) + RX(2), -1, 6)])

def group_body(g):
    e.roles = [g]; set_group(g)
    WOG[0] = 4 if g == 'A' else 3
    B1 = opts['b1']
    if g == 'A':
        put(X(8) + KVs(0, 1)); bar({'X3', 'X4', 'X5'})
        e.weave(mf_q(1), [(RX(3, 4, 5), -1, 4)])
        put(KVs(2, 3, 4)); bar({'X6', 'X7', 'X8'})
        put(RX(6, 7, 8))
        put(KVs(*range(5, min(B1, 11)))); bar(set())
        put(KVs(*range(11, B1)))
        put(wq_stage(2) + wq_stage(3) + wq_stage(4))
        qplan = {}
        nxt = B1
        cnt = [int(x) for x in opts['apl'].split(',')]
        wot = [int(x) for x in opts['awo'].split(',')]
        rdt = tuple(int(x) for x in opts['ard'].split(','))
    else:
        put(X(8) + wq_stage(2)); bar({'X3', 'X4', 'X5'})
        e.weave(mf_q(1), [(RX(3, 4, 5), -1, 4)])
        put(wq_stage(3) + wq_stage(4)); bar({'X6', 'X7', 'X8'})
        put(RX(6, 7, 8))
        bar(set())
        LA = opts['la']
        qplan = {14: [0, 1], 15: [2, 3], 16: [4, 5], 17: list(range(6, LA - 1))}
        nxt = LA - 1
        cnt = [1] + [2] * 15
        wot = [int(x) for x in opts['bwo'].split(',')]
        rdt = tuple(int(x) for x in opts['brd'].split(','))
    bar({'WQ2'})
    put(rd_wq(2))
    bar({'WQ3'})
    for s in range(2, 16):
        d = []
        if s + 3 < 18: d += wq_stage(s + 3)
        d += KVs(*qplan.get(s, []))
        e.weave(mf_q(s), [(rd_wq(s + 1), -1, opts['qrd'])] + ([(d, 0, 8)] if d else []))
        tags = {f'WQ{s+2}'}
        if s == 15 and g == 'A': tags |= {'K0', 'K1', 'V0'}
        bar(tags)
    r17 = rd_wq(17)
    r17 = sum((r17[2*u:2*u+2] + r17[8+2*u:8+2*u+2] for u in range(4)), [])
    mq = []
    for st, u in ((16, 0), (16, 1), (17, 0), (17, 1), (16, 2), (17, 2), (16, 3), (17, 3)):
        mq += mf_q(st, [(0, u), (1, u)])
    d = KVs(*(qplan.get(16, []) + qplan.get(17, [])))
    init0 = sm_max(0) + [f'v_mov_b32 v{vMX+1}, v{vMX}', f'v_permlane32_swap_b32 v{vMX}, v{vMX+1}', f'v_max_f32 v{vMX}, v{vMX}, v{vMX+1}'] + \
            [f'v_sub_f32 v{vS+r}, v{vS+r}, v{vMX}' for r in range(16)] + sm_exp(0) + [f'v_sub_f32 v{vNM+r}, 0, v{vMX}' for r in range(16)]
    d0 = []
    for _ in range(cnt[0]): d0 += kv(nxt); nxt += 1
    if g == 'A':
        e.weave(mq + mf_qk(0), [(r17, -1, 4), (rd_k(0) + rd_k(1), 4, 8), (qcvt(0), 7, 11), (qcvt(1), 11, 14), (qcvt(2), 14, 18), (qcvt(3), 18, 22),
                                (rd_v(0), 20, 24)])
        mark(); mark(); mark()
        e.weave(mf_qk(1), [(init0, 1, 8)] + ([(d0, -1, 2)] if d0 else []))
    else:
        e.weave(mq, [(r17, -1, 4), (d, 2, 8), (qcvt(0), 7, 11), (qcvt(1), 11, 14), (qcvt(2), 14, 16)])
        put(qcvt(3))
        mark()
        bar({'K0', 'K1', 'V0'})
        put(rd_k(0))
        e.weave(mf_qk(0), [(rd_k(1), 0, 3), (rd_v(0), 3, 8), (d0, 0, 4)])
        mark()
        e.weave(mf_qk(1), [(init0, 1, 8)])
    bar({'K2', 'V1'})
    WORD = {rdt[0]: rd_wo(0)[:16], rdt[0]+1: rd_wo(0)[16:], rdt[1]: rd_wo(1)[:16], rdt[1]+1: rd_wo(1)[16:]}
    assert wot[1] < rdt[0] and wot[3] < rdt[1] and wot[4] >= rdt[0] + 2 and wot[6] >= rdt[1] + 2 and wot[8] >= 12 and wot[0] >= 1
    if g == 'A': assert wot[2] >= rdt[0] + 2 and wot[4] >= 7
    cnt += [2] * 16
    for t in range(1, 16):
        d = []
        for _ in range(cnt[t]):
            if nxt < 32:
                assert nxt < 12 or (nxt - 12 + 1) // 2 <= t, (g, nxt, t)
                assert min((nxt - 2 + 1) // 2, 14) > t, (g, nxt, t)
                d += kv(nxt); nxt += 1
        for hi, tt_ in enumerate(wot):
            if tt_ == t: d += wo_half(hi // 2, hi % 2)
        if t == opts['tlb']:
            d += [f'v_lshlrev_b32 v1, {opts["tsh"]}, v0',
                  (f'buffer_load_dword v218, v1, {sr(SFL)}, 0 offen', 'TL'),
                  (f'buffer_load_dword v219, v1, {sr(SPR)}, 0 offen', 'TL'),
                  (f'buffer_load_dword v220, v1, {sr(SOUT)}, 0 offen', 'TL')]
        if t == 7:
            d += ['v_mov_b32 v1, 0', (f'buffer_load_dwordx2 {vr(vE, 2)}, v1, {sr(SDBG)}, 0 offen sc1', 'EP')]
        if False: pass
        elif t < 15:
            sm = sm_max(t) + sm_check(t) + sm_exp(t)
            if t == 1: sm = [f'v_add_f32 v{vS+16+r}, v{vS+16+r}, v{vNM}' for r in range(16)] + sm
            kw = lambda: e.need_regs(ar(aK + 28, 4))
            kw.cost = 4
            X_ = opts['x_']
            if X_ & 1: sm = [i for i in sm if callable(i) or not i.startswith('v_exp')]
            if X_ & 2: sm = [i for i in sm if callable(i) or not i.startswith('v_cvt')]
            if X_ & 4: sm = [i for i in sm if not callable(i) and not i.startswith('v_max')]
            rk, rv = rd_k(t + 1), rd_v(t)
            if X_ & 8: rk = []
            if X_ & 16: rv = []
            streams = [(rk, 0, 8), (rv + WORD.get(t, []), 1, 16), (sm, 1, 18), (d, 0, 17), ([kw], 9, 10)]
            if t == 14: streams.append((rd_v(15), 10, 17))
            e.weave2(mf_pv(t - 1) + mf_qk(t + 1), streams, opts['slack'])
        else:
            sm = sm_max(t) + sm_check(t) + sm_exp(t)
            e.weave2(mf_pv(14), [(sm, 1, 10), (d, 0, 10)])
        if t < 15:
            tags = {f'K{t+2}', f'V{t+1}'}
            if t == rdt[0] - 1: tags.add('WO0')
            if t == rdt[1] - 1: tags.add('WO1')
            if t == 14: tags.add('EP')
            if t == 13: tags.add('V15')
            bar(tags)
    assert nxt == 32

e(f's_and_b32 s3, s{sB}, {opts["gmask"]}')
e('s_cbranch_scc0 L_grpA')
S0 = e.S.clone(); nb0 = nbar[0]
group_body('B')
e('s_branch L_common')
SB = e.S; nb1 = nbar[0]; nbar[0] = nb0
e.label('L_grpA')
e.S = S0
group_body('A')
assert nbar[0] == nb1
e.label('L_common')
e.S = Emit.merge_states(e.S, SB)
e.roles = ['A', 'B']
e(f'v_or_b32 v1, v{vE}, v{vE+1}')
e('v_cmp_eq_u32 vcc, 0, v1')
e('s_cbranch_vccnz L_epoch_spin')
e.label('L_epoch_ok')
P15 = vP + 8
seq = [mf_l(15, 0), mf_l(15, 1)]
for tt in range(4):
    for a in range(2):
        seq.append(f'{MF} {vr(vO+16*tt, 16)}, {ar(aVB(15) + (a*4+tt)*4, 4)}, {vr(P15+4*a, 4)}, {vr(vO+16*tt, 16)}')
def norm(tt):
    it = []
    for a in range(2):
        for p in range(4 * a, 4 * a + 4):
            r = vO + 16 * tt + 2 * p
            if opts['pk']: it.append(f'v_pk_mul_f32 {vr(r, 2)}, {vr(r, 2)}, {vr(vINV, 2)} op_sel_hi:[1,0]')
            else: it += [f'v_mul_f32 v{r}, v{vINV}, v{r}', f'v_mul_f32 v{r+1}, v{vINV}, v{r+1}']
        for p in range(4 * a, 4 * a + 4):
            r = vO + 16 * tt + 2 * p
            it.append(f'v_cvt_pk_bf16_f32 v{vQ+8*tt+p}, v{r}, v{r+1}')
        f = 2 * tt + a
        it.append(f'ds_write_b128 v{vXW}, {vr(vQ+4*f, 4)} offset:{f*1024}')
    return it
mo0 = mf_o(0); mo1 = mf_o(1)
own = sum(([mo0[f], mo1[f]] for f in range(8)), [])
e.weave(seq + own[:12], [([f'v_rcp_f32 v{vINV}, v{vL}'], 4, 5),
                         (norm(0), 5, 9), (norm(1), 9, 13), (norm(2), 13, 17), (norm(3), 17, 21)])
bar({'WO2'})
sU, sCNT, sTODO, sRDY, sI, sOFF, sUA, sLB, sOO, sOM, sMB = 20, 21, 22, 23, 24, 25, 26, 27, 28, 29, 32
vMV, vMR, vMO = 212, 213, 214
red_setup = [
    f's_lshl_b32 s{sU}, s{sW}, 4', f's_add_u32 s{sU}, s{sU}, s{sHKV}',
    f's_lshl_b32 s{sUA}, s{sU}, 10',
    f's_lshr_b32 s{sOO}, s{sU}, 3', f's_add_u32 s{sOO}, s{sOO}, s{sROT}',
    lambda: (e(f's_sub_u32 s{sI}, s{sOO}, 9'), e(f's_cselect_b32 s{sOO}, s{sOO}, s{sI}')),
    f's_lshl_b32 s{sOO}, s{sOO}, 7',
    f's_bfe_u32 s{sI}, s{sU}, 0x10001', f's_mul_i32 s{sI}, s{sI}, 36864', f's_add_u32 s{sOO}, s{sOO}, s{sI}',
    f's_bfe_u32 s{sI}, s{sU}, 0x10002', f's_lshl_b32 s{sI}, s{sI}, 6', f's_add_u32 s{sOO}, s{sOO}, s{sI}',
    f's_and_b32 s{sI}, s{sU}, 1', f's_lshl_b32 s{sI}, s{sI}, 4', f's_add_u32 s{sOO}, s{sOO}, s{sI}',
    lambda: (e(f's_sub_u32 s{sOM}, s{sROT}, 1'), e(f's_cselect_b32 s{sOM}, 8, s{sOM}')),
    f's_lshl_b32 s{sOM}, s{sOM}, 7',
    f's_and_b32 s{sI}, s{sW}, 1', f's_mul_i32 s{sI}, s{sI}, 36864', f's_add_u32 s{sOM}, s{sOM}, s{sI}',
    f's_and_b32 s{sI}, s{sHKV}, 3', f's_mul_i32 s{sI}, s{sI}, 9216', f's_add_u32 s{sOM}, s{sOM}, s{sI}',
    f's_lshr_b32 s{sI}, s{sW}, 1', f's_lshl_b32 s{sI}, s{sI}, 6', f's_add_u32 s{sOM}, s{sOM}, s{sI}',
    f's_bfe_u32 s{sI}, s{sHKV}, 0x10002', f's_lshl_b32 s{sI}, s{sI}, 5', f's_add_u32 s{sOM}, s{sOM}, s{sI}',
    f's_lshr_b32 s{sI}, s{sHKV}, 3', f's_lshl_b32 s{sI}, s{sI}, 4', f's_add_u32 s{sOM}, s{sOM}, s{sI}',
    f's_lshl_b32 s{sMB}, s{sU}, 7', f's_add_u32 s{sMB}, s{sMB}, 65536',
    f's_mov_b32 s{sTODO}, -1',
] + ([
    f's_bfe_u32 s{sI}, s{sU}, 0x20001', f's_lshl_b32 s{sI}, s{sI}, {opts["fls"]}',
] + ([lambda: (e(f's_cmp_lt_u32 s{sU}, {8*(opts["two"]+1)}'), e(f's_cselect_b32 s{sOFF}, s{sFL}, 0')), f's_add_u32 s{sI}, s{sI}, s{sOFF}'] if opts['two'] else []) + [
    f's_lshl_b32 s{sOFF}, s{sW}, {opts["fls"]}', f's_sub_u32 s{sOFF}, s{sOFF}, s{sI}',
    'v_and_b32 v1, 15, v0', f'v_lshlrev_b32 v1, {opts["fls"]+2}, v1', f'v_add_u32 v1, s{sI}, v1',
    'v_bfe_u32 v2, v0, 4, 1', f'v_mul_lo_u32 v2, s{sOFF}, v2', 'v_add_u32 v1, v1, v2',
] if opts['one_flag'] else [
    f's_lshr_b32 s{sI}, s{sU}, 1', f's_lshl_b32 s{sI}, s{sI}, 7',
    f's_lshl_b32 s{sOFF}, s{sW}, 7', f's_add_u32 s{sOFF}, s{sOFF}, 4096', f's_sub_u32 s{sOFF}, s{sOFF}, s{sI}',
    'v_and_b32 v1, 15, v0', 'v_lshlrev_b32 v1, 3, v1', f'v_add_u32 v1, s{sI}, v1',
    'v_bfe_u32 v2, v0, 4, 1', f'v_mul_u32_u24 v2, s{sOFF}, v2', 'v_add_u32 v1, v1, v2',
]) + [
    f's_mul_i32 s{sLB}, s{sW}, 18432', f's_add_u32 s{sLB}, s{sLB}, {RG*32768}',
    f'v_add_u32 v3, s{sLB}, v{vL16}',
    'v_and_b32 v2, 31, v0', 'v_lshlrev_b32 v7, 20, v2', 'v_mul_u32_u24 v2, 1152, v2', 'v_bfe_u32 v6, v0, 5, 1', 'v_lshl_add_u32 v2, v6, 5, v2',
    'v_mul_u32_u24 v8, 2304, v6', f'v_add_u32 v{vMO}, v7, v8',
    'v_bfe_u32 v7, v0, 3, 3', 'v_mul_u32_u24 v7, 73728, v7', 'v_and_b32 v8, 7, v0', f'v_lshl_add_u32 v{vMV}, v8, 4, v7',
    'v_lshlrev_b32 v7, 10, v6', 'v_bfe_u32 v8, v0, 2, 2', 'v_lshl_add_u32 v7, v8, 7, v7',
    'v_and_b32 v8, 1, v0', 'v_lshl_add_u32 v7, v8, 5, v7', 'v_bfe_u32 v8, v0, 4, 1', 'v_lshl_add_u32 v7, v8, 4, v7',
    'v_bfe_u32 v8, v0, 1, 1', 'v_lshl_add_u32 v7, v8, 3, v7', f'v_add_u32 v{vMR}, s{sLB}, v7',
    f's_mov_b32 s{sCNT}, {opts["spin"]}',
] + [f'v_mov_b32 v{vNM+i}, 0x3f803f80' for i in range(4)]
OPLAN = {2: [(6, 0), (6, 1)], 3: [(7, 0), (7, 1)], 4: [(8, 0), (8, 1)]}
LAG = opts['lag']
pub = 0
r2 = rd_wo(2)
e.weave(own[12:] + mo0[8:] + mo1[8:],
        [([f'ds_read_b128 {ar(aOO+4*f, 4)}, v{vXR} offset:{f*1024}' for f in range(8)], -1, 1),
         (wo_cb(5), 0, 12), (r2[:16], 4, 12), (r2[16:], 12, 18), (ep_o(0), 14, 20)])
mark()
bar({'WO3'})
nrs = (len(red_setup) + 2) // 3
for j in range(2, 9):
    streams = []
    if j in OPLAN: streams.append((sum((wo_half(*h) for h in OPLAN[j]), []), -1, 10))
    if j < 8: streams.append((rd_wo(j + 1), 0, 14))
    ep = ep_o(j - 1)
    if j - 1 - LAG >= 0: ep += publish(pub); pub += 1
    streams.append((ep, 8 if j in OPLAN else 3, 16 if j in OPLAN else 12))
    if j in (5, 6, 7): streams.append((red_setup[(j-5)*nrs:(j-4)*nrs], 0, 16))
    if j == 8 and opts['r0'] == 1: streams.append(([(f'buffer_load_dwordx2 v[4:5], v1, {sr(SFL)}, 0 offen sc1', 'POLL')], opts['pg'], opts['pg'] + 1))
    e.weave(mf_o(j), streams)
    if j < 7: bar({f'WO{j+2}'})
put(ep_o(8))
mark()
def masked_round():
    e(f's_mov_b32 s{sOFF}, s{sUA}')
    for h in range(16):
        if h % 4 == 0: e(f's_add_u32 m0, s{sLB}, {h*1024}')
        e(f's_bitcmp1_b32 s{sRDY}, {h}')
        e('s_cselect_b64 exec, -1, 0')
        off = f' offset:{(h%4)*1024}' if h % 4 else ''
        if opts['thr'] and h >= opts['thr']: e(f's_waitcnt vmcnt({opts["thr"]-1})')
        e(f'buffer_load_dwordx4 v{vL16}, {sr(SPR)}, s{sOFF} offen{off} {opts["ld"]} lds', 'RD')
        if h < 15: e(f's_add_u32 s{sOFF}, s{sOFF}, {73728 - 1024 if h % 4 != 3 else 73728 + 3072}')
    e('s_mov_b64 exec, -1')
if opts['r0'] == 2: e(f'buffer_load_dwordx2 v[4:5], v1, {sr(SFL)}, 0 offen sc1', 'POLL')
if opts['r0'] == 1:
    e.wait_vm({'POLL'})
    e(f'v_cmp_eq_u64 vcc, v[4:5], {vr(vE, 2)}')
    e('s_nop 0')
    e(f's_and_b32 s{sRDY}, vcc_lo, 0xffff')
    e(f's_andn2_b32 s{sTODO}, s{sTODO}, s{sRDY}')
    masked_round()
while pub < 9: put(publish(pub)); pub += 1
mark()
if opts['r0'] == 2:
    e.wait_vm({'POLL'})
    e('s_branch L_chk')
e.label('L_poll')
e.S = State()
if opts['sleep']: e(f's_sleep {opts["sleep"]}')
e(f'buffer_load_dwordx2 v[4:5], v1, {sr(SFL)}, 0 offen {opts["pp"]}')
e(f's_sub_u32 s{sCNT}, s{sCNT}, 1')
e('s_cbranch_scc1 L_go')
e('s_waitcnt vmcnt(0)')
e.label('L_chk')
e(f'v_cmp_eq_u64 vcc, v[4:5], {vr(vE, 2)}')
e('s_nop 0')
if opts['rtrace']:
    e('s_memrealtime s[98:99]'); e('s_waitcnt lgkmcnt(0)')
    e(f's_sub_u32 s30, {opts["spin"]}, s{sCNT}')
    e('s_min_u32 s30, s30, 30')
    e(f's_and_b32 s31, vcc_lo, s{sTODO}')
    e('s_mov_b32 m0, s30')
    e(f'v_writelane_b32 v{vPA}, s98, m0')
    e('s_add_u32 m0, s30, 31')
    e(f'v_writelane_b32 v{vPA}, s31, m0')
e(f's_and_b32 s{sRDY}, vcc_lo, s{sTODO}')
if opts['allrdy'] == 1:
    e(f's_cmp_eq_u32 s{sRDY}, -1')
    e('s_cbranch_scc0 L_poll')
if opts['allrdy'] == 2:
    e(f's_and_b32 s{sI}, s{sRDY}, 0xffff')
    e(f's_cmp_eq_u32 s{sI}, 0xffff')
    e(f's_cselect_b32 s{sI}, -1, 0xffff0000')
    e(f's_and_b32 s{sRDY}, s{sRDY}, s{sI}')
e(f's_cmp_ge_u32 s{sRDY}, 0xffff0000')
e('s_cbranch_scc0 L_nomini')
e(f's_add_u32 m0, s{sLB}, 16384')
e(f's_add_u32 s{sOFF}, s{sMB}, {8*73728 - 1024}')
e(f'buffer_load_dwordx4 v{vMV}, {sr(SPR)}, s{sMB} offen {opts["ld"]} lds')
e(f'buffer_load_dwordx4 v{vMV}, {sr(SPR)}, s{sOFF} offen offset:1024 {opts["ld"]} lds')
e(f's_and_b32 s{sTODO}, s{sTODO}, 0xffff')
e.label('L_nomini')
e(f's_and_b32 s{sRDY}, s{sRDY}, 0xffff')
e('s_cbranch_scc0 L_noround')
e(f's_andn2_b32 s{sTODO}, s{sTODO}, s{sRDY}')
masked_round()
e.label('L_noround')
e(f's_cmp_lg_u32 s{sTODO}, 0')
e('s_cbranch_scc1 L_poll')
e.label('L_go')
mark()
e('s_waitcnt vmcnt(0)')
mark()
for m in range(2):
    for sec in range(2): e(f'ds_read_b64_tr_b16 {ar(64+4*m+2*sec, 2)}, v{vMR} offset:{16384 + m*64 + sec*512}')
for h in range(16): e(f'ds_read_b128 {ar(4*h, 4)}, v3 offset:{h*1024}')
for m in range(2): e(f'{MF} {vr(vO+16*m, 16)}, {ar(64+4*m, 4)}, {vr(vNM, 4)}, 0')
mini = []
for m in range(2):
    for c in range(2):
        d = vO + 32 + 8 * m + 4 * c
        mini += [f'v_cvt_pk_bf16_f32 v{d+p}, v{vO+16*m+8*c+2*p}, v{vO+16*m+8*c+2*p+1}' for p in range(4)]
        if m == 1 and c == 0: mini.append(f's_add_u32 s{sOM}, s{sOM}, 4608')
        mini.append(f'buffer_store_dwordx4 {vr(d, 4)}, v{vMO}, {sr(SOUT)}, s{sOM} offen offset:{c*1152} {opts["out"]}')
e.weave([f'{MF} {vr(vS, 16)}, {ar(aPERM, 4)}, {ar(4*h, 4)}, ' + ('0' if h == 0 else vr(vS, 16)) for h in range(16)], [(mini, 4, 14)])
for p in range(4): e(f'v_cvt_pk_bf16_f32 v{vP+p}, v{vS+2*p}, v{vS+2*p+1}')
e(f'buffer_store_dwordx4 {vr(vP, 4)}, v2, {sr(SOUT)}, s{sOO} offen {opts["out"]}')
e.label('L_done')
if opts['spinx'] >= 0:
    e('s_waitcnt vmcnt(0)')
    mark()
    e('s_memrealtime s[96:97]')
    e('s_waitcnt lgkmcnt(0)')
    e('s_sub_u32 s98, s98, s100')
    e('s_lshl_b32 s98, s98, 2')
    e('s_add_u32 s98, s98, s96')
    e.label('L_spinx')
    e('s_memrealtime s[96:97]')
    e('s_waitcnt lgkmcnt(0)')
    e('s_sub_u32 s97, s96, s98')
    e('s_cmp_lt_i32 s97, 0')
    e('s_cbranch_scc1 L_spinx')
if PROF:
    mark()
    e('s_waitcnt vmcnt(0)')
    mark(); mark()
    e(f'v_writelane_b32 v{vPA}, s96, 63')
    mk_srd(SWS, 18, None, 0x10000000)
    e('s_lshl_b32 s62, s2, 11')
    e('s_add_u32 s62, s62, 0x9000000')
    e('v_and_b32 v2, 63, v0'); e('v_lshrrev_b32 v3, 6, v0'); e('v_lshlrev_b32 v2, 2, v2'); e('v_lshl_add_u32 v2, v3, 9, v2')
    e(f'buffer_store_dword v{vPA}, v2, {sr(SWS)}, s62 offen')
    e(f'buffer_store_dword v{vPB}, v2, {sr(SWS)}, s62 offen offset:256')
    print('bars', nbar[0], file=sys.stderr)
e.label('L_end')
e('s_endpgm')
e.label('L_epoch_spin')
e.S = State()
e(f's_mov_b32 s3, {opts["spin"]}')
e('v_mov_b32 v1, 0')
e.label('L_epoch_loop')
e(f'buffer_load_dwordx2 {vr(vE, 2)}, v1, {sr(SDBG)}, 0 offen sc1')
e('s_sub_u32 s3, s3, 1')
e('s_cbranch_scc1 L_epoch_ok')
e('s_waitcnt vmcnt(0)')
e(f'v_or_b32 v2, v{vE}, v{vE+1}')
e('v_cmp_eq_u32 vcc, 0, v2')
e('s_cbranch_vccnz L_epoch_loop')
e('s_branch L_epoch_ok')
for t in stubs:
    e.label(f'L_stub{t}')
    e.raw(f'    s_call_b64 s[{sRET}:{sRET+1}], L_rescale')
    e.raw(f'    s_branch L_back{t}')
e.label('L_rescale')
e.S = State()
e('s_nop 15'); e('s_nop 15')
e(f'v_mov_b32 v{vMX+1}, v{vMX}')
e(f'v_permlane32_swap_b32 v{vMX}, v{vMX+1}')
e(f'v_max3_f32 v{vMX}, v{vMX}, v{vMX+1}, 0')
e(f'v_ceil_f32 v{vMX}, v{vMX}')
e(f'v_exp_f32 v{vMX+1}, -v{vMX}')
for r in range(48): e(f'v_sub_f32 v{vS+r}, v{vS+r}, v{vMX}')
for r in range(68): e(f'v_mul_f32 v{vO+r}, v{vO+r}, v{vMX+1}')
for r in range(16):
    e(f'v_lshlrev_b32 v2, 16, v{vP+r}')
    e(f'v_and_b32 v3, 0xffff0000, v{vP+r}')
    e(f'v_mul_f32 v2, v2, v{vMX+1}')
    e(f'v_mul_f32 v3, v3, v{vMX+1}')
    e(f'v_cvt_pk_bf16_f32 v{vP+r}, v2, v3')
e('s_nop 3')
e(f's_setpc_b64 s[{sRET}:{sRET+1}]')
e.label('L_textend')

hdr = f"""; GQA block (Q-proj + cached attention + O-proj + cross-workgroup reduction) for gfx950
; @launch grid=(256,1,1) block=(256,1,1) lds=163840
.amdgcn_target "amdgcn-amd-amdhsa--gfx950"
.text
"""
kd = f""".section .rodata,"a"
.p2align 6
.amdhsa_kernel {K}
  .amdhsa_next_free_vgpr 512
  .amdhsa_next_free_sgpr 102
  .amdhsa_accum_offset 256
  .amdhsa_group_segment_fixed_size 0
  .amdhsa_kernarg_size 64
  .amdhsa_user_sgpr_count 2
  .amdhsa_user_sgpr_kernarg_segment_ptr 1
  .amdhsa_system_sgpr_workgroup_id_x 1
.end_amdhsa_kernel
"""
open(sys.argv[1], 'w').write(hdr + e.text() + kd)
print(e.count, 'nops', e.nops, file=sys.stderr)
```

```python
import sys, math, struct
from emit import Emit, State

NAME = "standalone__gqa_block_cached__near_ridge"
opts = dict(kv="nt", wq="", x="", wo="", st="sc1", ld="sc1", T=8.0, prof=0, cpf=1, lag=9,
            kvplan="a", spin=200000, spinx=-1, fsh=3, sleep=0, allrdy=0, gmask=1, b1=14, la=9, one=0, pm='', pk=0, nost=0, nowo=0, nopub=0, apl='0,1,1,1,1,2,2,2,2,2,2,2', bwo='1,3,5,7,12,12,13,13,15,15', awo='1,1,5,5,11,12,12,13,13,15', brd='7,10', ard='3,8', opl=1, pollpos=0, out='', krot=0, qrot=0, sent=0, w2=1, slack=0, x_=0, half=0, kv0=0, thr=0, nofast=0, roto=1, rtrace=0, r0=2, pg=13, one_flag=1, fls=7, two=0, pp='sc1', fp='sc1', full=0, tlb=-1, tsh=16, pp0=0, wqfirst=1, qrd=6, wgf=2)
for a in sys.argv[2:]:
    k, v = a.split('=')
    opts[k] = type(opts[k])(v) if not isinstance(opts[k], str) else v.replace('+', ' ')
PROF = opts['prof']
TM = 's_memrealtime' if PROF == 2 else 's_memtime'
PM = set(int(x) for x in opts['pm'].split(',')) if opts['pm'] else None
def f32(x): return '0x%08x' % struct.unpack('<I', struct.pack('<f', x))[0]

e = Emit(); e.roles = ['A', 'B']
SX, SK, SV, SWQ, SWO, SWS = 20, 24, 28, 32, 36, 40
SFL, SPR, SOUT, SDBG = 80, 84, 88, 92
sW, sHKV, sB, sROT = 44, 45, 46, 47
sT0, sT1, sT2 = 48, 49, 52
sRET = 50
sWQ, sWO, sST = 53, 54, 55
sM0W, sM0T = 56, 57
sSC = 58
sXO, sFL, sM0Q, sJOB = 60, 61, 62, 63
sTILE = 64
vKR = 16; vVR = 40
vKa, vKb, vVc = 52, 53, 54
vWOR = 55; vXW, vXR = 61, 62; vWOV = 63; vSTV = 67
vMX = 68; vINV = 70
vPA, vPB = 72, 73
vE = 74
vFLV = 76
vL16 = 77
vS = 80; vNM = 112; vP = 128; vO = 144; vL = 208; vQ = 224
vXRD = 80; vWQR = 88; vXa, vXb = 96, 97; vWQV = 100
aX = 0; aWQ = 144; aONE = 240; aPERM = 244
aK = 0; aV = 32; aWO = 64; aOO = 192
def aVB(t): return aV if t % 2 else aOO
FL_OFF = 256 * 73728
FSH = opts['fsh']; FG = 16 << FSH

def vr(b, n): return f'v[{b}:{b+n-1}]'
def ar(b, n): return f'a[{b}:{b+n-1}]'
def sr(b, n=4): return f's[{b}:{b+n-1}]'
MF = 'v_mfma_f32_32x32x16_bf16'
def win(off): return off >> 16, off & 0xffff

nbar = [0]
def mark():
    if not PROF or (PM is not None and nbar[0] not in PM):
        if nbar[0] == opts['spinx']: e('s_memrealtime s[98:99]')
        nbar[0] += 1
        return
    if PM is not None:
        i = nbar[0]; nbar[0] += 1
        e(f'{TM} s[98:99]'); e('s_waitcnt lgkmcnt(0)'); e(f'v_writelane_b32 v{vPB}, s98, {i}')
        return
    i = nbar[0]; nbar[0] += 1
    e(f'{TM} s[98:99]'); e('s_waitcnt lgkmcnt(0)')
    e(f'v_writelane_b32 v{vPA}, s98, {i}')
    if i > 0: e(f'v_writelane_b32 v{vPB}, s100, {i-1}')
    e(f'{TM} s[100:101]')
def bar(tags, lgkm0=True):
    if not PROF or PM is not None:
        e.wait_vm(tags, lgkm0=lgkm0); e('s_barrier')
        mark()
        return
    i = nbar[0]; nbar[0] += 1
    e(f'{TM} s[98:99]'); e('s_waitcnt lgkmcnt(0)')
    e(f'v_writelane_b32 v{vPA}, s98, {i}')
    if i > 0: e(f'v_writelane_b32 v{vPB}, s100, {i-1}')
    e.wait_vm(tags, lgkm0=lgkm0); e('s_barrier')
    e(f'{TM} s[100:101]')

def put(items):
    for it in items:
        if callable(it): it()
        elif isinstance(it, tuple): e(it[0], it[1])
        else: e(it)
def wrap_adv(r, step, lim, tmp):
    def f():
        e(f's_sub_u32 s{tmp}, s{r}, {lim}')
        e(f's_cselect_b32 s{r}, s{r}, s{tmp}')
    return [f's_add_u32 s{r}, s{r}, {step}', f]
def dma(v, srd, so, off, pol, tag):
    o = f' offset:{off}' if off else ''
    p = f' {pol}' if pol else ''
    return (f'buffer_load_dwordx4 v{v}, {sr(srd)}, {so} offen{o}{p} lds', tag)

KVORD = ['K0'] + sum(([f'K{t+1}', f'V{t}'] for t in range(15)), []) + ['V15']
KVSLOT = {}
def set_group(g):
    for n, nm in enumerate(KVORD):
        KVSLOT[nm] = n if (g == 'A' and n in (12, 13)) else (n + 4) % 12
XSLOT = [9, 10, 11, 0, 1, 2, 3, 12, 13]
def kv(n):
    nm = KVORD[n]; t = int(nm[1:]); isk = nm[0] == 'K'
    srd = SK if isk else SV
    return [f's_add_u32 m0, s{sM0W}, {KVSLOT[nm]*8192}',
            dma(vKa if isk else vVc, srd, f's{sTILE+t}', 0, opts['kv'], nm),
            dma(vKb if isk else vVc, srd, f's{sTILE+t}', 1024, opts['kv'], nm)]
def xt(j):
    return [f's_add_u32 m0, s{sM0W}, {XSLOT[j]*8192}',
            dma(vXa, SX, f's{sXO}', 0, opts['x'], f'X{j}'),
            dma(vXb, SX, f's{sXO}', 1024, opts['x'], f'X{j}')] + wrap_adv(sXO, 128, 1152, sT1)
def wq_stage(s):
    it = [f's_add_u32 m0, s{sM0Q}, {(14 + 2*(s%3))*8192}']
    it += [dma(vWQV + p, SWQ, f's{sWQ}', p * 1024, opts['wq'], f'WQ{s}') for p in range(4)]
    return it + wrap_adv(sWQ, 2 * 131072, 36 * 131072, sT1)
WOG = [4, 4, 3, 4, 0, 1, 2, 3, 4]
XG = 2
RG = 1
def wo_half(j, half):
    it = [f's_add_u32 m0, s{sM0T}, {4*WOG[j]*8192 + half*4096}']
    if half: it.append(f's_add_u32 s{sT0}, s{sWO}, 36864')
    it += [dma(vWOV + p, SWO, f's{sT0 if half else sWO}', p * 1024, opts['wo'], f'WO{j}') for p in range(4)]
    return it + (wrap_adv(sWO, 128, 1152, sT1) if half else [])
def wo_cb(j): return wo_half(j, 0) + wo_half(j, 1)

def mk_srd(d, ptr, addlo, nbytes):
    if addlo is None:
        e(f's_mov_b32 s{d}, s{ptr}'); e(f's_and_b32 s{d+1}, s{ptr+1}, 0xffff')
    else:
        e(f's_add_u32 s{d}, s{ptr}, {addlo}')
        e(f's_addc_u32 s{d+1}, s{ptr+1}, 0')
        e(f's_and_b32 s{d+1}, s{d+1}, 0xffff')
    e(f's_mov_b32 s{d+2}, {nbytes}')
    e(f's_mov_b32 s{d+3}, 0x00020000')

def rd_x(j):
    w_, o = win(XSLOT[j] * 8192)
    return [f'ds_read_b128 {ar(aX+4*(4*j+ks), 4)}, v{vXRD + 4*w_ + ks} offset:{o}' for ks in range(4)]
def rd_wq(stage):
    it = []
    for ks in range(2):
        w_, o = win((14 + 2 * (stage % 3) + ks) * 8192)
        for u in range(4):
            d = aWQ + 32 * (stage % 2) + (ks * 4 + u) * 4
            for sec in range(2):
                it.append(f'ds_read_b64_tr_b16 {ar(d+2*sec, 2)}, v{vWQR + 4*(w_-1) + u} offset:{o + sec*1024}')
    return it
def mf_q(stage, order=None):
    it = []
    idx = [(ks, u) for ks in range(2) for u in range(4)] if order is None else order
    for ks, u in idx:
        d = aWQ + 32 * (stage % 2) + (ks * 4 + u) * 4
        c = '0' if (stage == 0 and ks == 0) else vr(vO + 16 * u, 16)
        it.append(f'{MF} {vr(vO+16*u, 16)}, {ar(d, 4)}, {ar(aX + 4*(2*stage+ks), 4)}, {c}')
    return it
def aKB(t): return aV if t == 1 else aK
def rd_k(t):
    w_, o = win(KVSLOT[f'K{t}'] * 8192)
    return [f'ds_read_b128 {ar(aKB(t)+4*s, 4)}, v{vKR + 8*w_ + s} offset:{o}' for s in range(8)]
def rd_v(t):
    w_, o = win(KVSLOT[f'V{t}'] * 8192)
    it = []
    for a in range(2):
        for tt in range(4):
            d = aVB(t) + (a * 4 + tt) * 4
            for sec in range(2):
                it.append(f'ds_read_b64_tr_b16 {ar(d+2*sec, 2)}, v{vVR + 4*w_ + tt} offset:{o + a*4096 + sec*2048}')
    return it
def mf_qk(t):
    S = vS + 16 * (t % 2)
    return [f'{MF} {vr(S, 16)}, {ar(aKB(t)+4*s, 4)}, {vr(vQ+4*s, 4)}, ' + (vr(S, 16) if s else ('0' if t <= 1 else vr(vNM, 16))) for s in range(8)]
def mf_pv(t):
    P = vP + 8 * (t % 2)
    it = []
    for a in range(2):
        for tt in range(4):
            c = '0' if (t == 0 and a == 0) else vr(vO + 16 * tt, 16)
            it.append(f'{MF} {vr(vO+16*tt, 16)}, {ar(aVB(t) + (a*4+tt)*4, 4)}, {vr(P+4*a, 4)}, {c}')
        it.append(mf_l(t, a))
    return it
def mf_l(t, a):
    P = vP + 8 * (t % 2)
    c = '0' if (t == 0 and a == 0) else vr(vL, 4)
    return f'v_mfma_f32_16x16x32_bf16 {vr(vL, 4)}, {ar(aONE, 4)}, {vr(P+4*a, 4)}, {c}'
def sm_max(t):
    S = vS + 16 * (t % 2)
    it = [f'v_max3_f32 v{vMX}, v{S}, v{S+1}, v{S+2}', f'v_max3_f32 v{vMX+1}, v{S+3}, v{S+4}, v{S+5}']
    k = 6; d = 0
    while k < 16:
        it.append(f'v_max3_f32 v{vMX+d}, v{vMX+d}, v{S+k}, v{S+k+1}'); k += 2; d ^= 1
    it.append(f'v_max_f32 v{vMX}, v{vMX}, v{vMX+1}')
    return it
stubs = []
def sm_check(t0):
    t = f'{e.roles[0]}{t0}'
    def f():
        e(f'v_cmp_lt_f32 vcc, {f32(opts["T"])}, v{vMX}')
        e(f's_cbranch_vccnz L_stub{t}')
        e.label(f'L_back{t}')
        stubs.append(t)
    return [f]
def sm_exp(t):
    S = vS + 16 * (t % 2); P = vP + 8 * (t % 2)
    it = [f'v_exp_f32 v{S}, v{S}', f'v_exp_f32 v{S+1}, v{S+1}']
    for p in range(8):
        if p < 7: it += [f'v_exp_f32 v{S+2*p+2}, v{S+2*p+2}', f'v_exp_f32 v{S+2*p+3}, v{S+2*p+3}']
        it.append(f'v_cvt_pk_bf16_f32 v{P+p}, v{S+2*p}, v{S+2*p+1}')
    return it
def rd_wo(j):
    w_, o = win(WOG[j] * 32768)
    it = []
    for oth in range(2):
        for f in range(8):
            d = aWO + 64 * (j % 2) + (oth * 8 + f) * 4
            for sec in range(2):
                it.append(f'ds_read_b64_tr_b16 {ar(d+2*sec, 2)}, v{vWOR + 2*w_ + oth} offset:{o + f*2048 + sec*1024}')
    return it
def mf_o(j):
    acc = vS + 16 * (j % 2)
    it = []
    for oth in range(2):
        for f in range(8):
            d = aWO + 64 * (j % 2) + (oth * 8 + f) * 4
            b = vr(vQ + 4 * f, 4) if oth == 0 else ar(aOO + 4 * f, 4)
            c = '0' if (oth == 0 and f == 0) else vr(acc, 16)
            it.append(f'{MF} {vr(acc, 16)}, {ar(d, 4)}, {b}, {c}')
    return it
def ep_o(j):
    acc = vS + 16 * (j % 2); P = vP + 8 * (j % 2)
    it = []
    for h in range(2):
        for p in range(4):
            it.append(f'v_cvt_pk_bf16_f32 v{P+4*h+p}, v{acc+8*h+2*p}, v{acc+8*h+2*p+1}')
        off = ' offset:1024' if h else ''
        if not opts['nost'] and not (opts['half'] and j in (1, 2, 3, 4)): it.append((f'buffer_store_dwordx4 {vr(P+4*h, 4)}, v{vSTV}, {sr(SWS)}, s{sTILE+j} offen{off} {opts["st"]}', f'ST{j}'))
    return it
def publish(j):
    def f():
        if opts['one_flag']:
            FLS = opts['fls']
            if j == 8 or (opts['two'] and j == opts['two']):
                if j == 8: e('s_waitcnt vmcnt(0)')
                else: e.wait_vm({f'ST{j}'})
                so = '0' if j == 8 else f's{sFL}'
                e(f'buffer_store_dwordx2 {vr(vE, 2)}, v{vFLV}, {sr(SFL)}, {so} offen {opts["fp"]}', 'FL')
            return
        e.wait_vm({f'ST{j}'})
        so, off = ('0', j * 512) if j < 8 else (f's{sFL}', 0)
        e(f'buffer_store_dwordx2 {vr(vE, 2)}, v{vFLV}, {sr(SFL)}, {so} offen offset:{off} sc1', 'FL')
    return [f]

K = NAME + '_kernel'
e.raw(f'.globl {K}\n.p2align 8\n.type {K},@function\n{K}:')
e('s_cmp_ge_u32 s2, 256')
e('s_cbranch_scc1 L_end')
e('s_load_dwordx8 s[4:11], s[0:1], 0')
e('s_load_dwordx8 s[12:19], s[0:1], 32')
e('s_memrealtime s[100:101]')
if PROF: e(f'{TM} s[96:97]')
if opts['cpf']:
    e('s_getpc_b64 s[98:99]')
    e.label('L_pc')
    e('s_lshr_b32 s3, s2, 3')
    e('v_lshl_add_u32 v9, s3, 4, v0')
    e('v_lshlrev_b32 v9, 7, v9')
    e(f'v_min_u32 v9, L_textend-L_pc-4, v9')
    e('v_cmp_gt_u32 vcc, 16, v0')
    e('s_and_saveexec_b64 s[20:21], vcc')
    e('s_cbranch_execz L_nocpf')
    e.raw('    global_load_dword v12, v9, s[98:99]')
    e.label('L_nocpf')
    e('s_mov_b64 exec, -1')
e('v_lshrrev_b32 v1, 6, v0')
e(f's_lshr_b32 s{sB}, s2, 4')
e(f'v_readfirstlane_b32 s{sW}, v1')
e(f's_sub_u32 s{sT0}, s{sB}, 9')
e(f's_cselect_b32 s3, s{sB}, s{sT0}')
e(f's_lshl_b32 s{sWQ}, s3, 19')
e(f's_lshl_b32 s{sXO}, s3, 7')
e(f's_mul_i32 s{sT0}, s{sB}, 73728')
e(f's_lshl_b32 s{sM0W}, s{sW}, 11')
e('v_bfe_u32 v2, v0, 3, 3')
e('v_and_b32 v3, 7, v0')
e('v_lshrrev_b32 v6, 1, v2')
e('v_xor_b32 v7, v3, v6')
e('v_lshlrev_b32 v7, 4, v7')
e('v_mul_u32_u24 v8, 1152, v2')
e('v_mul_u32_u24 v9, 18432, v1')
e('v_add_u32 v9, v9, v8')
e(f'v_add_u32 v{vXa}, v9, v7')
e('v_xor_b32 v7, 64, v7')
e(f'v_add_u32 v{vXb}, v9, v7')
e(f'v_add_u32 v{vXb}, 8192, v{vXb}')
e(f's_and_b32 s{sHKV}, s2, 7')
e(f's_lshl_b32 s{sHKV}, s{sHKV}, 1')
e(f's_bfe_u32 s{sT2}, s2, 0x10003')
e(f's_add_u32 s{sHKV}, s{sHKV}, s{sT2}')
e(f's_lshl_b32 s{sM0Q}, s{sW}, 12')
e(f's_lshl_b32 s{sT2}, s{sHKV}, 9')
e('v_bfe_u32 v4, v0, 4, 2')
e('v_and_b32 v5, 15, v0')
e('v_lshlrev_b32 v7, 2, v4')
e('v_xor_b32 v7, v5, v7')
e('v_lshlrev_b32 v7, 4, v7')
e('v_lshl_add_u32 v9, v4, 13, v7')
e('v_lshrrev_b32 v10, 1, v1')
e('v_lshl_add_u32 v9, v10, 17, v9')
e('v_and_b32 v10, 1, v1')
e(f'v_lshl_add_u32 v{vWQV}, v10, 8, v9')
for p in range(1, 4): e(f'v_add_u32 v{vWQV+p}, {p*31744}, v{vWQV}')
def pmark(i):
    if opts['pp0']:
        e(f'{TM} s[98:99]'); e('s_waitcnt lgkmcnt(0)'); e(f'v_writelane_b32 v{vPB}, s98, {i}')
e('s_waitcnt lgkmcnt(0)')
pmark(54)
if opts['wqfirst']:
    mk_srd(SWQ, 10, f's{sT2}', 4718592 - 15 * 512)
    put(wq_stage(0)); put(wq_stage(1))
    mk_srd(SX, 4, f's{sT0}', 73728)
    put(xt(0)); put(xt(1))
else:
    mk_srd(SX, 4, f's{sT0}', 73728)
    put(xt(0))
    mk_srd(SWQ, 10, f's{sT2}', 4718592 - 15 * 512)
    put(wq_stage(0))
    put(xt(1)); put(wq_stage(1))
pmark(55)
e('v_lshl_add_u32 v9, v4, 8, v7')
e(f'v_lshl_add_u32 v{vVc}, v1, 11, v9')
e('v_xor_b32 v7, v5, v4')
e('v_lshlrev_b32 v7, 4, v7')
e('v_lshl_add_u32 v9, v4, 8, v7')
e('v_lshlrev_b32 v10, 7, v10')
e('v_xor_b32 v9, v9, v10')
e(f'v_lshl_add_u32 v{vKa}, v1, 11, v9')
e(f'v_xor_b32 v{vKb}, 64, v{vKa}')
for t in range(16): e(f's_mov_b32 s{sTILE+t}, {t*8192}')
e(f's_lshl_b32 s{sM0T}, s{sW}, 13')
e(f's_lshr_b32 s{sROT}, s{sB}, 1')
e(f's_lshl_b32 s{sWO}, s{sROT}, 7')
e(f's_lshl_b32 s{sJOB}, s{sB}, 4')
e(f's_add_u32 s{sJOB}, s{sJOB}, s{sHKV}')
e(f's_lshl_b32 s3, s{sJOB}, 17')
mk_srd(SK, 6, 's3', 131072)
mk_srd(SV, 8, 's3', 131072)
mk_srd(SDBG, 16, None, 256)
e('s_cmp_lg_u32 s2, 0')
e('s_cbranch_scc1 L_noepoch')
e('v_lshlrev_b32 v9, 8, v0')
e('v_mov_b32 v10, s100'); e('v_mov_b32 v11, s101')
e(f'buffer_store_dwordx2 v[10:11], v9, {sr(SDBG)}, 0 offen sc1')
e.vm['A'].pop(); e.vm['B'].pop()
e.label('L_noepoch')

if opts['krot']:
    e(f's_mul_i32 s3, s{sJOB}, {opts["krot"]}')
    e(f's_lshr_b32 s{sT0}, s{sJOB}, 4')
    e(f's_add_u32 s3, s3, s{sT0}')
    e('s_lshl_b32 s3, s3, 13')
    for t in range(16):
        e(f's_add_u32 s{sTILE+t}, s3, {t*8192}')
        e(f's_and_b32 s{sTILE+t}, s{sTILE+t}, 0x1e000')
e(f's_mul_i32 s3, s{sHKV}, 294912')
mk_srd(SWO, 12, 's3', 294912)
e(f's_mul_i32 s3, s{sJOB}, 73728')
mk_srd(SWS, 18, 's3', 73728)
FB = (128 << opts['fls']) if opts['one_flag'] else 36 * FG
e(f's_mul_i32 s3, s{sB}, {FB}')
e(f's_add_u32 s3, s3, {FL_OFF}')
mk_srd(SFL, 18, 's3', FB)
e(f's_mul_i32 s3, s{sB}, {16*73728}')
mk_srd(SPR, 18, 's3', 16 * 73728)
e(f's_mul_i32 s3, s{sB}, 73728')
mk_srd(SOUT, 14, 's3', 73728)
sc = math.log2(math.e) / math.sqrt(128.0)
e(f's_mov_b32 s{sSC}, {f32(sc)}'); e(f's_mov_b32 s{sSC+1}, {f32(sc)}')
e('v_bfe_u32 v9, v0, 5, 1')
e('v_and_b32 v10, 31, v0')
e('v_bfe_u32 v11, v0, 2, 2')
e('v_and_b32 v7, 3, v0')
e('v_bfe_u32 v13, v0, 4, 1')
e('v_and_b32 v14, 1, v1')
e('v_lshl_add_u32 v14, v14, 5, v10')
e('v_bfe_u32 v15, v14, 1, 3')
e('v_xor_b32 v15, v15, v9')
e('v_lshlrev_b32 v15, 4, v15')
e(f'v_lshl_add_u32 v{vXRD}, v14, 7, v15')
for ks in range(1, 4): e(f'v_xor_b32 v{vXRD+ks}, {ks*32}, v{vXRD}')
for ks in range(4): e(f'v_add_u32 v{vXRD+4+ks}, 0x10000, v{vXRD+ks}')
e('v_lshrrev_b32 v14, 1, v1')
e('v_lshlrev_b32 v14, 12, v14')
e('v_lshl_add_u32 v14, v9, 11, v14')
e('v_lshl_add_u32 v14, v11, 8, v14')
e('v_lshl_add_u32 v14, v11, 6, v14')
e('v_lshl_add_u32 v14, v13, 5, v14')
e('v_and_b32 v15, 1, v7')
e('v_lshl_add_u32 v14, v15, 4, v14')
e('v_lshrrev_b32 v15, 1, v7')
e('v_lshl_add_u32 v14, v15, 3, v14')
e(f'v_add_u32 v{vWQR}, 0x10000, v14')
for u in range(1, 4): e(f'v_xor_b32 v{vWQR+u}, {u*64}, v{vWQR}')
for u in range(4): e(f'v_add_u32 v{vWQR+4+u}, 0x10000, v{vWQR+u}')
e('v_xor_b32 v14, v9, v5')
e('v_lshlrev_b32 v14, 4, v14')
e(f'v_lshl_add_u32 v{vKR}, v10, 8, v14')
for s in range(1, 8): e(f'v_xor_b32 v{vKR+s}, {s*32}, v{vKR}')
for w_ in (1, 2):
    for s in range(8): e(f'v_add_u32 v{vKR+8*w_+s}, {w_*0x10000}, v{vKR+s}')
e('v_lshlrev_b32 v14, 10, v9')
e('v_lshl_add_u32 v14, v11, 8, v14')
e('v_lshl_add_u32 v14, v11, 6, v14')
e('v_lshl_add_u32 v14, v13, 5, v14')
e(f'v_lshl_add_u32 v{vVR}, v7, 3, v14')
for t in range(1, 4): e(f'v_xor_b32 v{vVR+t}, {t*64}, v{vVR}')
for w_ in (1, 2):
    for t in range(4): e(f'v_add_u32 v{vVR+4*w_+t}, {w_*0x10000}, v{vVR+t}')
e('v_lshrrev_b32 v4, 1, v1')
e('v_lshlrev_b32 v14, 9, v9')
e('v_lshl_add_u32 v14, v11, 7, v14')
e('v_lshrrev_b32 v15, 1, v11')
e('v_xor_b32 v15, v15, v4')
e('v_lshl_add_u32 v14, v15, 6, v14')
e('v_and_b32 v15, 1, v7')
e('v_lshl_add_u32 v14, v15, 5, v14')
e('v_lshl_add_u32 v14, v13, 4, v14')
e('v_lshrrev_b32 v15, 1, v7')
e('v_lshl_add_u32 v14, v15, 3, v14')
e(f'v_lshl_add_u32 v{vWOR}, v4, 14, v14')
e(f'v_xor_b32 v{vWOR+1}, 0x4000, v{vWOR}')
for w_ in (1, 2):
    for o in range(2): e(f'v_add_u32 v{vWOR+2*w_+o}, {w_*0x10000}, v{vWOR+o}')
e('v_and_b32 v14, 63, v0')
e(f'v_lshlrev_b32 v{vL16}, 4, v14')
e(f'v_lshl_add_u32 v{vXW}, v1, 13, v{vL16}')
e(f'v_add_u32 v{vXW}, {XG*32768}, v{vXW}')
e(f'v_xor_b32 v{vXR}, 0x4000, v{vXW}')
e(f'v_lshl_add_u32 v{vSTV}, v1, 11, v{vL16}')
if opts['full']:
    e('v_lshrrev_b32 v14, 4, v14')
    e('v_lshlrev_b32 v14, 20, v14')
    e('v_lshl_add_u32 v14, v5, 3, v14')
else: e(f'v_lshlrev_b32 v14, 20, v14')
e(f'v_lshl_add_u32 v14, v1, {opts["fls"] if opts["one_flag"] else FSH+4}, v14')
e(f's_lshl_b32 s3, s{sHKV}, {opts["fls"]+2 if opts["one_flag"] else FSH}')
e(f'v_add_u32 v{vFLV}, s3, v14')
e('v_and_b32 v14, 1, v6')
e('v_lshlrev_b32 v14, 2, v14')
e('v_xor_b32 v14, v14, v3')
e('v_lshl_add_u32 v14, v14, 4, v8')
e('v_mul_u32_u24 v15, 73728, v1')
e(f'v_add_u32 v{vWOV}, v14, v15')
for p in range(1, 4): e(f'v_add_u32 v{vWOV+p}, {p*8192}, v{vWOV}')
e('v_bfe_u32 v14, v0, 2, 1')
e('v_cmp_eq_u32 vcc, v14, v13')
e('v_mov_b32 v14, 0x3f803f80')
e('v_cndmask_b32 v14, 0, v14, vcc')
for i in range(4): e(f'v_accvgpr_write_b32 a{aONE+i}, v14')
e('v_and_b32 v14, 1, v0')
e('v_lshlrev_b32 v14, 4, v14')
e('v_lshlrev_b32 v14, v14, 0x3f80'.replace('v14, 0x3f80', 'v14, v15') if False else 'v_mov_b32 v15, 0x3f80')
e('v_lshlrev_b32 v14, v14, v15')
e('v_bfe_u32 v15, v0, 2, 1')
e('v_xor_b32 v15, v15, v9')
e('v_or_b32 v15, v15, v13')
e('v_lshlrev_b32 v15, 3, v15')
e('v_bfe_u32 v2, v0, 3, 1')
e('v_bfe_u32 v3, v0, 1, 1')
e('v_lshl_add_u32 v2, v2, 1, v3')
e('v_add_u32 v2, v2, v15')
for d in range(4):
    e(f'v_cmp_eq_u32 vcc, {d}, v2')
    e(f'v_cndmask_b32 v3, 0, v14, vcc')
    e(f'v_accvgpr_write_b32 a{aPERM+d}, v3')

def qcvt(u):
    it = []
    for p in range(8):
        r = vO + 16 * u + 2 * p
        if opts['pk']: it.append(f'v_pk_mul_f32 {vr(r, 2)}, {vr(r, 2)}, s[{sSC}:{sSC+1}]')
        else: it += [f'v_mul_f32 v{r}, s{sSC}, v{r}', f'v_mul_f32 v{r+1}, s{sSC}, v{r+1}']
    for p in range(8):
        r = vO + 16 * u + 2 * p
        it.append(f'v_cvt_pk_bf16_f32 v{vQ+8*u+p}, v{r}, v{r+1}')
    return it
def X(*js): return sum((xt(j) for j in js), [])
def KVs(*ns): return sum((kv(n) for n in ns), [])
def RX(*js): return sum((rd_x(j) for j in js), [])
if opts['rtrace']: e(f'v_mov_b32 v{vPA}, 0')
pmark(59)
put(X(2, 3, 4)); bar({'X0', 'X1', 'WQ0'}, False)
put(RX(0, 1) + rd_wq(0))
put(X(5, 6, 7)); bar({'WQ1', 'X2'})
e.weave(mf_q(0), [(rd_wq(1) + RX(2), -1, 6)])

def group_body(g):
    e.roles = [g]; set_group(g)
    WOG[0] = 4 if g == 'A' else 3
    B1 = opts['b1']
    if g == 'A':
        put(X(8) + KVs(0, 1)); bar({'X3', 'X4', 'X5'})
        e.weave(mf_q(1), [(RX(3, 4, 5), -1, 4)])
        put(KVs(2, 3, 4)); bar({'X6', 'X7', 'X8'})
        put(RX(6, 7, 8))
        put(KVs(*range(5, min(B1, 11)))); bar(set())
        put(KVs(*range(11, B1)))
        put(wq_stage(2) + wq_stage(3) + wq_stage(4))
        qplan = {}
        nxt = B1
        cnt = [int(x) for x in opts['apl'].split(',')]
        wot = [int(x) for x in opts['awo'].split(',')]
        rdt = tuple(int(x) for x in opts['ard'].split(','))
    else:
        put(X(8) + wq_stage(2)); bar({'X3', 'X4', 'X5'})
        e.weave(mf_q(1), [(RX(3, 4, 5), -1, 4)])
        put(wq_stage(3) + wq_stage(4)); bar({'X6', 'X7', 'X8'})
        put(RX(6, 7, 8))
        bar(set())
        LA = opts['la']
        qplan = {14: [0, 1], 15: [2, 3], 16: [4, 5], 17: list(range(6, LA - 1))}
        nxt = LA - 1
        cnt = [1] + [2] * 15
        wot = [int(x) for x in opts['bwo'].split(',')]
        rdt = tuple(int(x) for x in opts['brd'].split(','))
    bar({'WQ2'})
    put(rd_wq(2))
    bar({'WQ3'})
    for s in range(2, 16):
        d = []
        if s + 3 < 18: d += wq_stage(s + 3)
        d += KVs(*qplan.get(s, []))
        e.weave(mf_q(s), [(rd_wq(s + 1), -1, opts['qrd'])] + ([(d, 0, 8)] if d else []))
        tags = {f'WQ{s+2}'}
        if s == 15 and g == 'A': tags |= {'K0', 'K1', 'V0'}
        bar(tags)
    r17 = rd_wq(17)
    r17 = sum((r17[2*u:2*u+2] + r17[8+2*u:8+2*u+2] for u in range(4)), [])
    mq = []
    for st, u in ((16, 0), (16, 1), (17, 0), (17, 1), (16, 2), (17, 2), (16, 3), (17, 3)):
        mq += mf_q(st, [(0, u), (1, u)])
    d = KVs(*(qplan.get(16, []) + qplan.get(17, [])))
    init0 = sm_max(0) + [f'v_mov_b32 v{vMX+1}, v{vMX}', f'v_permlane32_swap_b32 v{vMX}, v{vMX+1}', f'v_max_f32 v{vMX}, v{vMX}, v{vMX+1}'] + \
            [f'v_sub_f32 v{vS+r}, v{vS+r}, v{vMX}' for r in range(16)] + sm_exp(0) + [f'v_sub_f32 v{vNM+r}, 0, v{vMX}' for r in range(16)]
    d0 = []
    for _ in range(cnt[0]): d0 += kv(nxt); nxt += 1
    if g == 'A':
        e.weave(mq + mf_qk(0), [(r17, -1, 4), (rd_k(0) + rd_k(1), 4, 8), (qcvt(0), 7, 11), (qcvt(1), 11, 14), (qcvt(2), 14, 18), (qcvt(3), 18, 22),
                                (rd_v(0), 20, 24)])
        mark(); mark(); mark()
        e.weave(mf_qk(1), [(init0, 1, 8)] + ([(d0, -1, 2)] if d0 else []))
    else:
        e.weave(mq, [(r17, -1, 4), (d, 2, 8), (qcvt(0), 7, 11), (qcvt(1), 11, 14), (qcvt(2), 14, 16)])
        put(qcvt(3))
        mark()
        bar({'K0', 'K1', 'V0'})
        put(rd_k(0))
        e.weave(mf_qk(0), [(rd_k(1), 0, 3), (rd_v(0), 3, 8), (d0, 0, 4)])
        mark()
        e.weave(mf_qk(1), [(init0, 1, 8)])
    bar({'K2', 'V1'})
    WORD = {rdt[0]: rd_wo(0)[:16], rdt[0]+1: rd_wo(0)[16:], rdt[1]: rd_wo(1)[:16], rdt[1]+1: rd_wo(1)[16:]}
    assert wot[1] < rdt[0] and wot[3] < rdt[1] and wot[4] >= rdt[0] + 2 and wot[6] >= rdt[1] + 2 and wot[8] >= 12 and wot[0] >= 1
    if g == 'A': assert wot[2] >= rdt[0] + 2 and wot[4] >= 7
    cnt += [2] * 16
    for t in range(1, 16):
        d = []
        for _ in range(cnt[t]):
            if nxt < 32:
                assert nxt < 12 or (nxt - 12 + 1) // 2 <= t, (g, nxt, t)
                assert min((nxt - 2 + 1) // 2, 14) > t, (g, nxt, t)
                d += kv(nxt); nxt += 1
        for hi, tt_ in enumerate(wot):
            if tt_ == t: d += wo_half(hi // 2, hi % 2)
        if t == opts['tlb']:
            d += [f'v_lshlrev_b32 v1, {opts["tsh"]}, v0',
                  (f'buffer_load_dword v218, v1, {sr(SFL)}, 0 offen', 'TL'),
                  (f'buffer_load_dword v219, v1, {sr(SPR)}, 0 offen', 'TL'),
                  (f'buffer_load_dword v220, v1, {sr(SOUT)}, 0 offen', 'TL')]
        if t == 7:
            d += ['v_mov_b32 v1, 0', (f'buffer_load_dwordx2 {vr(vE, 2)}, v1, {sr(SDBG)}, 0 offen sc1', 'EP')]
        if False: pass
        elif t < 15:
            sm = sm_max(t) + sm_check(t) + sm_exp(t)
            if t == 1: sm = [f'v_add_f32 v{vS+16+r}, v{vS+16+r}, v{vNM}' for r in range(16)] + sm
            kw = lambda: e.need_regs(ar(aK + 28, 4))
            kw.cost = 4
            X_ = opts['x_']
            if X_ & 1: sm = [i for i in sm if callable(i) or not i.startswith('v_exp')]
            if X_ & 2: sm = [i for i in sm if callable(i) or not i.startswith('v_cvt')]
            if X_ & 4: sm = [i for i in sm if not callable(i) and not i.startswith('v_max')]
            rk, rv = rd_k(t + 1), rd_v(t)
            if X_ & 8: rk = []
            if X_ & 16: rv = []
            streams = [(rk, 0, 8), (rv + WORD.get(t, []), 1, 16), (sm, 1, 18), (d, 0, 17), ([kw], 9, 10)]
            if t == 14: streams.append((rd_v(15), 10, 17))
            e.weave2(mf_pv(t - 1) + mf_qk(t + 1), streams, opts['slack'])
        else:
            sm = sm_max(t) + sm_check(t) + sm_exp(t)
            e.weave2(mf_pv(14), [(sm, 1, 10), (d, 0, 10)])
        if t < 15:
            tags = {f'K{t+2}', f'V{t+1}'}
            if t == rdt[0] - 1: tags.add('WO0')
            if t == rdt[1] - 1: tags.add('WO1')
            if t == 14: tags.add('EP')
            if t == 13: tags.add('V15')
            bar(tags)
    assert nxt == 32

e(f's_and_b32 s3, s{sB}, {opts["gmask"]}')
e('s_cbranch_scc0 L_grpA')
S0 = e.S.clone(); nb0 = nbar[0]
group_body('B')
e('s_branch L_common')
SB = e.S; nb1 = nbar[0]; nbar[0] = nb0
e.label('L_grpA')
e.S = S0
group_body('A')
assert nbar[0] == nb1
e.label('L_common')
e.S = Emit.merge_states(e.S, SB)
e.roles = ['A', 'B']
e(f'v_or_b32 v1, v{vE}, v{vE+1}')
e('v_cmp_eq_u32 vcc, 0, v1')
e('s_cbranch_vccnz L_epoch_spin')
e.label('L_epoch_ok')
P15 = vP + 8
seq = [mf_l(15, 0), mf_l(15, 1)]
for tt in range(4):
    for a in range(2):
        seq.append(f'{MF} {vr(vO+16*tt, 16)}, {ar(aVB(15) + (a*4+tt)*4, 4)}, {vr(P15+4*a, 4)}, {vr(vO+16*tt, 16)}')
def norm(tt):
    it = []
    for a in range(2):
        for p in range(4 * a, 4 * a + 4):
            r = vO + 16 * tt + 2 * p
            if opts['pk']: it.append(f'v_pk_mul_f32 {vr(r, 2)}, {vr(r, 2)}, {vr(vINV, 2)} op_sel_hi:[1,0]')
            else: it += [f'v_mul_f32 v{r}, v{vINV}, v{r}', f'v_mul_f32 v{r+1}, v{vINV}, v{r+1}']
        for p in range(4 * a, 4 * a + 4):
            r = vO + 16 * tt + 2 * p
            it.append(f'v_cvt_pk_bf16_f32 v{vQ+8*tt+p}, v{r}, v{r+1}')
        f = 2 * tt + a
        it.append(f'ds_write_b128 v{vXW}, {vr(vQ+4*f, 4)} offset:{f*1024}')
    return it
mo0 = mf_o(0); mo1 = mf_o(1)
own = sum(([mo0[f], mo1[f]] for f in range(8)), [])
e.weave(seq + own[:12], [([f'v_rcp_f32 v{vINV}, v{vL}'], 4, 5),
                         (norm(0), 5, 9), (norm(1), 9, 13), (norm(2), 13, 17), (norm(3), 17, 21)])
bar({'WO2'})
sU, sCNT, sTODO, sRDY, sI, sOFF, sUA, sLB, sOO, sOM, sMB = 20, 21, 22, 23, 24, 25, 26, 27, 28, 29, 32
vMV, vMR, vMO = 212, 213, 214
red_setup = [
    f's_lshl_b32 s{sU}, s{sW}, 4', f's_add_u32 s{sU}, s{sU}, s{sHKV}',
    f's_lshl_b32 s{sUA}, s{sU}, 10',
    f's_lshr_b32 s{sOO}, s{sU}, 3', f's_add_u32 s{sOO}, s{sOO}, s{sROT}',
    lambda: (e(f's_sub_u32 s{sI}, s{sOO}, 9'), e(f's_cselect_b32 s{sOO}, s{sOO}, s{sI}')),
    f's_lshl_b32 s{sOO}, s{sOO}, 7',
    f's_bfe_u32 s{sI}, s{sU}, 0x10001', f's_mul_i32 s{sI}, s{sI}, 36864', f's_add_u32 s{sOO}, s{sOO}, s{sI}',
    f's_bfe_u32 s{sI}, s{sU}, 0x10002', f's_lshl_b32 s{sI}, s{sI}, 6', f's_add_u32 s{sOO}, s{sOO}, s{sI}',
    f's_and_b32 s{sI}, s{sU}, 1', f's_lshl_b32 s{sI}, s{sI}, 4', f's_add_u32 s{sOO}, s{sOO}, s{sI}',
    lambda: (e(f's_sub_u32 s{sOM}, s{sROT}, 1'), e(f's_cselect_b32 s{sOM}, 8, s{sOM}')),
    f's_lshl_b32 s{sOM}, s{sOM}, 7',
    f's_and_b32 s{sI}, s{sW}, 1', f's_mul_i32 s{sI}, s{sI}, 36864', f's_add_u32 s{sOM}, s{sOM}, s{sI}',
    f's_and_b32 s{sI}, s{sHKV}, 3', f's_mul_i32 s{sI}, s{sI}, 9216', f's_add_u32 s{sOM}, s{sOM}, s{sI}',
    f's_lshr_b32 s{sI}, s{sW}, 1', f's_lshl_b32 s{sI}, s{sI}, 6', f's_add_u32 s{sOM}, s{sOM}, s{sI}',
    f's_bfe_u32 s{sI}, s{sHKV}, 0x10002', f's_lshl_b32 s{sI}, s{sI}, 5', f's_add_u32 s{sOM}, s{sOM}, s{sI}',
    f's_lshr_b32 s{sI}, s{sHKV}, 3', f's_lshl_b32 s{sI}, s{sI}, 4', f's_add_u32 s{sOM}, s{sOM}, s{sI}',
    f's_lshl_b32 s{sMB}, s{sU}, 7', f's_add_u32 s{sMB}, s{sMB}, 65536',
    f's_mov_b32 s{sTODO}, -1',
] + ([
    f's_bfe_u32 s{sI}, s{sU}, 0x20001', f's_lshl_b32 s{sI}, s{sI}, {opts["fls"]}',
] + ([lambda: (e(f's_cmp_lt_u32 s{sU}, {8*(opts["two"]+1)}'), e(f's_cselect_b32 s{sOFF}, s{sFL}, 0')), f's_add_u32 s{sI}, s{sI}, s{sOFF}'] if opts['two'] else []) + [
    f's_lshl_b32 s{sOFF}, s{sW}, {opts["fls"]}', f's_sub_u32 s{sOFF}, s{sOFF}, s{sI}',
    'v_and_b32 v1, 15, v0', f'v_lshlrev_b32 v1, {opts["fls"]+2}, v1', f'v_add_u32 v1, s{sI}, v1',
    'v_bfe_u32 v2, v0, 4, 1', f'v_mul_lo_u32 v2, s{sOFF}, v2', 'v_add_u32 v1, v1, v2',
] if opts['one_flag'] else [
    f's_lshr_b32 s{sI}, s{sU}, 1', f's_lshl_b32 s{sI}, s{sI}, 7',
    f's_lshl_b32 s{sOFF}, s{sW}, 7', f's_add_u32 s{sOFF}, s{sOFF}, 4096', f's_sub_u32 s{sOFF}, s{sOFF}, s{sI}',
    'v_and_b32 v1, 15, v0', 'v_lshlrev_b32 v1, 3, v1', f'v_add_u32 v1, s{sI}, v1',
    'v_bfe_u32 v2, v0, 4, 1', f'v_mul_u32_u24 v2, s{sOFF}, v2', 'v_add_u32 v1, v1, v2',
]) + [
    f's_mul_i32 s{sLB}, s{sW}, 18432', f's_add_u32 s{sLB}, s{sLB}, {RG*32768}',
    f'v_add_u32 v3, s{sLB}, v{vL16}',
    'v_and_b32 v2, 31, v0', 'v_lshlrev_b32 v7, 20, v2', 'v_mul_u32_u24 v2, 1152, v2', 'v_bfe_u32 v6, v0, 5, 1', 'v_lshl_add_u32 v2, v6, 5, v2',
    'v_mul_u32_u24 v8, 2304, v6', f'v_add_u32 v{vMO}, v7, v8',
    'v_bfe_u32 v7, v0, 3, 3', 'v_mul_u32_u24 v7, 73728, v7', 'v_and_b32 v8, 7, v0', f'v_lshl_add_u32 v{vMV}, v8, 4, v7',
    'v_lshlrev_b32 v7, 10, v6', 'v_bfe_u32 v8, v0, 2, 2', 'v_lshl_add_u32 v7, v8, 7, v7',
    'v_and_b32 v8, 1, v0', 'v_lshl_add_u32 v7, v8, 5, v7', 'v_bfe_u32 v8, v0, 4, 1', 'v_lshl_add_u32 v7, v8, 4, v7',
    'v_bfe_u32 v8, v0, 1, 1', 'v_lshl_add_u32 v7, v8, 3, v7', f'v_add_u32 v{vMR}, s{sLB}, v7',
    f's_mov_b32 s{sCNT}, {opts["spin"]}',
] + [f'v_mov_b32 v{vNM+i}, 0x3f803f80' for i in range(4)]
OPLAN = {2: [(6, 0), (6, 1)], 3: [(7, 0), (7, 1)], 4: [(8, 0), (8, 1)]}
LAG = opts['lag']
pub = 0
r2 = rd_wo(2)
e.weave(own[12:] + mo0[8:] + mo1[8:],
        [([f'ds_read_b128 {ar(aOO+4*f, 4)}, v{vXR} offset:{f*1024}' for f in range(8)], -1, 1),
         (wo_cb(5), 0, 12), (r2[:16], 4, 12), (r2[16:], 12, 18), (ep_o(0), 14, 20)])
mark()
bar({'WO3'})
nrs = (len(red_setup) + 2) // 3
for j in range(2, 9):
    streams = []
    if j in OPLAN: streams.append((sum((wo_half(*h) for h in OPLAN[j]), []), -1, 10))
    if j < 8: streams.append((rd_wo(j + 1), 0, 14))
    ep = ep_o(j - 1)
    if j - 1 - LAG >= 0: ep += publish(pub); pub += 1
    streams.append((ep, 8 if j in OPLAN else 3, 16 if j in OPLAN else 12))
    if j in (5, 6, 7): streams.append((red_setup[(j-5)*nrs:(j-4)*nrs], 0, 16))
    if j == 8 and opts['r0'] == 1: streams.append(([(f'buffer_load_dwordx2 v[4:5], v1, {sr(SFL)}, 0 offen sc1', 'POLL')], opts['pg'], opts['pg'] + 1))
    e.weave(mf_o(j), streams)
    if j < 7: bar({f'WO{j+2}'})
put(ep_o(8))
mark()
def masked_round():
    e(f's_mov_b32 s{sOFF}, s{sUA}')
    for h in range(16):
        if h % 4 == 0: e(f's_add_u32 m0, s{sLB}, {h*1024}')
        e(f's_bitcmp1_b32 s{sRDY}, {h}')
        e('s_cselect_b64 exec, -1, 0')
        off = f' offset:{(h%4)*1024}' if h % 4 else ''
        if opts['thr'] and h >= opts['thr']: e(f's_waitcnt vmcnt({opts["thr"]-1})')
        e(f'buffer_load_dwordx4 v{vL16}, {sr(SPR)}, s{sOFF} offen{off} {opts["ld"]} lds', 'RD')
        if h < 15: e(f's_add_u32 s{sOFF}, s{sOFF}, {73728 - 1024 if h % 4 != 3 else 73728 + 3072}')
    e('s_mov_b64 exec, -1')
if opts['wgf']:
    e(f's_lshl_b32 s{sTODO}, 1, s{sHKV}')
    e(f's_andn2_b32 s{sTODO}, 0xffff, s{sTODO}')
    e('v_and_b32 v1, 15, v0')
    e(f'v_lshlrev_b32 v1, {opts["fls"]+2}, v1')
    e(f's_cmp_lg_u32 s{sW}, 0')
    e('s_cbranch_scc1 L_w123')
    e(f'buffer_load_dwordx2 v[4:5], v1, {sr(SFL)}, 0 offen sc1')
    e('s_waitcnt vmcnt(0)')
    e('s_barrier')
    e(f'buffer_store_dwordx2 {vr(vE, 2)}, v{vFLV}, {sr(SFL)}, 0 offen sc1')
    mark()
    e('s_branch L_chk')
    e.label('L_poll')
    e.S = State()
    e(f'buffer_load_dwordx2 v[4:5], v1, {sr(SFL)}, 0 offen sc1')
    e(f's_sub_u32 s{sCNT}, s{sCNT}, 1')
    e('s_cbranch_scc1 L_rel')
    e('s_waitcnt vmcnt(0)')
    e.label('L_chk')
    e(f'v_cmp_ne_u64 vcc, v[4:5], {vr(vE, 2)}')
    e('s_nop 0')
    e(f's_and_b32 s{sRDY}, vcc_lo, s{sTODO}')
    e('s_cbranch_scc1 L_poll')
    e('s_branch L_rel')
    e.label('L_w123')
    e('s_waitcnt vmcnt(0)')
    e('s_barrier')
    nbar[0] -= 1; mark()
    e.label('L_rel')
    e('s_barrier')
    e(f's_add_u32 m0, s{sLB}, 16384')
    e(f's_add_u32 s{sOFF}, s{sMB}, {8*73728 - 1024}')
    e(f'buffer_load_dwordx4 v{vMV}, {sr(SPR)}, s{sMB} offen {opts["ld"]} lds')
    e(f'buffer_load_dwordx4 v{vMV}, {sr(SPR)}, s{sOFF} offen offset:1024 {opts["ld"]} lds')
    for h in range(16):
        if opts['wgf'] == 2:
            e(f'buffer_load_dwordx4 {ar(4*h, 4)}, v{vL16}, {sr(SPR)}, s{sUA} offen {opts["ld"]}')
            if h < 15: e(f's_add_u32 s{sUA}, s{sUA}, 73728')
            continue
        if h % 4 == 0: e(f's_add_u32 m0, s{sLB}, {h*1024}')
        off = f' offset:{(h%4)*1024}' if h % 4 else ''
        e(f'buffer_load_dwordx4 v{vL16}, {sr(SPR)}, s{sUA} offen{off} {opts["ld"]} lds')
        if h < 15: e(f's_add_u32 s{sUA}, s{sUA}, {73728 - 1024 if h % 4 != 3 else 73728 + 3072}')
else:
    if opts['r0'] == 2: e(f'buffer_load_dwordx2 v[4:5], v1, {sr(SFL)}, 0 offen sc1', 'POLL')
    if opts['r0'] == 1:
        e.wait_vm({'POLL'})
        e(f'v_cmp_eq_u64 vcc, v[4:5], {vr(vE, 2)}')
        e('s_nop 0')
        e(f's_and_b32 s{sRDY}, vcc_lo, 0xffff')
        e(f's_andn2_b32 s{sTODO}, s{sTODO}, s{sRDY}')
        masked_round()
    while pub < 9: put(publish(pub)); pub += 1
    mark()
    if opts['r0'] == 2:
        e.wait_vm({'POLL'})
        e('s_branch L_chk')
    e.label('L_poll')
    e.S = State()
    if opts['sleep']: e(f's_sleep {opts["sleep"]}')
    e(f'buffer_load_dwordx2 v[4:5], v1, {sr(SFL)}, 0 offen {opts["pp"]}')
    e(f's_sub_u32 s{sCNT}, s{sCNT}, 1')
    e('s_cbranch_scc1 L_go')
    e('s_waitcnt vmcnt(0)')
    e.label('L_chk')
    e(f'v_cmp_eq_u64 vcc, v[4:5], {vr(vE, 2)}')
    e('s_nop 0')
    if opts['rtrace']:
        e('s_memrealtime s[98:99]'); e('s_waitcnt lgkmcnt(0)')
        e(f's_sub_u32 s30, {opts["spin"]}, s{sCNT}')
        e('s_min_u32 s30, s30, 30')
        e(f's_and_b32 s31, vcc_lo, s{sTODO}')
        e('s_mov_b32 m0, s30')
        e(f'v_writelane_b32 v{vPA}, s98, m0')
        e('s_add_u32 m0, s30, 31')
        e(f'v_writelane_b32 v{vPA}, s31, m0')
    e(f's_and_b32 s{sRDY}, vcc_lo, s{sTODO}')
    if opts['allrdy'] == 1:
        e(f's_cmp_eq_u32 s{sRDY}, -1')
        e('s_cbranch_scc0 L_poll')
    if opts['allrdy'] == 2:
        e(f's_and_b32 s{sI}, s{sRDY}, 0xffff')
        e(f's_cmp_eq_u32 s{sI}, 0xffff')
        e(f's_cselect_b32 s{sI}, -1, 0xffff0000')
        e(f's_and_b32 s{sRDY}, s{sRDY}, s{sI}')
    e(f's_cmp_ge_u32 s{sRDY}, 0xffff0000')
    e('s_cbranch_scc0 L_nomini')
    e(f's_add_u32 m0, s{sLB}, 16384')
    e(f's_add_u32 s{sOFF}, s{sMB}, {8*73728 - 1024}')
    e(f'buffer_load_dwordx4 v{vMV}, {sr(SPR)}, s{sMB} offen {opts["ld"]} lds')
    e(f'buffer_load_dwordx4 v{vMV}, {sr(SPR)}, s{sOFF} offen offset:1024 {opts["ld"]} lds')
    e(f's_and_b32 s{sTODO}, s{sTODO}, 0xffff')
    e.label('L_nomini')
    e(f's_and_b32 s{sRDY}, s{sRDY}, 0xffff')
    e('s_cbranch_scc0 L_noround')
    e(f's_andn2_b32 s{sTODO}, s{sTODO}, s{sRDY}')
    masked_round()
    e.label('L_noround')
    e(f's_cmp_lg_u32 s{sTODO}, 0')
    e('s_cbranch_scc1 L_poll')
if opts['wgf'] == 2:
    mark()
    e('s_waitcnt vmcnt(16)')
    for m in range(2):
        for sec in range(2): e(f'ds_read_b64_tr_b16 {ar(64+4*m+2*sec, 2)}, v{vMR} offset:{16384 + m*64 + sec*512}')
    for m in range(2): e(f'{MF} {vr(vO+16*m, 16)}, {ar(64+4*m, 4)}, {vr(vNM, 4)}, 0')
    cv = []; stv = []
    for m in range(2):
        for c in range(2):
            d = vO + 32 + 8 * m + 4 * c
            cv += [f'v_cvt_pk_bf16_f32 v{d+p}, v{vO+16*m+8*c+2*p}, v{vO+16*m+8*c+2*p+1}' for p in range(4)]
            so = sOM if m == 0 else sI
            stv.append(f'buffer_store_dwordx4 {vr(d, 4)}, v{vMO}, {sr(SOUT)}, s{so} offen offset:{c*1152} {opts["out"]}')
    e(f's_add_u32 s{sI}, s{sOM}, 4608')
    for h in range(16):
        e(f's_waitcnt vmcnt({15-h})')
        e(f'{MF} {vr(vS, 16)}, {ar(aPERM, 4)}, {ar(4*h, 4)}, ' + ('0' if h == 0 else vr(vS, 16)))
        if 5 <= h < 13: put(cv[2*(h-5):2*(h-5)+2])
    mark()
    put(stv)
    for p in range(4): e(f'v_cvt_pk_bf16_f32 v{vP+p}, v{vS+2*p}, v{vS+2*p+1}')
    e(f'buffer_store_dwordx4 {vr(vP, 4)}, v2, {sr(SOUT)}, s{sOO} offen {opts["out"]}')
else:
    e.label('L_go')
    mark()
    e('s_waitcnt vmcnt(0)')
    mark()
    for m in range(2):
        for sec in range(2): e(f'ds_read_b64_tr_b16 {ar(64+4*m+2*sec, 2)}, v{vMR} offset:{16384 + m*64 + sec*512}')
    for h in range(16): e(f'ds_read_b128 {ar(4*h, 4)}, v3 offset:{h*1024}')
    for m in range(2): e(f'{MF} {vr(vO+16*m, 16)}, {ar(64+4*m, 4)}, {vr(vNM, 4)}, 0')
    mini = []
    for m in range(2):
        for c in range(2):
            d = vO + 32 + 8 * m + 4 * c
            mini += [f'v_cvt_pk_bf16_f32 v{d+p}, v{vO+16*m+8*c+2*p}, v{vO+16*m+8*c+2*p+1}' for p in range(4)]
            if m == 1 and c == 0: mini.append(f's_add_u32 s{sOM}, s{sOM}, 4608')
            mini.append(f'buffer_store_dwordx4 {vr(d, 4)}, v{vMO}, {sr(SOUT)}, s{sOM} offen offset:{c*1152} {opts["out"]}')
    e.weave([f'{MF} {vr(vS, 16)}, {ar(aPERM, 4)}, {ar(4*h, 4)}, ' + ('0' if h == 0 else vr(vS, 16)) for h in range(16)], [(mini, 4, 14)])
    for p in range(4): e(f'v_cvt_pk_bf16_f32 v{vP+p}, v{vS+2*p}, v{vS+2*p+1}')
    e(f'buffer_store_dwordx4 {vr(vP, 4)}, v2, {sr(SOUT)}, s{sOO} offen {opts["out"]}')
e.label('L_done')
if opts['spinx'] >= 0:
    e('s_waitcnt vmcnt(0)')
    mark()
    e('s_memrealtime s[96:97]')
    e('s_waitcnt lgkmcnt(0)')
    e('s_sub_u32 s98, s98, s100')
    e('s_lshl_b32 s98, s98, 2')
    e('s_add_u32 s98, s98, s96')
    e.label('L_spinx')
    e('s_memrealtime s[96:97]')
    e('s_waitcnt lgkmcnt(0)')
    e('s_sub_u32 s97, s96, s98')
    e('s_cmp_lt_i32 s97, 0')
    e('s_cbranch_scc1 L_spinx')
if PROF:
    mark()
    e('s_waitcnt vmcnt(0)')
    mark(); mark()
    e(f'v_writelane_b32 v{vPA}, s96, 63')
    mk_srd(SWS, 18, None, 0x10000000)
    e('s_lshl_b32 s62, s2, 11')
    e('s_add_u32 s62, s62, 0x9000000')
    e('v_and_b32 v2, 63, v0'); e('v_lshrrev_b32 v3, 6, v0'); e('v_lshlrev_b32 v2, 2, v2'); e('v_lshl_add_u32 v2, v3, 9, v2')
    e(f'buffer_store_dword v{vPA}, v2, {sr(SWS)}, s62 offen')
    e(f'buffer_store_dword v{vPB}, v2, {sr(SWS)}, s62 offen offset:256')
    print('bars', nbar[0], file=sys.stderr)
e.label('L_end')
e('s_endpgm')
e.label('L_epoch_spin')
e.S = State()
e(f's_mov_b32 s3, {opts["spin"]}')
e('v_mov_b32 v1, 0')
e.label('L_epoch_loop')
e(f'buffer_load_dwordx2 {vr(vE, 2)}, v1, {sr(SDBG)}, 0 offen sc1')
e('s_sub_u32 s3, s3, 1')
e('s_cbranch_scc1 L_epoch_ok')
e('s_waitcnt vmcnt(0)')
e(f'v_or_b32 v2, v{vE}, v{vE+1}')
e('v_cmp_eq_u32 vcc, 0, v2')
e('s_cbranch_vccnz L_epoch_loop')
e('s_branch L_epoch_ok')
for t in stubs:
    e.label(f'L_stub{t}')
    e.raw(f'    s_call_b64 s[{sRET}:{sRET+1}], L_rescale')
    e.raw(f'    s_branch L_back{t}')
e.label('L_rescale')
e.S = State()
e('s_nop 15'); e('s_nop 15')
e(f'v_mov_b32 v{vMX+1}, v{vMX}')
e(f'v_permlane32_swap_b32 v{vMX}, v{vMX+1}')
e(f'v_max3_f32 v{vMX}, v{vMX}, v{vMX+1}, 0')
e(f'v_ceil_f32 v{vMX}, v{vMX}')
e(f'v_exp_f32 v{vMX+1}, -v{vMX}')
for r in range(48): e(f'v_sub_f32 v{vS+r}, v{vS+r}, v{vMX}')
for r in range(68): e(f'v_mul_f32 v{vO+r}, v{vO+r}, v{vMX+1}')
for r in range(16):
    e(f'v_lshlrev_b32 v2, 16, v{vP+r}')
    e(f'v_and_b32 v3, 0xffff0000, v{vP+r}')
    e(f'v_mul_f32 v2, v2, v{vMX+1}')
    e(f'v_mul_f32 v3, v3, v{vMX+1}')
    e(f'v_cvt_pk_bf16_f32 v{vP+r}, v2, v3')
e('s_nop 3')
e(f's_setpc_b64 s[{sRET}:{sRET+1}]')
e.label('L_textend')

hdr = f"""; GQA block (Q-proj + cached attention + O-proj + cross-workgroup reduction) for gfx950
; @launch grid=(256,1,1) block=(256,1,1) lds=163840
.amdgcn_target "amdgcn-amd-amdhsa--gfx950"
.text
"""
kd = f""".section .rodata,"a"
.p2align 6
.amdhsa_kernel {K}
  .amdhsa_next_free_vgpr 512
  .amdhsa_next_free_sgpr 102
  .amdhsa_accum_offset 256
  .amdhsa_group_segment_fixed_size 0
  .amdhsa_kernarg_size 64
  .amdhsa_user_sgpr_count 2
  .amdhsa_user_sgpr_kernarg_segment_ptr 1
  .amdhsa_system_sgpr_workgroup_id_x 1
.end_amdhsa_kernel
"""
open(sys.argv[1], 'w').write(hdr + e.text() + kd)
print(e.count, 'nops', e.nops, file=sys.stderr)
```

```python
import sys, math, struct
from emit import Emit, State

NAME = "standalone__gqa_block_cached__near_ridge"
opts = dict(kv="nt", wq="", x="", wo="", st="sc1", ld="sc1", T=8.0, prof=0, cpf=1, lag=9,
            kvplan="a", spin=200000, spinx=-1, fsh=3, sleep=0, allrdy=0, gmask=1, b1=14, la=9, one=0, pm='', pk=0, nost=0, nowo=0, nopub=0, apl='0,1,1,1,1,2,2,2,2,2,2,2', bwo='1,3,5,7,12,12,13,13,15,15', awo='1,1,4,4,12,12,13,13,15,15', brd='7,10', ard='2,6', opl=1, pollpos=0, out='', krot=0, qrot=0, sent=0, w2=1, slack=0, x_=0, half=0, kv0=0, thr=0, nofast=0, roto=1, rtrace=0, r0=2, pg=13, one_flag=1, fls=7, two=0, pp='sc1', fp='sc1', full=0, tlb=-1, tsh=16, pp0=0, wqfirst=1, qrd=6, wgf=2, nreg=0, mp=0, wof=1, kearly=1)
for a in sys.argv[2:]:
    k, v = a.split('=')
    opts[k] = type(opts[k])(v) if not isinstance(opts[k], str) else v.replace('+', ' ')
PROF = opts['prof']
TM = 's_memrealtime' if PROF == 2 else 's_memtime'
PM = set(int(x) for x in opts['pm'].split(',')) if opts['pm'] else None
def f32(x): return '0x%08x' % struct.unpack('<I', struct.pack('<f', x))[0]

e = Emit(); e.roles = ['A', 'B']
SX, SK, SV, SWQ, SWO, SWS = 20, 24, 28, 32, 36, 40
SFL, SPR, SOUT, SDBG = 80, 84, 88, 92
sW, sHKV, sB, sROT = 44, 45, 46, 47
sT0, sT1, sT2 = 48, 49, 52
sRET = 50
sWQ, sWO, sST = 53, 54, 55
sM0W, sM0T = 56, 57
sSC = 58
sXO, sFL, sM0Q, sJOB = 60, 61, 62, 63
sTILE = 64
vKR = 16; vVR = 40
vKa, vKb, vVc = 52, 53, 54
vWOR = 55; vXW, vXR = 61, 62; vWOV = 63; vSTV = 67
vMX = 68; vINV = 70
vPA, vPB = 72, 73
vE = 74
vFLV = 76
vL16 = 77
vS = 80; vNM = 112; vP = 128; vO = 144; vL = 208; vQ = 224
vXRD = 80; vWQR = 88; vXa, vXb = 96, 97; vWQV = 100
aX = 0; aWQ = 144; aONE = 240; aPERM = 244
aK = 0; aV = 32; aWO = 64; aOO = 192
def aVB(t): return aV if t % 2 else aOO
FL_OFF = 256 * 73728
FSH = opts['fsh']; FG = 16 << FSH

def vr(b, n): return f'v[{b}:{b+n-1}]'
def ar(b, n): return f'a[{b}:{b+n-1}]'
def sr(b, n=4): return f's[{b}:{b+n-1}]'
MF = 'v_mfma_f32_32x32x16_bf16'
def win(off): return off >> 16, off & 0xffff

nbar = [0]
def mark():
    if not PROF or (PM is not None and nbar[0] not in PM):
        if nbar[0] == opts['spinx']: e('s_memrealtime s[98:99]')
        nbar[0] += 1
        return
    if PM is not None:
        i = nbar[0]; nbar[0] += 1
        e(f'{TM} s[98:99]'); e('s_waitcnt lgkmcnt(0)'); e(f'v_writelane_b32 v{vPB}, s98, {i}')
        return
    i = nbar[0]; nbar[0] += 1
    e(f'{TM} s[98:99]'); e('s_waitcnt lgkmcnt(0)')
    e(f'v_writelane_b32 v{vPA}, s98, {i}')
    if i > 0: e(f'v_writelane_b32 v{vPB}, s100, {i-1}')
    e(f'{TM} s[100:101]')
def bar(tags, lgkm0=True):
    if not PROF or PM is not None:
        e.wait_vm(tags, lgkm0=lgkm0); e('s_barrier')
        mark()
        return
    i = nbar[0]; nbar[0] += 1
    e(f'{TM} s[98:99]'); e('s_waitcnt lgkmcnt(0)')
    e(f'v_writelane_b32 v{vPA}, s98, {i}')
    if i > 0: e(f'v_writelane_b32 v{vPB}, s100, {i-1}')
    e.wait_vm(tags, lgkm0=lgkm0); e('s_barrier')
    e(f'{TM} s[100:101]')

def put(items):
    for it in items:
        if callable(it): it()
        elif isinstance(it, tuple): e(it[0], it[1])
        else: e(it)
def wrap_adv(r, step, lim, tmp):
    def f():
        e(f's_sub_u32 s{tmp}, s{r}, {lim}')
        e(f's_cselect_b32 s{r}, s{r}, s{tmp}')
    return [f's_add_u32 s{r}, s{r}, {step}', f]
def dma(v, srd, so, off, pol, tag):
    o = f' offset:{off}' if off else ''
    p = f' {pol}' if pol else ''
    return (f'buffer_load_dwordx4 v{v}, {sr(srd)}, {so} offen{o}{p} lds', tag)

KVORD = ['K0'] + sum(([f'K{t+1}', f'V{t}'] for t in range(15)), []) + ['V15']
KVSLOT = {}
def set_group(g):
    for n, nm in enumerate(KVORD):
        KVSLOT[nm] = n if (g == 'A' and n in (12, 13)) else (n + 4) % 12
XSLOT = [9, 10, 11, 0, 1, 2, 3, 12, 13]
def kv(n):
    nm = KVORD[n]; t = int(nm[1:]); isk = nm[0] == 'K'
    srd = SK if isk else SV
    return [f's_add_u32 m0, s{sM0W}, {KVSLOT[nm]*8192}',
            dma(vKa if isk else vVc, srd, f's{sTILE+t}', 0, opts['kv'], nm),
            dma(vKb if isk else vVc, srd, f's{sTILE+t}', 1024, opts['kv'], nm)]
STG = ['a[224:227]', 'a[228:231]', 'a[232:235]', 'a[236:239]', 'a[248:251]', 'a[252:255]', 'v[216:219]', 'v[220:223]']
def kv_reg(n):
    nm = KVORD[n]; t = int(nm[1:]); isk = nm[0] == 'K'
    srd = SK if isk else SV; i = 2 * (n - 14); p = f' {opts["kv"]}' if opts['kv'] else ''
    return [(f'buffer_load_dwordx4 {STG[i]}, v{vKa if isk else vVc}, {sr(srd)}, s{sTILE+t} offen{p}', 'STG'),
            (f'buffer_load_dwordx4 {STG[i+1]}, v{vKb if isk else vVc}, {sr(srd)}, s{sTILE+t} offen offset:1024{p}', 'STG')]
def kv_wr(n):
    i = 2 * (n - 14); o = KVSLOT[KVORD[n]] * 8192
    a = vSTV if o < 65536 else 215
    return [f'ds_write_b128 v{a}, {STG[i]} offset:{o & 0xffff}', f'ds_write_b128 v{a}, {STG[i+1]} offset:{(o & 0xffff) + 1024}']
def xt(j):
    return [f's_add_u32 m0, s{sM0W}, {XSLOT[j]*8192}',
            dma(vXa, SX, f's{sXO}', 0, opts['x'], f'X{j}'),
            dma(vXb, SX, f's{sXO}', 1024, opts['x'], f'X{j}')] + wrap_adv(sXO, 128, 1152, sT1)
def wq_stage(s):
    it = [f's_add_u32 m0, s{sM0Q}, {(14 + 2*(s%3))*8192}']
    it += [dma(vWQV + p, SWQ, f's{sWQ}', p * 1024, opts['wq'], f'WQ{s}') for p in range(4)]
    return it + wrap_adv(sWQ, 2 * 131072, 36 * 131072, sT1)
WOG = [4, 4, 3, 4, 0, 1, 2, 3, 4]
XG = 2
RG = 1
def wo_half(j, half):
    it = [f's_add_u32 m0, s{sM0T}, {4*WOG[j]*8192 + half*4096}']
    if half: it.append(f's_add_u32 s{sT0}, s{sWO}, 36864')
    it += [dma(vWOV + p, SWO, f's{sT0 if half else sWO}', p * 1024, opts['wo'], f'WO{j}') for p in range(4)]
    return it + (wrap_adv(sWO, 128, 1152, sT1) if half else [])
def wo_cb(j): return wo_half(j, 0) + wo_half(j, 1)

def mk_srd(d, ptr, addlo, nbytes):
    if addlo is None:
        e(f's_mov_b32 s{d}, s{ptr}'); e(f's_and_b32 s{d+1}, s{ptr+1}, 0xffff')
    else:
        e(f's_add_u32 s{d}, s{ptr}, {addlo}')
        e(f's_addc_u32 s{d+1}, s{ptr+1}, 0')
        e(f's_and_b32 s{d+1}, s{d+1}, 0xffff')
    e(f's_mov_b32 s{d+2}, {nbytes}')
    e(f's_mov_b32 s{d+3}, 0x00020000')

def rd_x(j):
    w_, o = win(XSLOT[j] * 8192)
    return [f'ds_read_b128 {ar(aX+4*(4*j+ks), 4)}, v{vXRD + 4*w_ + ks} offset:{o}' for ks in range(4)]
def rd_wq(stage):
    it = []
    for ks in range(2):
        w_, o = win((14 + 2 * (stage % 3) + ks) * 8192)
        for u in range(4):
            d = aWQ + 32 * (stage % 2) + (ks * 4 + u) * 4
            for sec in range(2):
                it.append(f'ds_read_b64_tr_b16 {ar(d+2*sec, 2)}, v{vWQR + 4*(w_-1) + u} offset:{o + sec*1024}')
    return it
def mf_q(stage, order=None):
    it = []
    idx = [(ks, u) for ks in range(2) for u in range(4)] if order is None else order
    for ks, u in idx:
        d = aWQ + 32 * (stage % 2) + (ks * 4 + u) * 4
        c = '0' if (stage == 0 and ks == 0) else vr(vO + 16 * u, 16)
        it.append(f'{MF} {vr(vO+16*u, 16)}, {ar(d, 4)}, {ar(aX + 4*(2*stage+ks), 4)}, {c}')
    return it
def aKB(t): return aV if t == 1 else aK
def rd_k(t):
    w_, o = win(KVSLOT[f'K{t}'] * 8192)
    return [f'ds_read_b128 {ar(aKB(t)+4*s, 4)}, v{vKR + 8*w_ + s} offset:{o}' for s in range(8)]
def rd_v(t):
    w_, o = win(KVSLOT[f'V{t}'] * 8192)
    it = []
    for a in range(2):
        for tt in range(4):
            d = aVB(t) + (a * 4 + tt) * 4
            for sec in range(2):
                it.append(f'ds_read_b64_tr_b16 {ar(d+2*sec, 2)}, v{vVR + 4*w_ + tt} offset:{o + a*4096 + sec*2048}')
    return it
def mf_qk(t):
    S = vS + 16 * (t % 2)
    return [f'{MF} {vr(S, 16)}, {ar(aKB(t)+4*s, 4)}, {vr(vQ+4*s, 4)}, ' + (vr(S, 16) if s else ('0' if t <= 1 else vr(vNM, 16))) for s in range(8)]
def mf_pv(t):
    P = vP + 8 * (t % 2)
    it = []
    for a in range(2):
        for tt in range(4):
            c = '0' if (t == 0 and a == 0) else vr(vO + 16 * tt, 16)
            it.append(f'{MF} {vr(vO+16*tt, 16)}, {ar(aVB(t) + (a*4+tt)*4, 4)}, {vr(P+4*a, 4)}, {c}')
        it.append(mf_l(t, a))
    return it
def mf_l(t, a):
    P = vP + 8 * (t % 2)
    c = '0' if (t == 0 and a == 0) else vr(vL, 4)
    return f'v_mfma_f32_16x16x32_bf16 {vr(vL, 4)}, {ar(aONE, 4)}, {vr(P+4*a, 4)}, {c}'
def sm_max(t):
    S = vS + 16 * (t % 2)
    it = [f'v_max3_f32 v{vMX}, v{S}, v{S+1}, v{S+2}', f'v_max3_f32 v{vMX+1}, v{S+3}, v{S+4}, v{S+5}']
    k = 6; d = 0
    while k < 16:
        it.append(f'v_max3_f32 v{vMX+d}, v{vMX+d}, v{S+k}, v{S+k+1}'); k += 2; d ^= 1
    it.append(f'v_max_f32 v{vMX}, v{vMX}, v{vMX+1}')
    return it
stubs = []
def sm_check(t0):
    t = f'{e.roles[0]}{t0}'
    def f():
        e(f'v_cmp_lt_f32 vcc, {f32(opts["T"])}, v{vMX}')
        e(f's_cbranch_vccnz L_stub{t}')
        e.label(f'L_back{t}')
        stubs.append(t)
    return [f]
def sm_exp(t):
    S = vS + 16 * (t % 2); P = vP + 8 * (t % 2)
    it = [f'v_exp_f32 v{S}, v{S}', f'v_exp_f32 v{S+1}, v{S+1}']
    for p in range(8):
        if p < 7: it += [f'v_exp_f32 v{S+2*p+2}, v{S+2*p+2}', f'v_exp_f32 v{S+2*p+3}, v{S+2*p+3}']
        it.append(f'v_cvt_pk_bf16_f32 v{P+p}, v{S+2*p}, v{S+2*p+1}')
    return it
def rd_wo(j):
    w_, o = win(WOG[j] * 32768)
    it = []
    for oth in range(2):
        for f in range(8):
            d = aWO + 64 * (j % 2) + (oth * 8 + f) * 4
            for sec in range(2):
                it.append(f'ds_read_b64_tr_b16 {ar(d+2*sec, 2)}, v{vWOR + 2*w_ + oth} offset:{o + f*2048 + sec*1024}')
    return it
def mf_o(j):
    acc = vS + 16 * (j % 2)
    it = []
    for oth in range(2):
        for f in range(8):
            d = aWO + 64 * (j % 2) + (oth * 8 + f) * 4
            b = vr(vQ + 4 * f, 4) if oth == 0 else ar(aOO + 4 * f, 4)
            c = '0' if (oth == 0 and f == 0) else vr(acc, 16)
            it.append(f'{MF} {vr(acc, 16)}, {ar(d, 4)}, {b}, {c}')
    return it
def ep_o(j):
    acc = vS + 16 * (j % 2); P = vP + 8 * (j % 2)
    it = []
    for h in range(2):
        for p in range(4):
            it.append(f'v_cvt_pk_bf16_f32 v{P+4*h+p}, v{acc+8*h+2*p}, v{acc+8*h+2*p+1}')
        off = ' offset:1024' if h else ''
        if not opts['nost'] and not (opts['half'] and j in (1, 2, 3, 4)): it.append((f'buffer_store_dwordx4 {vr(P+4*h, 4)}, v{vSTV}, {sr(SWS)}, s{sTILE+j} offen{off} {opts["st"]}', f'ST{j}'))
    return it
def publish(j):
    def f():
        if opts['one_flag']:
            FLS = opts['fls']
            if j == 8 or (opts['two'] and j == opts['two']):
                if j == 8: e('s_waitcnt vmcnt(0)')
                else: e.wait_vm({f'ST{j}'})
                so = '0' if j == 8 else f's{sFL}'
                e(f'buffer_store_dwordx2 {vr(vE, 2)}, v{vFLV}, {sr(SFL)}, {so} offen {opts["fp"]}', 'FL')
            return
        e.wait_vm({f'ST{j}'})
        so, off = ('0', j * 512) if j < 8 else (f's{sFL}', 0)
        e(f'buffer_store_dwordx2 {vr(vE, 2)}, v{vFLV}, {sr(SFL)}, {so} offen offset:{off} sc1', 'FL')
    return [f]

K = NAME + '_kernel'
e.raw(f'.globl {K}\n.p2align 8\n.type {K},@function\n{K}:')
e('s_cmp_ge_u32 s2, 256')
e('s_cbranch_scc1 L_end')
e('s_load_dwordx8 s[4:11], s[0:1], 0')
e('s_load_dwordx8 s[12:19], s[0:1], 32')
e('s_memrealtime s[100:101]')
if PROF: e(f'{TM} s[96:97]')
if opts['cpf']:
    e('s_getpc_b64 s[98:99]')
    e.label('L_pc')
    e('s_lshr_b32 s3, s2, 3')
    e('v_lshl_add_u32 v9, s3, 4, v0')
    e('v_lshlrev_b32 v9, 7, v9')
    e(f'v_min_u32 v9, L_textend-L_pc-4, v9')
    e('v_cmp_gt_u32 vcc, 16, v0')
    e('s_and_saveexec_b64 s[20:21], vcc')
    e('s_cbranch_execz L_nocpf')
    e.raw('    global_load_dword v12, v9, s[98:99]')
    e.label('L_nocpf')
    e('s_mov_b64 exec, -1')
e('v_lshrrev_b32 v1, 6, v0')
e(f's_lshr_b32 s{sB}, s2, 4')
e(f'v_readfirstlane_b32 s{sW}, v1')
e(f's_sub_u32 s{sT0}, s{sB}, 9')
e(f's_cselect_b32 s3, s{sB}, s{sT0}')
e(f's_lshl_b32 s{sWQ}, s3, 19')
e(f's_lshl_b32 s{sXO}, s3, 7')
e(f's_mul_i32 s{sT0}, s{sB}, 73728')
e(f's_lshl_b32 s{sM0W}, s{sW}, 11')
e('v_bfe_u32 v2, v0, 3, 3')
e('v_and_b32 v3, 7, v0')
e('v_lshrrev_b32 v6, 1, v2')
e('v_xor_b32 v7, v3, v6')
e('v_lshlrev_b32 v7, 4, v7')
e('v_mul_u32_u24 v8, 1152, v2')
e('v_mul_u32_u24 v9, 18432, v1')
e('v_add_u32 v9, v9, v8')
e(f'v_add_u32 v{vXa}, v9, v7')
e('v_xor_b32 v7, 64, v7')
e(f'v_add_u32 v{vXb}, v9, v7')
e(f'v_add_u32 v{vXb}, 8192, v{vXb}')
e(f's_and_b32 s{sHKV}, s2, 7')
e(f's_lshl_b32 s{sHKV}, s{sHKV}, 1')
e(f's_bfe_u32 s{sT2}, s2, 0x10003')
e(f's_add_u32 s{sHKV}, s{sHKV}, s{sT2}')
e(f's_lshl_b32 s{sM0Q}, s{sW}, 12')
e(f's_lshl_b32 s{sT2}, s{sHKV}, 9')
e('v_bfe_u32 v4, v0, 4, 2')
e('v_and_b32 v5, 15, v0')
e('v_lshlrev_b32 v7, 2, v4')
e('v_xor_b32 v7, v5, v7')
e('v_lshlrev_b32 v7, 4, v7')
e('v_lshl_add_u32 v9, v4, 13, v7')
e('v_lshrrev_b32 v10, 1, v1')
e('v_lshl_add_u32 v9, v10, 17, v9')
e('v_and_b32 v10, 1, v1')
e(f'v_lshl_add_u32 v{vWQV}, v10, 8, v9')
for p in range(1, 4): e(f'v_add_u32 v{vWQV+p}, {p*31744}, v{vWQV}')
def pmark(i):
    if opts['pp0']:
        e(f'{TM} s[98:99]'); e('s_waitcnt lgkmcnt(0)'); e(f'v_writelane_b32 v{vPB}, s98, {i}')
e('s_waitcnt lgkmcnt(0)')
pmark(54)
if opts['wqfirst']:
    mk_srd(SWQ, 10, f's{sT2}', 4718592 - 15 * 512)
    put(wq_stage(0)); put(wq_stage(1))
    mk_srd(SX, 4, f's{sT0}', 73728)
    put(xt(0)); put(xt(1))
else:
    mk_srd(SX, 4, f's{sT0}', 73728)
    put(xt(0))
    mk_srd(SWQ, 10, f's{sT2}', 4718592 - 15 * 512)
    put(wq_stage(0))
    put(xt(1)); put(wq_stage(1))
pmark(55)
e('v_lshl_add_u32 v9, v4, 8, v7')
e(f'v_lshl_add_u32 v{vVc}, v1, 11, v9')
e('v_xor_b32 v7, v5, v4')
e('v_lshlrev_b32 v7, 4, v7')
e('v_lshl_add_u32 v9, v4, 8, v7')
e('v_lshlrev_b32 v10, 7, v10')
e('v_xor_b32 v9, v9, v10')
e(f'v_lshl_add_u32 v{vKa}, v1, 11, v9')
e(f'v_xor_b32 v{vKb}, 64, v{vKa}')
for t in range(16): e(f's_mov_b32 s{sTILE+t}, {t*8192}')
e(f's_lshl_b32 s{sM0T}, s{sW}, 13')
e(f's_lshr_b32 s{sROT}, s{sB}, 1')
e(f's_lshl_b32 s{sWO}, s{sROT}, 7')
e(f's_lshl_b32 s{sJOB}, s{sB}, 4')
e(f's_add_u32 s{sJOB}, s{sJOB}, s{sHKV}')
e(f's_lshl_b32 s3, s{sJOB}, 17')
mk_srd(SK, 6, 's3', 131072)
mk_srd(SV, 8, 's3', 131072)
mk_srd(SDBG, 16, None, 256)
e('s_cmp_lg_u32 s2, 0')
e('s_cbranch_scc1 L_noepoch')
e('v_lshlrev_b32 v9, 8, v0')
e('v_mov_b32 v10, s100'); e('v_mov_b32 v11, s101')
e(f'buffer_store_dwordx2 v[10:11], v9, {sr(SDBG)}, 0 offen sc1')
e.vm['A'].pop(); e.vm['B'].pop()
e.label('L_noepoch')

if opts['krot']:
    e(f's_mul_i32 s3, s{sJOB}, {opts["krot"]}')
    e(f's_lshr_b32 s{sT0}, s{sJOB}, 4')
    e(f's_add_u32 s3, s3, s{sT0}')
    e('s_lshl_b32 s3, s3, 13')
    for t in range(16):
        e(f's_add_u32 s{sTILE+t}, s3, {t*8192}')
        e(f's_and_b32 s{sTILE+t}, s{sTILE+t}, 0x1e000')
e(f's_mul_i32 s3, s{sHKV}, 294912')
mk_srd(SWO, 12, 's3', 294912)
e(f's_mul_i32 s3, s{sJOB}, 73728')
mk_srd(SWS, 18, 's3', 73728)
FB = (128 << opts['fls']) if opts['one_flag'] else 36 * FG
e(f's_mul_i32 s3, s{sB}, {FB}')
e(f's_add_u32 s3, s3, {FL_OFF}')
mk_srd(SFL, 18, 's3', FB)
e(f's_mul_i32 s3, s{sB}, {16*73728}')
mk_srd(SPR, 18, 's3', 16 * 73728)
e(f's_mul_i32 s3, s{sB}, 73728')
mk_srd(SOUT, 14, 's3', 73728)
sc = math.log2(math.e) / math.sqrt(128.0)
e(f's_mov_b32 s{sSC}, {f32(sc)}'); e(f's_mov_b32 s{sSC+1}, {f32(sc)}')
e('v_bfe_u32 v9, v0, 5, 1')
e('v_and_b32 v10, 31, v0')
e('v_bfe_u32 v11, v0, 2, 2')
e('v_and_b32 v7, 3, v0')
e('v_bfe_u32 v13, v0, 4, 1')
e('v_and_b32 v14, 1, v1')
e('v_lshl_add_u32 v14, v14, 5, v10')
e('v_bfe_u32 v15, v14, 1, 3')
e('v_xor_b32 v15, v15, v9')
e('v_lshlrev_b32 v15, 4, v15')
e(f'v_lshl_add_u32 v{vXRD}, v14, 7, v15')
for ks in range(1, 4): e(f'v_xor_b32 v{vXRD+ks}, {ks*32}, v{vXRD}')
for ks in range(4): e(f'v_add_u32 v{vXRD+4+ks}, 0x10000, v{vXRD+ks}')
e('v_lshrrev_b32 v14, 1, v1')
e('v_lshlrev_b32 v14, 12, v14')
e('v_lshl_add_u32 v14, v9, 11, v14')
e('v_lshl_add_u32 v14, v11, 8, v14')
e('v_lshl_add_u32 v14, v11, 6, v14')
e('v_lshl_add_u32 v14, v13, 5, v14')
e('v_and_b32 v15, 1, v7')
e('v_lshl_add_u32 v14, v15, 4, v14')
e('v_lshrrev_b32 v15, 1, v7')
e('v_lshl_add_u32 v14, v15, 3, v14')
e(f'v_add_u32 v{vWQR}, 0x10000, v14')
for u in range(1, 4): e(f'v_xor_b32 v{vWQR+u}, {u*64}, v{vWQR}')
for u in range(4): e(f'v_add_u32 v{vWQR+4+u}, 0x10000, v{vWQR+u}')
e('v_xor_b32 v14, v9, v5')
e('v_lshlrev_b32 v14, 4, v14')
e(f'v_lshl_add_u32 v{vKR}, v10, 8, v14')
for s in range(1, 8): e(f'v_xor_b32 v{vKR+s}, {s*32}, v{vKR}')
for w_ in (1, 2):
    for s in range(8): e(f'v_add_u32 v{vKR+8*w_+s}, {w_*0x10000}, v{vKR+s}')
e('v_lshlrev_b32 v14, 10, v9')
e('v_lshl_add_u32 v14, v11, 8, v14')
e('v_lshl_add_u32 v14, v11, 6, v14')
e('v_lshl_add_u32 v14, v13, 5, v14')
e(f'v_lshl_add_u32 v{vVR}, v7, 3, v14')
for t in range(1, 4): e(f'v_xor_b32 v{vVR+t}, {t*64}, v{vVR}')
for w_ in (1, 2):
    for t in range(4): e(f'v_add_u32 v{vVR+4*w_+t}, {w_*0x10000}, v{vVR+t}')
e('v_lshrrev_b32 v4, 1, v1')
e('v_lshlrev_b32 v14, 9, v9')
e('v_lshl_add_u32 v14, v11, 7, v14')
e('v_lshrrev_b32 v15, 1, v11')
e('v_xor_b32 v15, v15, v4')
e('v_lshl_add_u32 v14, v15, 6, v14')
e('v_and_b32 v15, 1, v7')
e('v_lshl_add_u32 v14, v15, 5, v14')
e('v_lshl_add_u32 v14, v13, 4, v14')
e('v_lshrrev_b32 v15, 1, v7')
e('v_lshl_add_u32 v14, v15, 3, v14')
e(f'v_lshl_add_u32 v{vWOR}, v4, 14, v14')
e(f'v_xor_b32 v{vWOR+1}, 0x4000, v{vWOR}')
for w_ in (1, 2):
    for o in range(2): e(f'v_add_u32 v{vWOR+2*w_+o}, {w_*0x10000}, v{vWOR+o}')
e('v_and_b32 v14, 63, v0')
e(f'v_lshlrev_b32 v{vL16}, 4, v14')
e(f'v_lshl_add_u32 v{vXW}, v1, 13, v{vL16}')
e(f'v_add_u32 v{vXW}, {XG*32768}, v{vXW}')
e(f'v_xor_b32 v{vXR}, 0x4000, v{vXW}')
e(f'v_lshl_add_u32 v{vSTV}, v1, 11, v{vL16}')
if opts['full']:
    e('v_lshrrev_b32 v14, 4, v14')
    e('v_lshlrev_b32 v14, 20, v14')
    e('v_lshl_add_u32 v14, v5, 3, v14')
else: e(f'v_lshlrev_b32 v14, 20, v14')
e(f'v_lshl_add_u32 v14, v1, {opts["fls"] if opts["one_flag"] else FSH+4}, v14')
e(f's_lshl_b32 s3, s{sHKV}, {opts["fls"]+2 if opts["one_flag"] else FSH}')
e(f'v_add_u32 v{vFLV}, s3, v14')
e('v_and_b32 v14, 1, v6')
e('v_lshlrev_b32 v14, 2, v14')
e('v_xor_b32 v14, v14, v3')
e('v_lshl_add_u32 v14, v14, 4, v8')
e('v_mul_u32_u24 v15, 73728, v1')
e(f'v_add_u32 v{vWOV}, v14, v15')
for p in range(1, 4): e(f'v_add_u32 v{vWOV+p}, {p*8192}, v{vWOV}')
e('v_bfe_u32 v14, v0, 2, 1')
e('v_cmp_eq_u32 vcc, v14, v13')
e('v_mov_b32 v14, 0x3f803f80')
e('v_cndmask_b32 v14, 0, v14, vcc')
for i in range(4): e(f'v_accvgpr_write_b32 a{aONE+i}, v14')
e('v_and_b32 v14, 1, v0')
e('v_lshlrev_b32 v14, 4, v14')
e('v_lshlrev_b32 v14, v14, 0x3f80'.replace('v14, 0x3f80', 'v14, v15') if False else 'v_mov_b32 v15, 0x3f80')
e('v_lshlrev_b32 v14, v14, v15')
e('v_bfe_u32 v15, v0, 2, 1')
e('v_xor_b32 v15, v15, v9')
e('v_or_b32 v15, v15, v13')
e('v_lshlrev_b32 v15, 3, v15')
e('v_bfe_u32 v2, v0, 3, 1')
e('v_bfe_u32 v3, v0, 1, 1')
e('v_lshl_add_u32 v2, v2, 1, v3')
e('v_add_u32 v2, v2, v15')
for d in range(4):
    e(f'v_cmp_eq_u32 vcc, {d}, v2')
    e(f'v_cndmask_b32 v3, 0, v14, vcc')
    e(f'v_accvgpr_write_b32 a{aPERM+d}, v3')

def qcvt(u):
    it = []
    for p in range(8):
        r = vO + 16 * u + 2 * p
        if opts['pk']: it.append(f'v_pk_mul_f32 {vr(r, 2)}, {vr(r, 2)}, s[{sSC}:{sSC+1}]')
        else: it += [f'v_mul_f32 v{r}, s{sSC}, v{r}', f'v_mul_f32 v{r+1}, s{sSC}, v{r+1}']
    for p in range(8):
        r = vO + 16 * u + 2 * p
        it.append(f'v_cvt_pk_bf16_f32 v{vQ+8*u+p}, v{r}, v{r+1}')
    return it
def X(*js): return sum((xt(j) for j in js), [])
def KVs(*ns): return sum((kv(n) for n in ns), [])
def RX(*js): return sum((rd_x(j) for j in js), [])
if opts['rtrace']: e(f'v_mov_b32 v{vPA}, 0')
pmark(59)
put(X(2, 3, 4)); bar({'X0', 'X1', 'WQ0'}, False)
put(RX(0, 1) + rd_wq(0))
put(X(5, 6, 7)); bar({'WQ1', 'X2'})
e.weave(mf_q(0), [(rd_wq(1) + RX(2), -1, 6)])

def group_body(g):
    e.roles = [g]; set_group(g)
    WOG[0] = 4 if g == 'A' else 3
    B1 = opts['b1']
    if g == 'A':
        put(X(8) + KVs(0, 1)); bar({'X3', 'X4', 'X5'})
        e.weave(mf_q(1), [(RX(3, 4, 5), -1, 4)])
        put(KVs(2, 3, 4)); bar({'X6', 'X7', 'X8'})
        put(RX(6, 7, 8))
        put(KVs(*range(5, min(B1, 11)))); bar(set())
        put(KVs(*range(11, B1)))
        for n in range(14, 14 + opts['nreg']): put(kv_reg(n))
        if opts['nreg']: e(f'v_add_u32 v215, 0x10000, v{vSTV}')
        put(wq_stage(2) + wq_stage(3) + wq_stage(4))
        qplan = {}
        nxt = B1
        cnt = [int(x) for x in opts['apl'].split(',')]
        wot = [int(x) for x in opts['awo'].split(',')]
        rdt = tuple(int(x) for x in opts['ard'].split(','))
    else:
        put(X(8) + wq_stage(2)); bar({'X3', 'X4', 'X5'})
        e.weave(mf_q(1), [(RX(3, 4, 5), -1, 4)])
        put(wq_stage(3) + wq_stage(4)); bar({'X6', 'X7', 'X8'})
        put(RX(6, 7, 8))
        bar(set())
        LA = opts['la']
        qplan = {14: [0, 1], 15: [2, 3], 16: [4, 5], 17: list(range(6, LA - 1))}
        nxt = LA - 1
        cnt = [1] + [2] * 15
        wot = [int(x) for x in opts['bwo'].split(',')]
        rdt = tuple(int(x) for x in opts['brd'].split(','))
    bar({'WQ2'})
    put(rd_wq(2))
    bar({'WQ3'})
    for s in range(2, 16):
        d = []
        if s + 3 < 18: d += wq_stage(s + 3)
        d += KVs(*qplan.get(s, []))
        ek = rd_k(s - 14) if (opts['kearly'] and g == 'A' and s >= 14) else []
        e.weave(mf_q(s), [(rd_wq(s + 1) + ek, -1, opts['qrd'])] + ([(d, 0, 8)] if d else []))
        tags = {f'WQ{s+2}'}
        if s == 13 and g == 'A': tags |= {'K0', 'K1', 'V0'}
        bar(tags)
    r17 = rd_wq(17)
    r17 = sum((r17[2*u:2*u+2] + r17[8+2*u:8+2*u+2] for u in range(4)), [])
    mq = []
    for st, u in ((16, 0), (16, 1), (17, 0), (17, 1), (16, 2), (17, 2), (16, 3), (17, 3)):
        mq += mf_q(st, [(0, u), (1, u)])
    d = KVs(*(qplan.get(16, []) + qplan.get(17, [])))
    init0 = sm_max(0) + [f'v_mov_b32 v{vMX+1}, v{vMX}', f'v_permlane32_swap_b32 v{vMX}, v{vMX+1}', f'v_max_f32 v{vMX}, v{vMX}, v{vMX+1}'] + \
            [f'v_sub_f32 v{vS+r}, v{vS+r}, v{vMX}' for r in range(16)] + sm_exp(0) + [f'v_sub_f32 v{vNM+r}, 0, v{vMX}' for r in range(16)]
    d0 = []
    for _ in range(cnt[0]): d0 += kv(nxt); nxt += 1
    if g == 'A':
        if opts['kearly']:
            e.weave(mq + mf_qk(0), [(r17, -1, 6), (qcvt(0), 6, 10), (qcvt(1), 10, 14), (qcvt(2), 14, 18), (qcvt(3), 18, 22), (rd_v(0), 21, 24)])
        else:
            e.weave(mq + mf_qk(0), [(r17, -1, 4), (rd_k(0) + rd_k(1), 4, 8), (qcvt(0), 7, 11), (qcvt(1), 11, 14), (qcvt(2), 14, 18), (qcvt(3), 18, 22),
                                    (rd_v(0), 20, 24)])
        mark(); mark(); mark()
        e.weave(mf_qk(1), [(init0, 1, 8)] + ([(d0, -1, 2)] if d0 else []))
    else:
        e.weave(mq, [(r17, -1, 4), (d, 2, 8), (qcvt(0), 7, 11), (qcvt(1), 11, 14), (qcvt(2), 14, 16)])
        put(qcvt(3))
        mark()
        bar({'K0', 'K1', 'V0'})
        put(rd_k(0))
        e.weave(mf_qk(0), [(rd_k(1), 0, 3), (rd_v(0), 3, 8), (d0, 0, 4)])
        mark()
        e.weave(mf_qk(1), [(init0, 1, 8)])
    bar({'K2', 'V1'})
    WORD = {rdt[0]: rd_wo(0)[:16], rdt[0]+1: rd_wo(0)[16:], rdt[1]: rd_wo(1)[:16], rdt[1]+1: rd_wo(1)[16:]}
    assert wot[1] < rdt[0] and wot[3] < rdt[1] and wot[4] >= rdt[0] + 2 and wot[6] >= rdt[1] + 2 and wot[8] >= 12 and wot[0] >= 1
    if g == 'A': assert wot[2] >= rdt[0] + 2 and wot[4] >= 7
    cnt += [2] * 16
    for t in range(1, 16):
        d = []
        for _ in range(cnt[t]):
            if nxt < 32:
                assert nxt < 12 or (nxt - 12 + 1) // 2 <= t, (g, nxt, t)
                assert min((nxt - 2 + 1) // 2, 14) > t, (g, nxt, t)
                d += kv_wr(nxt) if (g == 'A' and 14 <= nxt < 14 + opts['nreg']) else kv(nxt)
                nxt += 1
        dw = []
        for hi, tt_ in enumerate(wot):
            if tt_ == t: dw += wo_half(hi // 2, hi % 2)
        d = dw + d if (opts['wof'] and g == 'A' and t < 8) else d + dw
        if t == opts['tlb']:
            d += [f'v_lshlrev_b32 v1, {opts["tsh"]}, v0',
                  (f'buffer_load_dword v218, v1, {sr(SFL)}, 0 offen', 'TL'),
                  (f'buffer_load_dword v219, v1, {sr(SPR)}, 0 offen', 'TL'),
                  (f'buffer_load_dword v220, v1, {sr(SOUT)}, 0 offen', 'TL')]
        if t == 7:
            d += ['v_mov_b32 v1, 0', (f'buffer_load_dwordx2 {vr(vE, 2)}, v1, {sr(SDBG)}, 0 offen sc1', 'EP')]
        if False: pass
        elif t < 15:
            sm = sm_max(t) + sm_check(t) + sm_exp(t)
            if t == 1: sm = [f'v_add_f32 v{vS+16+r}, v{vS+16+r}, v{vNM}' for r in range(16)] + sm
            kw = lambda: e.need_regs(ar(aK + 28, 4))
            kw.cost = 4
            X_ = opts['x_']
            if X_ & 1: sm = [i for i in sm if callable(i) or not i.startswith('v_exp')]
            if X_ & 2: sm = [i for i in sm if callable(i) or not i.startswith('v_cvt')]
            if X_ & 4: sm = [i for i in sm if not callable(i) and not i.startswith('v_max')]
            rk, rv = rd_k(t + 1), rd_v(t)
            if X_ & 8: rk = []
            if X_ & 16: rv = []
            streams = [(rk, 0, 8), (rv + WORD.get(t, []), 1, 16), (sm, 1, 18), (d, 0, 17), ([kw], 9, 10)]
            if t == 14: streams.append((rd_v(15), 10, 17))
            e.weave2(mf_pv(t - 1) + mf_qk(t + 1), streams, opts['slack'])
        else:
            sm = sm_max(t) + sm_check(t) + sm_exp(t)
            e.weave2(mf_pv(14), [(sm, 1, 10), (d, 0, 10)])
        if t < 15:
            tags = {f'K{t+2}', f'V{t+1}'}
            if t == rdt[0] - 1: tags.add('WO0')
            if t == rdt[1] - 1: tags.add('WO1')
            if t == 14: tags.add('EP')
            if t == 13: tags.add('V15')
            bar(tags)
    assert nxt == 32

e(f's_and_b32 s3, s{sB}, {opts["gmask"]}')
e('s_cbranch_scc0 L_grpA')
S0 = e.S.clone(); nb0 = nbar[0]
group_body('B')
e('s_branch L_common')
SB = e.S; nb1 = nbar[0]; nbar[0] = nb0
e.label('L_grpA')
e.S = S0
group_body('A')
assert nbar[0] == nb1
e.label('L_common')
e.S = Emit.merge_states(e.S, SB)
e.roles = ['A', 'B']
e(f'v_or_b32 v1, v{vE}, v{vE+1}')
e('v_cmp_eq_u32 vcc, 0, v1')
e('s_cbranch_vccnz L_epoch_spin')
e.label('L_epoch_ok')
P15 = vP + 8
seq = [mf_l(15, 0), mf_l(15, 1)]
for tt in range(4):
    for a in range(2):
        seq.append(f'{MF} {vr(vO+16*tt, 16)}, {ar(aVB(15) + (a*4+tt)*4, 4)}, {vr(P15+4*a, 4)}, {vr(vO+16*tt, 16)}')
def norm(tt):
    it = []
    for a in range(2):
        for p in range(4 * a, 4 * a + 4):
            r = vO + 16 * tt + 2 * p
            if opts['pk']: it.append(f'v_pk_mul_f32 {vr(r, 2)}, {vr(r, 2)}, {vr(vINV, 2)} op_sel_hi:[1,0]')
            else: it += [f'v_mul_f32 v{r}, v{vINV}, v{r}', f'v_mul_f32 v{r+1}, v{vINV}, v{r+1}']
        for p in range(4 * a, 4 * a + 4):
            r = vO + 16 * tt + 2 * p
            it.append(f'v_cvt_pk_bf16_f32 v{vQ+8*tt+p}, v{r}, v{r+1}')
        f = 2 * tt + a
        it.append(f'ds_write_b128 v{vXW}, {vr(vQ+4*f, 4)} offset:{f*1024}')
    return it
mo0 = mf_o(0); mo1 = mf_o(1)
own = sum(([mo0[f], mo1[f]] for f in range(8)), [])
e.weave(seq + own[:12], [([f'v_rcp_f32 v{vINV}, v{vL}'], 4, 5),
                         (norm(0), 5, 9), (norm(1), 9, 13), (norm(2), 13, 17), (norm(3), 17, 21)])
bar({'WO2'})
sU, sCNT, sTODO, sRDY, sI, sOFF, sUA, sLB, sOO, sOM, sMB = 20, 21, 22, 23, 24, 25, 26, 27, 28, 29, 32
vMV, vMR, vMO = 212, 213, 214
red_setup = [
    f's_lshl_b32 s{sU}, s{sW}, 4', f's_add_u32 s{sU}, s{sU}, s{sHKV}',
    f's_lshl_b32 s{sUA}, s{sU}, 10',
    f's_lshr_b32 s{sOO}, s{sU}, 3', f's_add_u32 s{sOO}, s{sOO}, s{sROT}',
    lambda: (e(f's_sub_u32 s{sI}, s{sOO}, 9'), e(f's_cselect_b32 s{sOO}, s{sOO}, s{sI}')),
    f's_lshl_b32 s{sOO}, s{sOO}, 7',
    f's_bfe_u32 s{sI}, s{sU}, 0x10001', f's_mul_i32 s{sI}, s{sI}, 36864', f's_add_u32 s{sOO}, s{sOO}, s{sI}',
    f's_bfe_u32 s{sI}, s{sU}, 0x10002', f's_lshl_b32 s{sI}, s{sI}, 6', f's_add_u32 s{sOO}, s{sOO}, s{sI}',
    f's_and_b32 s{sI}, s{sU}, 1', f's_lshl_b32 s{sI}, s{sI}, 4', f's_add_u32 s{sOO}, s{sOO}, s{sI}',
    lambda: (e(f's_sub_u32 s{sOM}, s{sROT}, 1'), e(f's_cselect_b32 s{sOM}, 8, s{sOM}')),
    f's_lshl_b32 s{sOM}, s{sOM}, 7',
    f's_and_b32 s{sI}, s{sW}, 1', f's_mul_i32 s{sI}, s{sI}, 36864', f's_add_u32 s{sOM}, s{sOM}, s{sI}',
    f's_and_b32 s{sI}, s{sHKV}, 3', f's_mul_i32 s{sI}, s{sI}, 9216', f's_add_u32 s{sOM}, s{sOM}, s{sI}',
    f's_lshr_b32 s{sI}, s{sW}, 1', f's_lshl_b32 s{sI}, s{sI}, 6', f's_add_u32 s{sOM}, s{sOM}, s{sI}',
    f's_bfe_u32 s{sI}, s{sHKV}, 0x10002', f's_lshl_b32 s{sI}, s{sI}, 5', f's_add_u32 s{sOM}, s{sOM}, s{sI}',
    f's_lshr_b32 s{sI}, s{sHKV}, 3', f's_lshl_b32 s{sI}, s{sI}, 4', f's_add_u32 s{sOM}, s{sOM}, s{sI}',
    f's_lshl_b32 s{sMB}, s{sU}, 7', f's_add_u32 s{sMB}, s{sMB}, 65536',
    f's_mov_b32 s{sTODO}, -1',
] + ([
    f's_bfe_u32 s{sI}, s{sU}, 0x20001', f's_lshl_b32 s{sI}, s{sI}, {opts["fls"]}',
] + ([lambda: (e(f's_cmp_lt_u32 s{sU}, {8*(opts["two"]+1)}'), e(f's_cselect_b32 s{sOFF}, s{sFL}, 0')), f's_add_u32 s{sI}, s{sI}, s{sOFF}'] if opts['two'] else []) + [
    f's_lshl_b32 s{sOFF}, s{sW}, {opts["fls"]}', f's_sub_u32 s{sOFF}, s{sOFF}, s{sI}',
    'v_and_b32 v1, 15, v0', f'v_lshlrev_b32 v1, {opts["fls"]+2}, v1', f'v_add_u32 v1, s{sI}, v1',
    'v_bfe_u32 v2, v0, 4, 1', f'v_mul_lo_u32 v2, s{sOFF}, v2', 'v_add_u32 v1, v1, v2',
] if opts['one_flag'] else [
    f's_lshr_b32 s{sI}, s{sU}, 1', f's_lshl_b32 s{sI}, s{sI}, 7',
    f's_lshl_b32 s{sOFF}, s{sW}, 7', f's_add_u32 s{sOFF}, s{sOFF}, 4096', f's_sub_u32 s{sOFF}, s{sOFF}, s{sI}',
    'v_and_b32 v1, 15, v0', 'v_lshlrev_b32 v1, 3, v1', f'v_add_u32 v1, s{sI}, v1',
    'v_bfe_u32 v2, v0, 4, 1', f'v_mul_u32_u24 v2, s{sOFF}, v2', 'v_add_u32 v1, v1, v2',
]) + [
    f's_mul_i32 s{sLB}, s{sW}, 18432', f's_add_u32 s{sLB}, s{sLB}, {RG*32768}',
    f'v_add_u32 v3, s{sLB}, v{vL16}',
    'v_and_b32 v2, 31, v0', 'v_lshlrev_b32 v7, 20, v2', 'v_mul_u32_u24 v2, 1152, v2', 'v_bfe_u32 v6, v0, 5, 1', 'v_lshl_add_u32 v2, v6, 5, v2',
    'v_mul_u32_u24 v8, 2304, v6', f'v_add_u32 v{vMO}, v7, v8',
    'v_bfe_u32 v7, v0, 3, 3', 'v_mul_u32_u24 v7, 73728, v7', 'v_and_b32 v8, 7, v0', f'v_lshl_add_u32 v{vMV}, v8, 4, v7',
    'v_lshlrev_b32 v7, 10, v6', 'v_bfe_u32 v8, v0, 2, 2', 'v_lshl_add_u32 v7, v8, 7, v7',
    'v_and_b32 v8, 1, v0', 'v_lshl_add_u32 v7, v8, 5, v7', 'v_bfe_u32 v8, v0, 4, 1', 'v_lshl_add_u32 v7, v8, 4, v7',
    'v_bfe_u32 v8, v0, 1, 1', 'v_lshl_add_u32 v7, v8, 3, v7', f'v_add_u32 v{vMR}, s{sLB}, v7',
    f's_mov_b32 s{sCNT}, {opts["spin"]}',
] + [f'v_mov_b32 v{vNM+i}, 0x3f803f80' for i in range(4)]
OPLAN = {2: [(6, 0), (6, 1)], 3: [(7, 0), (7, 1)], 4: [(8, 0), (8, 1)]}
LAG = opts['lag']
pub = 0
r2 = rd_wo(2)
e.weave(own[12:] + mo0[8:] + mo1[8:],
        [([f'ds_read_b128 {ar(aOO+4*f, 4)}, v{vXR} offset:{f*1024}' for f in range(8)], -1, 1),
         (wo_cb(5), 0, 12), (r2[:16], 4, 12), (r2[16:], 12, 18), (ep_o(0), 14, 20)])
mark()
bar({'WO3'})
nrs = (len(red_setup) + 2) // 3
for j in range(2, 9):
    streams = []
    if j in OPLAN: streams.append((sum((wo_half(*h) for h in OPLAN[j]), []), -1, 10))
    if j < 8: streams.append((rd_wo(j + 1), 0, 14))
    ep = ep_o(j - 1)
    if j - 1 - LAG >= 0: ep += publish(pub); pub += 1
    streams.append((ep, 8 if j in OPLAN else 3, 16 if j in OPLAN else 12))
    if j in (5, 6, 7): streams.append((red_setup[(j-5)*nrs:(j-4)*nrs], 0, 16))
    if j == 8 and opts['r0'] == 1: streams.append(([(f'buffer_load_dwordx2 v[4:5], v1, {sr(SFL)}, 0 offen sc1', 'POLL')], opts['pg'], opts['pg'] + 1))
    e.weave(mf_o(j), streams)
    if j < 7: bar({f'WO{j+2}'})
put(ep_o(8))
mark()
def masked_round():
    e(f's_mov_b32 s{sOFF}, s{sUA}')
    for h in range(16):
        if h % 4 == 0: e(f's_add_u32 m0, s{sLB}, {h*1024}')
        e(f's_bitcmp1_b32 s{sRDY}, {h}')
        e('s_cselect_b64 exec, -1, 0')
        off = f' offset:{(h%4)*1024}' if h % 4 else ''
        if opts['thr'] and h >= opts['thr']: e(f's_waitcnt vmcnt({opts["thr"]-1})')
        e(f'buffer_load_dwordx4 v{vL16}, {sr(SPR)}, s{sOFF} offen{off} {opts["ld"]} lds', 'RD')
        if h < 15: e(f's_add_u32 s{sOFF}, s{sOFF}, {73728 - 1024 if h % 4 != 3 else 73728 + 3072}')
    e('s_mov_b64 exec, -1')
if opts['wgf']:
    e(f's_lshl_b32 s{sTODO}, 1, s{sHKV}')
    e(f's_andn2_b32 s{sTODO}, 0xffff, s{sTODO}')
    e('v_and_b32 v1, 15, v0')
    e(f'v_lshlrev_b32 v1, {opts["fls"]+2}, v1')
    if opts['mp']:
        NP = opts['mp']
        pl = lambda k: f'buffer_load_dwordx2 v[{4+2*k}:{5+2*k}], v1, {sr(SFL)}, 0 offen sc1'
        e(f's_cmp_lg_u32 s{sW}, 0')
        e('s_cbranch_scc1 L_w123')
        e(pl(0))
        e('s_waitcnt vmcnt(0)')
        e('s_barrier')
        mark()
        e(f'v_cmp_ne_u64 vcc, v[4:5], {vr(vE, 2)}')
        e('s_nop 0')
        e(f's_and_b32 s{sRDY}, vcc_lo, s{sTODO}')
        e('s_cbranch_scc0 L_rel')
        for k in range(NP - 1):
            e(pl(k))
            e(f's_nop 15'); e('s_nop 15')
        e.label('L_poll')
        e.S = State()
        for k in range(NP):
            e(pl((k + NP - 1) % NP))
            e(f's_waitcnt vmcnt({NP-1})')
            e(f'v_cmp_ne_u64 vcc, v[{4+2*k}:{5+2*k}], {vr(vE, 2)}')
            e('s_nop 0')
            e(f's_and_b32 s{sRDY}, vcc_lo, s{sTODO}')
            e('s_cbranch_scc0 L_rel')
        e(f's_sub_u32 s{sCNT}, s{sCNT}, 1')
        e('s_cbranch_scc0 L_poll')
        e('s_branch L_rel')
        e.label('L_w123')
        e('s_waitcnt vmcnt(0)')
        e('s_barrier')
        e(f's_cmp_lg_u32 s{sW}, 1')
        e('s_cbranch_scc1 L_nopub')
        e(f'v_subrev_u32 v{vFLV}, {1 << opts["fls"]}, v{vFLV}')
        e(f'buffer_store_dwordx2 {vr(vE, 2)}, v{vFLV}, {sr(SFL)}, 0 offen sc1')
        e.label('L_nopub')
        nbar[0] -= 1; mark()
    else:
        e(f's_cmp_lg_u32 s{sW}, 0')
        e('s_cbranch_scc1 L_w123')
        e(f'buffer_load_dwordx2 v[4:5], v1, {sr(SFL)}, 0 offen sc1')
        e('s_waitcnt vmcnt(0)')
        e('s_barrier')
        e(f'buffer_store_dwordx2 {vr(vE, 2)}, v{vFLV}, {sr(SFL)}, 0 offen sc1')
        mark()
        e('s_branch L_chk')
        e.label('L_poll')
        e.S = State()
        e(f'buffer_load_dwordx2 v[4:5], v1, {sr(SFL)}, 0 offen sc1')
        e(f's_sub_u32 s{sCNT}, s{sCNT}, 1')
        e('s_cbranch_scc1 L_rel')
        e('s_waitcnt vmcnt(0)')
        e.label('L_chk')
        e(f'v_cmp_ne_u64 vcc, v[4:5], {vr(vE, 2)}')
        e('s_nop 0')
        e(f's_and_b32 s{sRDY}, vcc_lo, s{sTODO}')
        e('s_cbranch_scc1 L_poll')
        e('s_branch L_rel')
        e.label('L_w123')
        e('s_waitcnt vmcnt(0)')
        e('s_barrier')
        nbar[0] -= 1; mark()
    e.label('L_rel')
    e('s_barrier')
    e(f's_add_u32 m0, s{sLB}, 16384')
    e(f's_add_u32 s{sOFF}, s{sMB}, {8*73728 - 1024}')
    e(f'buffer_load_dwordx4 v{vMV}, {sr(SPR)}, s{sMB} offen {opts["ld"]} lds')
    e(f'buffer_load_dwordx4 v{vMV}, {sr(SPR)}, s{sOFF} offen offset:1024 {opts["ld"]} lds')
    for h in range(16):
        if opts['wgf'] == 2:
            e(f'buffer_load_dwordx4 {ar(4*h, 4)}, v{vL16}, {sr(SPR)}, s{sUA} offen {opts["ld"]}')
            if h < 15: e(f's_add_u32 s{sUA}, s{sUA}, 73728')
            continue
        if h % 4 == 0: e(f's_add_u32 m0, s{sLB}, {h*1024}')
        off = f' offset:{(h%4)*1024}' if h % 4 else ''
        e(f'buffer_load_dwordx4 v{vL16}, {sr(SPR)}, s{sUA} offen{off} {opts["ld"]} lds')
        if h < 15: e(f's_add_u32 s{sUA}, s{sUA}, {73728 - 1024 if h % 4 != 3 else 73728 + 3072}')
else:
    if opts['r0'] == 2: e(f'buffer_load_dwordx2 v[4:5], v1, {sr(SFL)}, 0 offen sc1', 'POLL')
    if opts['r0'] == 1:
        e.wait_vm({'POLL'})
        e(f'v_cmp_eq_u64 vcc, v[4:5], {vr(vE, 2)}')
        e('s_nop 0')
        e(f's_and_b32 s{sRDY}, vcc_lo, 0xffff')
        e(f's_andn2_b32 s{sTODO}, s{sTODO}, s{sRDY}')
        masked_round()
    while pub < 9: put(publish(pub)); pub += 1
    mark()
    if opts['r0'] == 2:
        e.wait_vm({'POLL'})
        e('s_branch L_chk')
    e.label('L_poll')
    e.S = State()
    if opts['sleep']: e(f's_sleep {opts["sleep"]}')
    e(f'buffer_load_dwordx2 v[4:5], v1, {sr(SFL)}, 0 offen {opts["pp"]}')
    e(f's_sub_u32 s{sCNT}, s{sCNT}, 1')
    e('s_cbranch_scc1 L_go')
    e('s_waitcnt vmcnt(0)')
    e.label('L_chk')
    e(f'v_cmp_eq_u64 vcc, v[4:5], {vr(vE, 2)}')
    e('s_nop 0')
    if opts['rtrace']:
        e('s_memrealtime s[98:99]'); e('s_waitcnt lgkmcnt(0)')
        e(f's_sub_u32 s30, {opts["spin"]}, s{sCNT}')
        e('s_min_u32 s30, s30, 30')
        e(f's_and_b32 s31, vcc_lo, s{sTODO}')
        e('s_mov_b32 m0, s30')
        e(f'v_writelane_b32 v{vPA}, s98, m0')
        e('s_add_u32 m0, s30, 31')
        e(f'v_writelane_b32 v{vPA}, s31, m0')
    e(f's_and_b32 s{sRDY}, vcc_lo, s{sTODO}')
    if opts['allrdy'] == 1:
        e(f's_cmp_eq_u32 s{sRDY}, -1')
        e('s_cbranch_scc0 L_poll')
    if opts['allrdy'] == 2:
        e(f's_and_b32 s{sI}, s{sRDY}, 0xffff')
        e(f's_cmp_eq_u32 s{sI}, 0xffff')
        e(f's_cselect_b32 s{sI}, -1, 0xffff0000')
        e(f's_and_b32 s{sRDY}, s{sRDY}, s{sI}')
    e(f's_cmp_ge_u32 s{sRDY}, 0xffff0000')
    e('s_cbranch_scc0 L_nomini')
    e(f's_add_u32 m0, s{sLB}, 16384')
    e(f's_add_u32 s{sOFF}, s{sMB}, {8*73728 - 1024}')
    e(f'buffer_load_dwordx4 v{vMV}, {sr(SPR)}, s{sMB} offen {opts["ld"]} lds')
    e(f'buffer_load_dwordx4 v{vMV}, {sr(SPR)}, s{sOFF} offen offset:1024 {opts["ld"]} lds')
    e(f's_and_b32 s{sTODO}, s{sTODO}, 0xffff')
    e.label('L_nomini')
    e(f's_and_b32 s{sRDY}, s{sRDY}, 0xffff')
    e('s_cbranch_scc0 L_noround')
    e(f's_andn2_b32 s{sTODO}, s{sTODO}, s{sRDY}')
    masked_round()
    e.label('L_noround')
    e(f's_cmp_lg_u32 s{sTODO}, 0')
    e('s_cbranch_scc1 L_poll')
if opts['wgf'] == 2:
    mark()
    e('s_waitcnt vmcnt(16)')
    for m in range(2):
        for sec in range(2): e(f'ds_read_b64_tr_b16 {ar(64+4*m+2*sec, 2)}, v{vMR} offset:{16384 + m*64 + sec*512}')
    for m in range(2): e(f'{MF} {vr(vO+16*m, 16)}, {ar(64+4*m, 4)}, {vr(vNM, 4)}, 0')
    cv = []; stv = []
    for m in range(2):
        for c in range(2):
            d = vO + 32 + 8 * m + 4 * c
            cv += [f'v_cvt_pk_bf16_f32 v{d+p}, v{vO+16*m+8*c+2*p}, v{vO+16*m+8*c+2*p+1}' for p in range(4)]
            so = sOM if m == 0 else sI
            stv.append(f'buffer_store_dwordx4 {vr(d, 4)}, v{vMO}, {sr(SOUT)}, s{so} offen offset:{c*1152} {opts["out"]}')
    e(f's_add_u32 s{sI}, s{sOM}, 4608')
    for h in range(16):
        e(f's_waitcnt vmcnt({15-h})')
        e(f'{MF} {vr(vS, 16)}, {ar(aPERM, 4)}, {ar(4*h, 4)}, ' + ('0' if h == 0 else vr(vS, 16)))
        if 5 <= h < 13: put(cv[2*(h-5):2*(h-5)+2])
    mark()
    put(stv)
    for p in range(4): e(f'v_cvt_pk_bf16_f32 v{vP+p}, v{vS+2*p}, v{vS+2*p+1}')
    e(f'buffer_store_dwordx4 {vr(vP, 4)}, v2, {sr(SOUT)}, s{sOO} offen {opts["out"]}')
else:
    e.label('L_go')
    mark()
    e('s_waitcnt vmcnt(0)')
    mark()
    for m in range(2):
        for sec in range(2): e(f'ds_read_b64_tr_b16 {ar(64+4*m+2*sec, 2)}, v{vMR} offset:{16384 + m*64 + sec*512}')
    for h in range(16): e(f'ds_read_b128 {ar(4*h, 4)}, v3 offset:{h*1024}')
    for m in range(2): e(f'{MF} {vr(vO+16*m, 16)}, {ar(64+4*m, 4)}, {vr(vNM, 4)}, 0')
    mini = []
    for m in range(2):
        for c in range(2):
            d = vO + 32 + 8 * m + 4 * c
            mini += [f'v_cvt_pk_bf16_f32 v{d+p}, v{vO+16*m+8*c+2*p}, v{vO+16*m+8*c+2*p+1}' for p in range(4)]
            if m == 1 and c == 0: mini.append(f's_add_u32 s{sOM}, s{sOM}, 4608')
            mini.append(f'buffer_store_dwordx4 {vr(d, 4)}, v{vMO}, {sr(SOUT)}, s{sOM} offen offset:{c*1152} {opts["out"]}')
    e.weave([f'{MF} {vr(vS, 16)}, {ar(aPERM, 4)}, {ar(4*h, 4)}, ' + ('0' if h == 0 else vr(vS, 16)) for h in range(16)], [(mini, 4, 14)])
    for p in range(4): e(f'v_cvt_pk_bf16_f32 v{vP+p}, v{vS+2*p}, v{vS+2*p+1}')
    e(f'buffer_store_dwordx4 {vr(vP, 4)}, v2, {sr(SOUT)}, s{sOO} offen {opts["out"]}')
e.label('L_done')
if opts['spinx'] >= 0:
    e('s_waitcnt vmcnt(0)')
    mark()
    e('s_memrealtime s[96:97]')
    e('s_waitcnt lgkmcnt(0)')
    e('s_sub_u32 s98, s98, s100')
    e('s_lshl_b32 s98, s98, 2')
    e('s_add_u32 s98, s98, s96')
    e.label('L_spinx')
    e('s_memrealtime s[96:97]')
    e('s_waitcnt lgkmcnt(0)')
    e('s_sub_u32 s97, s96, s98')
    e('s_cmp_lt_i32 s97, 0')
    e('s_cbranch_scc1 L_spinx')
if PROF:
    mark()
    e('s_waitcnt vmcnt(0)')
    mark(); mark()
    e(f'v_writelane_b32 v{vPA}, s96, 63')
    mk_srd(SWS, 18, None, 0x10000000)
    e('s_lshl_b32 s62, s2, 11')
    e('s_add_u32 s62, s62, 0x9000000')
    e('v_and_b32 v2, 63, v0'); e('v_lshrrev_b32 v3, 6, v0'); e('v_lshlrev_b32 v2, 2, v2'); e('v_lshl_add_u32 v2, v3, 9, v2')
    e(f'buffer_store_dword v{vPA}, v2, {sr(SWS)}, s62 offen')
    e(f'buffer_store_dword v{vPB}, v2, {sr(SWS)}, s62 offen offset:256')
    print('bars', nbar[0], file=sys.stderr)
e.label('L_end')
e('s_endpgm')
e.label('L_epoch_spin')
e.S = State()
e(f's_mov_b32 s3, {opts["spin"]}')
e('v_mov_b32 v1, 0')
e.label('L_epoch_loop')
e(f'buffer_load_dwordx2 {vr(vE, 2)}, v1, {sr(SDBG)}, 0 offen sc1')
e('s_sub_u32 s3, s3, 1')
e('s_cbranch_scc1 L_epoch_ok')
e('s_waitcnt vmcnt(0)')
e(f'v_or_b32 v2, v{vE}, v{vE+1}')
e('v_cmp_eq_u32 vcc, 0, v2')
e('s_cbranch_vccnz L_epoch_loop')
e('s_branch L_epoch_ok')
for t in stubs:
    e.label(f'L_stub{t}')
    e.raw(f'    s_call_b64 s[{sRET}:{sRET+1}], L_rescale')
    e.raw(f'    s_branch L_back{t}')
e.label('L_rescale')
e.S = State()
e('s_nop 15'); e('s_nop 15')
e(f'v_mov_b32 v{vMX+1}, v{vMX}')
e(f'v_permlane32_swap_b32 v{vMX}, v{vMX+1}')
e(f'v_max3_f32 v{vMX}, v{vMX}, v{vMX+1}, 0')
e(f'v_ceil_f32 v{vMX}, v{vMX}')
e(f'v_exp_f32 v{vMX+1}, -v{vMX}')
for r in range(48): e(f'v_sub_f32 v{vS+r}, v{vS+r}, v{vMX}')
for r in range(68): e(f'v_mul_f32 v{vO+r}, v{vO+r}, v{vMX+1}')
for r in range(16):
    e(f'v_lshlrev_b32 v2, 16, v{vP+r}')
    e(f'v_and_b32 v3, 0xffff0000, v{vP+r}')
    e(f'v_mul_f32 v2, v2, v{vMX+1}')
    e(f'v_mul_f32 v3, v3, v{vMX+1}')
    e(f'v_cvt_pk_bf16_f32 v{vP+r}, v2, v3')
e('s_nop 3')
e(f's_setpc_b64 s[{sRET}:{sRET+1}]')
e.label('L_textend')

hdr = f"""; GQA block (Q-proj + cached attention + O-proj + cross-workgroup reduction) for gfx950
; @launch grid=(256,1,1) block=(256,1,1) lds=163840
.amdgcn_target "amdgcn-amd-amdhsa--gfx950"
.text
"""
kd = f""".section .rodata,"a"
.p2align 6
.amdhsa_kernel {K}
  .amdhsa_next_free_vgpr 512
  .amdhsa_next_free_sgpr 102
  .amdhsa_accum_offset 256
  .amdhsa_group_segment_fixed_size 0
  .amdhsa_kernarg_size 64
  .amdhsa_user_sgpr_count 2
  .amdhsa_user_sgpr_kernarg_segment_ptr 1
  .amdhsa_system_sgpr_workgroup_id_x 1
.end_amdhsa_kernel
"""
open(sys.argv[1], 'w').write(hdr + e.text() + kd)
print(e.count, 'nops', e.nops, file=sys.stderr)
```

```python
import sys, math, struct
from emit import Emit, State

NAME = "standalone__gqa_block_cached__near_ridge"
opts = dict(kv="nt", wq="", x="", wo="", st="sc1", ld="sc1", T=8.0, prof=0, cpf=1, lag=9,
            kvplan="a", spin=200000, spinx=-1, fsh=3, sleep=0, allrdy=0, gmask=1, b1=14, la=9, one=0, pm='', pk=0, nost=0, nowo=0, nopub=0, apl='0,1,1,1,1,2,2,2,2,2,2,2', bwo='1,3,5,7,12,12,13,13,15,15', awo='1,1,4,4,12,12,13,13,15,15', brd='7,10', ard='2,6', opl=1, pollpos=0, out='', krot=0, qrot=0, sent=0, w2=1, slack=0, x_=0, half=0, kv0=0, thr=0, nofast=0, roto=1, rtrace=0, r0=2, pg=13, one_flag=1, fls=7, two=0, pp='sc1', fp='sc1', full=0, tlb=-1, tsh=16, pp0=0, wqfirst=1, qrd=6, wgf=2, nreg=0, mp=1, wof=1, kearly=1, oplan='2,2,3,3,4,4', epg=8)
for a in sys.argv[2:]:
    k, v = a.split('=')
    opts[k] = type(opts[k])(v) if not isinstance(opts[k], str) else v.replace('+', ' ')
PROF = opts['prof']
TM = 's_memrealtime' if PROF == 2 else 's_memtime'
PM = set(int(x) for x in opts['pm'].split(',')) if opts['pm'] else None
def f32(x): return '0x%08x' % struct.unpack('<I', struct.pack('<f', x))[0]

e = Emit(); e.roles = ['A', 'B']
SX, SK, SV, SWQ, SWO, SWS = 20, 24, 28, 32, 36, 40
SFL, SPR, SOUT, SDBG = 80, 84, 88, 92
sW, sHKV, sB, sROT = 44, 45, 46, 47
sT0, sT1, sT2 = 48, 49, 52
sRET = 50
sWQ, sWO, sST = 53, 54, 55
sM0W, sM0T = 56, 57
sSC = 58
sXO, sFL, sM0Q, sJOB = 60, 61, 62, 63
sTILE = 64
vKR = 16; vVR = 40
vKa, vKb, vVc = 52, 53, 54
vWOR = 55; vXW, vXR = 61, 62; vWOV = 63; vSTV = 67
vMX = 68; vINV = 70
vPA, vPB = 72, 73
vE = 74
vFLV = 76
vL16 = 77
vS = 80; vNM = 112; vP = 128; vO = 144; vL = 208; vQ = 224
vXRD = 80; vWQR = 88; vXa, vXb = 96, 97; vWQV = 100
aX = 0; aWQ = 144; aONE = 240; aPERM = 244
aK = 0; aV = 32; aWO = 64; aOO = 192
def aVB(t): return aV if t % 2 else aOO
FL_OFF = 256 * 73728
FSH = opts['fsh']; FG = 16 << FSH

def vr(b, n): return f'v[{b}:{b+n-1}]'
def ar(b, n): return f'a[{b}:{b+n-1}]'
def sr(b, n=4): return f's[{b}:{b+n-1}]'
MF = 'v_mfma_f32_32x32x16_bf16'
def win(off): return off >> 16, off & 0xffff

nbar = [0]
def mark():
    if not PROF or (PM is not None and nbar[0] not in PM):
        if nbar[0] == opts['spinx']: e('s_memrealtime s[98:99]')
        nbar[0] += 1
        return
    if PM is not None:
        i = nbar[0]; nbar[0] += 1
        e(f'{TM} s[98:99]'); e('s_waitcnt lgkmcnt(0)'); e(f'v_writelane_b32 v{vPB}, s98, {i}')
        return
    i = nbar[0]; nbar[0] += 1
    e(f'{TM} s[98:99]'); e('s_waitcnt lgkmcnt(0)')
    e(f'v_writelane_b32 v{vPA}, s98, {i}')
    if i > 0: e(f'v_writelane_b32 v{vPB}, s100, {i-1}')
    e(f'{TM} s[100:101]')
def bar(tags, lgkm0=True):
    if not PROF or PM is not None:
        e.wait_vm(tags, lgkm0=lgkm0); e('s_barrier')
        mark()
        return
    i = nbar[0]; nbar[0] += 1
    e(f'{TM} s[98:99]'); e('s_waitcnt lgkmcnt(0)')
    e(f'v_writelane_b32 v{vPA}, s98, {i}')
    if i > 0: e(f'v_writelane_b32 v{vPB}, s100, {i-1}')
    e.wait_vm(tags, lgkm0=lgkm0); e('s_barrier')
    e(f'{TM} s[100:101]')

def put(items):
    for it in items:
        if callable(it): it()
        elif isinstance(it, tuple): e(it[0], it[1])
        else: e(it)
def wrap_adv(r, step, lim, tmp):
    def f():
        e(f's_sub_u32 s{tmp}, s{r}, {lim}')
        e(f's_cselect_b32 s{r}, s{r}, s{tmp}')
    return [f's_add_u32 s{r}, s{r}, {step}', f]
def dma(v, srd, so, off, pol, tag):
    o = f' offset:{off}' if off else ''
    p = f' {pol}' if pol else ''
    return (f'buffer_load_dwordx4 v{v}, {sr(srd)}, {so} offen{o}{p} lds', tag)

KVORD = ['K0'] + sum(([f'K{t+1}', f'V{t}'] for t in range(15)), []) + ['V15']
KVSLOT = {}
def set_group(g):
    for n, nm in enumerate(KVORD):
        KVSLOT[nm] = n if (g == 'A' and n in (12, 13)) else (n + 4) % 12
XSLOT = [9, 10, 11, 0, 1, 2, 3, 12, 13]
def kv(n):
    nm = KVORD[n]; t = int(nm[1:]); isk = nm[0] == 'K'
    srd = SK if isk else SV
    return [f's_add_u32 m0, s{sM0W}, {KVSLOT[nm]*8192}',
            dma(vKa if isk else vVc, srd, f's{sTILE+t}', 0, opts['kv'], nm),
            dma(vKb if isk else vVc, srd, f's{sTILE+t}', 1024, opts['kv'], nm)]
STG = ['a[224:227]', 'a[228:231]', 'a[232:235]', 'a[236:239]', 'a[248:251]', 'a[252:255]', 'v[216:219]', 'v[220:223]']
def kv_reg(n):
    nm = KVORD[n]; t = int(nm[1:]); isk = nm[0] == 'K'
    srd = SK if isk else SV; i = 2 * (n - 14); p = f' {opts["kv"]}' if opts['kv'] else ''
    return [(f'buffer_load_dwordx4 {STG[i]}, v{vKa if isk else vVc}, {sr(srd)}, s{sTILE+t} offen{p}', 'STG'),
            (f'buffer_load_dwordx4 {STG[i+1]}, v{vKb if isk else vVc}, {sr(srd)}, s{sTILE+t} offen offset:1024{p}', 'STG')]
def kv_wr(n):
    i = 2 * (n - 14); o = KVSLOT[KVORD[n]] * 8192
    a = vSTV if o < 65536 else 215
    return [f'ds_write_b128 v{a}, {STG[i]} offset:{o & 0xffff}', f'ds_write_b128 v{a}, {STG[i+1]} offset:{(o & 0xffff) + 1024}']
def xt(j):
    return [f's_add_u32 m0, s{sM0W}, {XSLOT[j]*8192}',
            dma(vXa, SX, f's{sXO}', 0, opts['x'], f'X{j}'),
            dma(vXb, SX, f's{sXO}', 1024, opts['x'], f'X{j}')] + wrap_adv(sXO, 128, 1152, sT1)
def wq_stage(s):
    it = [f's_add_u32 m0, s{sM0Q}, {(14 + 2*(s%3))*8192}']
    it += [dma(vWQV + p, SWQ, f's{sWQ}', p * 1024, opts['wq'], f'WQ{s}') for p in range(4)]
    return it + wrap_adv(sWQ, 2 * 131072, 36 * 131072, sT1)
WOG = [4, 4, 3, 4, 0, 1, 2, 3, 4]
XG = 2
RG = 1
def wo_half(j, half):
    it = [f's_add_u32 m0, s{sM0T}, {4*WOG[j]*8192 + half*4096}']
    if half: it.append(f's_add_u32 s{sT0}, s{sWO}, 36864')
    it += [dma(vWOV + p, SWO, f's{sT0 if half else sWO}', p * 1024, opts['wo'], f'WO{j}') for p in range(4)]
    return it + (wrap_adv(sWO, 128, 1152, sT1) if half else [])
def wo_cb(j): return wo_half(j, 0) + wo_half(j, 1)

def mk_srd(d, ptr, addlo, nbytes):
    if addlo is None:
        e(f's_mov_b32 s{d}, s{ptr}'); e(f's_and_b32 s{d+1}, s{ptr+1}, 0xffff')
    else:
        e(f's_add_u32 s{d}, s{ptr}, {addlo}')
        e(f's_addc_u32 s{d+1}, s{ptr+1}, 0')
        e(f's_and_b32 s{d+1}, s{d+1}, 0xffff')
    e(f's_mov_b32 s{d+2}, {nbytes}')
    e(f's_mov_b32 s{d+3}, 0x00020000')

def rd_x(j):
    w_, o = win(XSLOT[j] * 8192)
    return [f'ds_read_b128 {ar(aX+4*(4*j+ks), 4)}, v{vXRD + 4*w_ + ks} offset:{o}' for ks in range(4)]
def rd_wq(stage):
    it = []
    for ks in range(2):
        w_, o = win((14 + 2 * (stage % 3) + ks) * 8192)
        for u in range(4):
            d = aWQ + 32 * (stage % 2) + (ks * 4 + u) * 4
            for sec in range(2):
                it.append(f'ds_read_b64_tr_b16 {ar(d+2*sec, 2)}, v{vWQR + 4*(w_-1) + u} offset:{o + sec*1024}')
    return it
def mf_q(stage, order=None):
    it = []
    idx = [(ks, u) for ks in range(2) for u in range(4)] if order is None else order
    for ks, u in idx:
        d = aWQ + 32 * (stage % 2) + (ks * 4 + u) * 4
        c = '0' if (stage == 0 and ks == 0) else vr(vO + 16 * u, 16)
        it.append(f'{MF} {vr(vO+16*u, 16)}, {ar(d, 4)}, {ar(aX + 4*(2*stage+ks), 4)}, {c}')
    return it
def aKB(t): return aV if t == 1 else aK
def rd_k(t):
    w_, o = win(KVSLOT[f'K{t}'] * 8192)
    return [f'ds_read_b128 {ar(aKB(t)+4*s, 4)}, v{vKR + 8*w_ + s} offset:{o}' for s in range(8)]
def rd_v(t):
    w_, o = win(KVSLOT[f'V{t}'] * 8192)
    it = []
    for a in range(2):
        for tt in range(4):
            d = aVB(t) + (a * 4 + tt) * 4
            for sec in range(2):
                it.append(f'ds_read_b64_tr_b16 {ar(d+2*sec, 2)}, v{vVR + 4*w_ + tt} offset:{o + a*4096 + sec*2048}')
    return it
def mf_qk(t):
    S = vS + 16 * (t % 2)
    return [f'{MF} {vr(S, 16)}, {ar(aKB(t)+4*s, 4)}, {vr(vQ+4*s, 4)}, ' + (vr(S, 16) if s else ('0' if t <= 1 else vr(vNM, 16))) for s in range(8)]
def mf_pv(t):
    P = vP + 8 * (t % 2)
    it = []
    for a in range(2):
        for tt in range(4):
            c = '0' if (t == 0 and a == 0) else vr(vO + 16 * tt, 16)
            it.append(f'{MF} {vr(vO+16*tt, 16)}, {ar(aVB(t) + (a*4+tt)*4, 4)}, {vr(P+4*a, 4)}, {c}')
        it.append(mf_l(t, a))
    return it
def mf_l(t, a):
    P = vP + 8 * (t % 2)
    c = '0' if (t == 0 and a == 0) else vr(vL, 4)
    return f'v_mfma_f32_16x16x32_bf16 {vr(vL, 4)}, {ar(aONE, 4)}, {vr(P+4*a, 4)}, {c}'
def sm_max(t):
    S = vS + 16 * (t % 2)
    it = [f'v_max3_f32 v{vMX}, v{S}, v{S+1}, v{S+2}', f'v_max3_f32 v{vMX+1}, v{S+3}, v{S+4}, v{S+5}']
    k = 6; d = 0
    while k < 16:
        it.append(f'v_max3_f32 v{vMX+d}, v{vMX+d}, v{S+k}, v{S+k+1}'); k += 2; d ^= 1
    it.append(f'v_max_f32 v{vMX}, v{vMX}, v{vMX+1}')
    return it
stubs = []
def sm_check(t0):
    t = f'{e.roles[0]}{t0}'
    def f():
        e(f'v_cmp_lt_f32 vcc, {f32(opts["T"])}, v{vMX}')
        e(f's_cbranch_vccnz L_stub{t}')
        e.label(f'L_back{t}')
        stubs.append(t)
    return [f]
def sm_exp(t):
    S = vS + 16 * (t % 2); P = vP + 8 * (t % 2)
    it = [f'v_exp_f32 v{S}, v{S}', f'v_exp_f32 v{S+1}, v{S+1}']
    for p in range(8):
        if p < 7: it += [f'v_exp_f32 v{S+2*p+2}, v{S+2*p+2}', f'v_exp_f32 v{S+2*p+3}, v{S+2*p+3}']
        it.append(f'v_cvt_pk_bf16_f32 v{P+p}, v{S+2*p}, v{S+2*p+1}')
    return it
def rd_wo(j):
    w_, o = win(WOG[j] * 32768)
    it = []
    for oth in range(2):
        for f in range(8):
            d = aWO + 64 * (j % 2) + (oth * 8 + f) * 4
            for sec in range(2):
                it.append(f'ds_read_b64_tr_b16 {ar(d+2*sec, 2)}, v{vWOR + 2*w_ + oth} offset:{o + f*2048 + sec*1024}')
    return it
def mf_o(j):
    acc = vS + 16 * (j % 2)
    it = []
    for oth in range(2):
        for f in range(8):
            d = aWO + 64 * (j % 2) + (oth * 8 + f) * 4
            b = vr(vQ + 4 * f, 4) if oth == 0 else ar(aOO + 4 * f, 4)
            c = '0' if (oth == 0 and f == 0) else vr(acc, 16)
            it.append(f'{MF} {vr(acc, 16)}, {ar(d, 4)}, {b}, {c}')
    return it
def ep_o(j):
    acc = vS + 16 * (j % 2); P = vP + 8 * (j % 2)
    it = []
    for h in range(2):
        for p in range(4):
            it.append(f'v_cvt_pk_bf16_f32 v{P+4*h+p}, v{acc+8*h+2*p}, v{acc+8*h+2*p+1}')
        off = ' offset:1024' if h else ''
        if not opts['nost'] and not (opts['half'] and j in (1, 2, 3, 4)): it.append((f'buffer_store_dwordx4 {vr(P+4*h, 4)}, v{vSTV}, {sr(SWS)}, s{sTILE+j} offen{off} {opts["st"]}', f'ST{j}'))
    return it
def publish(j):
    def f():
        if opts['one_flag']:
            FLS = opts['fls']
            if j == 8 or (opts['two'] and j == opts['two']):
                if j == 8: e('s_waitcnt vmcnt(0)')
                else: e.wait_vm({f'ST{j}'})
                so = '0' if j == 8 else f's{sFL}'
                e(f'buffer_store_dwordx2 {vr(vE, 2)}, v{vFLV}, {sr(SFL)}, {so} offen {opts["fp"]}', 'FL')
            return
        e.wait_vm({f'ST{j}'})
        so, off = ('0', j * 512) if j < 8 else (f's{sFL}', 0)
        e(f'buffer_store_dwordx2 {vr(vE, 2)}, v{vFLV}, {sr(SFL)}, {so} offen offset:{off} sc1', 'FL')
    return [f]

K = NAME + '_kernel'
e.raw(f'.globl {K}\n.p2align 8\n.type {K},@function\n{K}:')
e('s_cmp_ge_u32 s2, 256')
e('s_cbranch_scc1 L_end')
e('s_load_dwordx8 s[4:11], s[0:1], 0')
e('s_load_dwordx8 s[12:19], s[0:1], 32')
e('s_memrealtime s[100:101]')
if PROF: e(f'{TM} s[96:97]')
if opts['cpf']:
    e('s_getpc_b64 s[98:99]')
    e.label('L_pc')
    e('s_lshr_b32 s3, s2, 3')
    e('v_lshl_add_u32 v9, s3, 4, v0')
    e('v_lshlrev_b32 v9, 7, v9')
    e(f'v_min_u32 v9, L_textend-L_pc-4, v9')
    e('v_cmp_gt_u32 vcc, 16, v0')
    e('s_and_saveexec_b64 s[20:21], vcc')
    e('s_cbranch_execz L_nocpf')
    e.raw('    global_load_dword v12, v9, s[98:99]')
    e.label('L_nocpf')
    e('s_mov_b64 exec, -1')
e('v_lshrrev_b32 v1, 6, v0')
e(f's_lshr_b32 s{sB}, s2, 4')
e(f'v_readfirstlane_b32 s{sW}, v1')
e(f's_sub_u32 s{sT0}, s{sB}, 9')
e(f's_cselect_b32 s3, s{sB}, s{sT0}')
e(f's_lshl_b32 s{sWQ}, s3, 19')
e(f's_lshl_b32 s{sXO}, s3, 7')
e(f's_mul_i32 s{sT0}, s{sB}, 73728')
e(f's_lshl_b32 s{sM0W}, s{sW}, 11')
e('v_bfe_u32 v2, v0, 3, 3')
e('v_and_b32 v3, 7, v0')
e('v_lshrrev_b32 v6, 1, v2')
e('v_xor_b32 v7, v3, v6')
e('v_lshlrev_b32 v7, 4, v7')
e('v_mul_u32_u24 v8, 1152, v2')
e('v_mul_u32_u24 v9, 18432, v1')
e('v_add_u32 v9, v9, v8')
e(f'v_add_u32 v{vXa}, v9, v7')
e('v_xor_b32 v7, 64, v7')
e(f'v_add_u32 v{vXb}, v9, v7')
e(f'v_add_u32 v{vXb}, 8192, v{vXb}')
e(f's_and_b32 s{sHKV}, s2, 7')
e(f's_lshl_b32 s{sHKV}, s{sHKV}, 1')
e(f's_bfe_u32 s{sT2}, s2, 0x10003')
e(f's_add_u32 s{sHKV}, s{sHKV}, s{sT2}')
e(f's_lshl_b32 s{sM0Q}, s{sW}, 12')
e(f's_lshl_b32 s{sT2}, s{sHKV}, 9')
e('v_bfe_u32 v4, v0, 4, 2')
e('v_and_b32 v5, 15, v0')
e('v_lshlrev_b32 v7, 2, v4')
e('v_xor_b32 v7, v5, v7')
e('v_lshlrev_b32 v7, 4, v7')
e('v_lshl_add_u32 v9, v4, 13, v7')
e('v_lshrrev_b32 v10, 1, v1')
e('v_lshl_add_u32 v9, v10, 17, v9')
e('v_and_b32 v10, 1, v1')
e(f'v_lshl_add_u32 v{vWQV}, v10, 8, v9')
for p in range(1, 4): e(f'v_add_u32 v{vWQV+p}, {p*31744}, v{vWQV}')
def pmark(i):
    if opts['pp0']:
        e(f'{TM} s[98:99]'); e('s_waitcnt lgkmcnt(0)'); e(f'v_writelane_b32 v{vPB}, s98, {i}')
e('s_waitcnt lgkmcnt(0)')
pmark(54)
if opts['wqfirst']:
    mk_srd(SWQ, 10, f's{sT2}', 4718592 - 15 * 512)
    put(wq_stage(0)); put(wq_stage(1))
    mk_srd(SX, 4, f's{sT0}', 73728)
    put(xt(0)); put(xt(1))
else:
    mk_srd(SX, 4, f's{sT0}', 73728)
    put(xt(0))
    mk_srd(SWQ, 10, f's{sT2}', 4718592 - 15 * 512)
    put(wq_stage(0))
    put(xt(1)); put(wq_stage(1))
pmark(55)
e('v_lshl_add_u32 v9, v4, 8, v7')
e(f'v_lshl_add_u32 v{vVc}, v1, 11, v9')
e('v_xor_b32 v7, v5, v4')
e('v_lshlrev_b32 v7, 4, v7')
e('v_lshl_add_u32 v9, v4, 8, v7')
e('v_lshlrev_b32 v10, 7, v10')
e('v_xor_b32 v9, v9, v10')
e(f'v_lshl_add_u32 v{vKa}, v1, 11, v9')
e(f'v_xor_b32 v{vKb}, 64, v{vKa}')
for t in range(16): e(f's_mov_b32 s{sTILE+t}, {t*8192}')
e(f's_lshl_b32 s{sM0T}, s{sW}, 13')
e(f's_lshr_b32 s{sROT}, s{sB}, 1')
e(f's_lshl_b32 s{sWO}, s{sROT}, 7')
e(f's_lshl_b32 s{sJOB}, s{sB}, 4')
e(f's_add_u32 s{sJOB}, s{sJOB}, s{sHKV}')
e(f's_lshl_b32 s3, s{sJOB}, 17')
mk_srd(SK, 6, 's3', 131072)
mk_srd(SV, 8, 's3', 131072)
mk_srd(SDBG, 16, None, 256)
e('s_cmp_lg_u32 s2, 0')
e('s_cbranch_scc1 L_noepoch')
e('v_lshlrev_b32 v9, 8, v0')
e('v_mov_b32 v10, s100'); e('v_mov_b32 v11, s101')
e(f'buffer_store_dwordx2 v[10:11], v9, {sr(SDBG)}, 0 offen sc1')
e.vm['A'].pop(); e.vm['B'].pop()
e.label('L_noepoch')

if opts['krot']:
    e(f's_mul_i32 s3, s{sJOB}, {opts["krot"]}')
    e(f's_lshr_b32 s{sT0}, s{sJOB}, 4')
    e(f's_add_u32 s3, s3, s{sT0}')
    e('s_lshl_b32 s3, s3, 13')
    for t in range(16):
        e(f's_add_u32 s{sTILE+t}, s3, {t*8192}')
        e(f's_and_b32 s{sTILE+t}, s{sTILE+t}, 0x1e000')
e(f's_mul_i32 s3, s{sHKV}, 294912')
mk_srd(SWO, 12, 's3', 294912)
e(f's_mul_i32 s3, s{sJOB}, 73728')
mk_srd(SWS, 18, 's3', 73728)
FB = (128 << opts['fls']) if opts['one_flag'] else 36 * FG
e(f's_mul_i32 s3, s{sB}, {FB}')
e(f's_add_u32 s3, s3, {FL_OFF}')
mk_srd(SFL, 18, 's3', FB)
e(f's_mul_i32 s3, s{sB}, {16*73728}')
mk_srd(SPR, 18, 's3', 16 * 73728)
e(f's_mul_i32 s3, s{sB}, 73728')
mk_srd(SOUT, 14, 's3', 73728)
sc = math.log2(math.e) / math.sqrt(128.0)
e(f's_mov_b32 s{sSC}, {f32(sc)}'); e(f's_mov_b32 s{sSC+1}, {f32(sc)}')
e('v_bfe_u32 v9, v0, 5, 1')
e('v_and_b32 v10, 31, v0')
e('v_bfe_u32 v11, v0, 2, 2')
e('v_and_b32 v7, 3, v0')
e('v_bfe_u32 v13, v0, 4, 1')
e('v_and_b32 v14, 1, v1')
e('v_lshl_add_u32 v14, v14, 5, v10')
e('v_bfe_u32 v15, v14, 1, 3')
e('v_xor_b32 v15, v15, v9')
e('v_lshlrev_b32 v15, 4, v15')
e(f'v_lshl_add_u32 v{vXRD}, v14, 7, v15')
for ks in range(1, 4): e(f'v_xor_b32 v{vXRD+ks}, {ks*32}, v{vXRD}')
for ks in range(4): e(f'v_add_u32 v{vXRD+4+ks}, 0x10000, v{vXRD+ks}')
e('v_lshrrev_b32 v14, 1, v1')
e('v_lshlrev_b32 v14, 12, v14')
e('v_lshl_add_u32 v14, v9, 11, v14')
e('v_lshl_add_u32 v14, v11, 8, v14')
e('v_lshl_add_u32 v14, v11, 6, v14')
e('v_lshl_add_u32 v14, v13, 5, v14')
e('v_and_b32 v15, 1, v7')
e('v_lshl_add_u32 v14, v15, 4, v14')
e('v_lshrrev_b32 v15, 1, v7')
e('v_lshl_add_u32 v14, v15, 3, v14')
e(f'v_add_u32 v{vWQR}, 0x10000, v14')
for u in range(1, 4): e(f'v_xor_b32 v{vWQR+u}, {u*64}, v{vWQR}')
for u in range(4): e(f'v_add_u32 v{vWQR+4+u}, 0x10000, v{vWQR+u}')
e('v_xor_b32 v14, v9, v5')
e('v_lshlrev_b32 v14, 4, v14')
e(f'v_lshl_add_u32 v{vKR}, v10, 8, v14')
for s in range(1, 8): e(f'v_xor_b32 v{vKR+s}, {s*32}, v{vKR}')
for w_ in (1, 2):
    for s in range(8): e(f'v_add_u32 v{vKR+8*w_+s}, {w_*0x10000}, v{vKR+s}')
e('v_lshlrev_b32 v14, 10, v9')
e('v_lshl_add_u32 v14, v11, 8, v14')
e('v_lshl_add_u32 v14, v11, 6, v14')
e('v_lshl_add_u32 v14, v13, 5, v14')
e(f'v_lshl_add_u32 v{vVR}, v7, 3, v14')
for t in range(1, 4): e(f'v_xor_b32 v{vVR+t}, {t*64}, v{vVR}')
for w_ in (1, 2):
    for t in range(4): e(f'v_add_u32 v{vVR+4*w_+t}, {w_*0x10000}, v{vVR+t}')
e('v_lshrrev_b32 v4, 1, v1')
e('v_lshlrev_b32 v14, 9, v9')
e('v_lshl_add_u32 v14, v11, 7, v14')
e('v_lshrrev_b32 v15, 1, v11')
e('v_xor_b32 v15, v15, v4')
e('v_lshl_add_u32 v14, v15, 6, v14')
e('v_and_b32 v15, 1, v7')
e('v_lshl_add_u32 v14, v15, 5, v14')
e('v_lshl_add_u32 v14, v13, 4, v14')
e('v_lshrrev_b32 v15, 1, v7')
e('v_lshl_add_u32 v14, v15, 3, v14')
e(f'v_lshl_add_u32 v{vWOR}, v4, 14, v14')
e(f'v_xor_b32 v{vWOR+1}, 0x4000, v{vWOR}')
for w_ in (1, 2):
    for o in range(2): e(f'v_add_u32 v{vWOR+2*w_+o}, {w_*0x10000}, v{vWOR+o}')
e('v_and_b32 v14, 63, v0')
e(f'v_lshlrev_b32 v{vL16}, 4, v14')
e(f'v_lshl_add_u32 v{vXW}, v1, 13, v{vL16}')
e(f'v_add_u32 v{vXW}, {XG*32768}, v{vXW}')
e(f'v_xor_b32 v{vXR}, 0x4000, v{vXW}')
e(f'v_lshl_add_u32 v{vSTV}, v1, 11, v{vL16}')
if opts['full']:
    e('v_lshrrev_b32 v14, 4, v14')
    e('v_lshlrev_b32 v14, 20, v14')
    e('v_lshl_add_u32 v14, v5, 3, v14')
else: e(f'v_lshlrev_b32 v14, 20, v14')
e(f'v_lshl_add_u32 v14, v1, {opts["fls"] if opts["one_flag"] else FSH+4}, v14')
e(f's_lshl_b32 s3, s{sHKV}, {opts["fls"]+2 if opts["one_flag"] else FSH}')
e(f'v_add_u32 v{vFLV}, s3, v14')
e('v_and_b32 v14, 1, v6')
e('v_lshlrev_b32 v14, 2, v14')
e('v_xor_b32 v14, v14, v3')
e('v_lshl_add_u32 v14, v14, 4, v8')
e('v_mul_u32_u24 v15, 73728, v1')
e(f'v_add_u32 v{vWOV}, v14, v15')
for p in range(1, 4): e(f'v_add_u32 v{vWOV+p}, {p*8192}, v{vWOV}')
e('v_bfe_u32 v14, v0, 2, 1')
e('v_cmp_eq_u32 vcc, v14, v13')
e('v_mov_b32 v14, 0x3f803f80')
e('v_cndmask_b32 v14, 0, v14, vcc')
for i in range(4): e(f'v_accvgpr_write_b32 a{aONE+i}, v14')
e('v_and_b32 v14, 1, v0')
e('v_lshlrev_b32 v14, 4, v14')
e('v_lshlrev_b32 v14, v14, 0x3f80'.replace('v14, 0x3f80', 'v14, v15') if False else 'v_mov_b32 v15, 0x3f80')
e('v_lshlrev_b32 v14, v14, v15')
e('v_bfe_u32 v15, v0, 2, 1')
e('v_xor_b32 v15, v15, v9')
e('v_or_b32 v15, v15, v13')
e('v_lshlrev_b32 v15, 3, v15')
e('v_bfe_u32 v2, v0, 3, 1')
e('v_bfe_u32 v3, v0, 1, 1')
e('v_lshl_add_u32 v2, v2, 1, v3')
e('v_add_u32 v2, v2, v15')
for d in range(4):
    e(f'v_cmp_eq_u32 vcc, {d}, v2')
    e(f'v_cndmask_b32 v3, 0, v14, vcc')
    e(f'v_accvgpr_write_b32 a{aPERM+d}, v3')

def qcvt(u):
    it = []
    for p in range(8):
        r = vO + 16 * u + 2 * p
        if opts['pk']: it.append(f'v_pk_mul_f32 {vr(r, 2)}, {vr(r, 2)}, s[{sSC}:{sSC+1}]')
        else: it += [f'v_mul_f32 v{r}, s{sSC}, v{r}', f'v_mul_f32 v{r+1}, s{sSC}, v{r+1}']
    for p in range(8):
        r = vO + 16 * u + 2 * p
        it.append(f'v_cvt_pk_bf16_f32 v{vQ+8*u+p}, v{r}, v{r+1}')
    return it
def X(*js): return sum((xt(j) for j in js), [])
def KVs(*ns): return sum((kv(n) for n in ns), [])
def RX(*js): return sum((rd_x(j) for j in js), [])
if opts['rtrace']: e(f'v_mov_b32 v{vPA}, 0')
pmark(59)
put(X(2, 3, 4)); bar({'X0', 'X1', 'WQ0'}, False)
put(RX(0, 1) + rd_wq(0))
put(X(5, 6, 7)); bar({'WQ1', 'X2'})
e.weave(mf_q(0), [(rd_wq(1) + RX(2), -1, 6)])

def group_body(g):
    e.roles = [g]; set_group(g)
    WOG[0] = 4 if g == 'A' else 3
    B1 = opts['b1']
    if g == 'A':
        put(X(8) + KVs(0, 1)); bar({'X3', 'X4', 'X5'})
        e.weave(mf_q(1), [(RX(3, 4, 5), -1, 4)])
        put(KVs(2, 3, 4)); bar({'X6', 'X7', 'X8'})
        put(RX(6, 7, 8))
        put(KVs(*range(5, min(B1, 11)))); bar(set())
        put(KVs(*range(11, B1)))
        for n in range(14, 14 + opts['nreg']): put(kv_reg(n))
        if opts['nreg']: e(f'v_add_u32 v215, 0x10000, v{vSTV}')
        put(wq_stage(2) + wq_stage(3) + wq_stage(4))
        qplan = {}
        nxt = B1
        cnt = [int(x) for x in opts['apl'].split(',')]
        wot = [int(x) for x in opts['awo'].split(',')]
        rdt = tuple(int(x) for x in opts['ard'].split(','))
    else:
        put(X(8) + wq_stage(2)); bar({'X3', 'X4', 'X5'})
        e.weave(mf_q(1), [(RX(3, 4, 5), -1, 4)])
        put(wq_stage(3) + wq_stage(4)); bar({'X6', 'X7', 'X8'})
        put(RX(6, 7, 8))
        bar(set())
        LA = opts['la']
        qplan = {14: [0, 1], 15: [2, 3], 16: [4, 5], 17: list(range(6, LA - 1))}
        nxt = LA - 1
        cnt = [1] + [2] * 15
        wot = [int(x) for x in opts['bwo'].split(',')]
        rdt = tuple(int(x) for x in opts['brd'].split(','))
    bar({'WQ2'})
    put(rd_wq(2))
    bar({'WQ3'})
    for s in range(2, 16):
        d = []
        if s + 3 < 18: d += wq_stage(s + 3)
        d += KVs(*qplan.get(s, []))
        ek = rd_k(s - 14) if (opts['kearly'] and g == 'A' and s >= 14) else []
        e.weave(mf_q(s), [(rd_wq(s + 1) + ek, -1, opts['qrd'])] + ([(d, 0, 8)] if d else []))
        tags = {f'WQ{s+2}'}
        if s == 13 and g == 'A': tags |= {'K0', 'K1', 'V0'}
        bar(tags)
    r17 = rd_wq(17)
    r17 = sum((r17[2*u:2*u+2] + r17[8+2*u:8+2*u+2] for u in range(4)), [])
    mq = []
    for st, u in ((16, 0), (16, 1), (17, 0), (17, 1), (16, 2), (17, 2), (16, 3), (17, 3)):
        mq += mf_q(st, [(0, u), (1, u)])
    d = KVs(*(qplan.get(16, []) + qplan.get(17, [])))
    init0 = sm_max(0) + [f'v_mov_b32 v{vMX+1}, v{vMX}', f'v_permlane32_swap_b32 v{vMX}, v{vMX+1}', f'v_max_f32 v{vMX}, v{vMX}, v{vMX+1}'] + \
            [f'v_sub_f32 v{vS+r}, v{vS+r}, v{vMX}' for r in range(16)] + sm_exp(0) + [f'v_sub_f32 v{vNM+r}, 0, v{vMX}' for r in range(16)]
    d0 = []
    for _ in range(cnt[0]): d0 += kv(nxt); nxt += 1
    if g == 'A':
        if opts['kearly']:
            e.weave(mq + mf_qk(0), [(r17, -1, 6), (qcvt(0), 6, 10), (qcvt(1), 10, 14), (qcvt(2), 14, 18), (qcvt(3), 18, 22), (rd_v(0), 21, 24)])
        else:
            e.weave(mq + mf_qk(0), [(r17, -1, 4), (rd_k(0) + rd_k(1), 4, 8), (qcvt(0), 7, 11), (qcvt(1), 11, 14), (qcvt(2), 14, 18), (qcvt(3), 18, 22),
                                    (rd_v(0), 20, 24)])
        mark(); mark(); mark()
        e.weave(mf_qk(1), [(init0, 1, 8)] + ([(d0, -1, 2)] if d0 else []))
    else:
        e.weave(mq, [(r17, -1, 4), (d, 2, 8), (qcvt(0), 7, 11), (qcvt(1), 11, 14), (qcvt(2), 14, 16)])
        put(qcvt(3))
        mark()
        bar({'K0', 'K1', 'V0'})
        put(rd_k(0))
        e.weave(mf_qk(0), [(rd_k(1), 0, 3), (rd_v(0), 3, 8), (d0, 0, 4)])
        mark()
        e.weave(mf_qk(1), [(init0, 1, 8)])
    bar({'K2', 'V1'})
    WORD = {rdt[0]: rd_wo(0)[:16], rdt[0]+1: rd_wo(0)[16:], rdt[1]: rd_wo(1)[:16], rdt[1]+1: rd_wo(1)[16:]}
    assert wot[1] < rdt[0] and wot[3] < rdt[1] and wot[4] >= rdt[0] + 2 and wot[6] >= rdt[1] + 2 and wot[8] >= 12 and wot[0] >= 1
    if g == 'A': assert wot[2] >= rdt[0] + 2 and wot[4] >= 7
    cnt += [2] * 16
    for t in range(1, 16):
        d = []
        for _ in range(cnt[t]):
            if nxt < 32:
                assert nxt < 12 or (nxt - 12 + 1) // 2 <= t, (g, nxt, t)
                assert min((nxt - 2 + 1) // 2, 14) > t, (g, nxt, t)
                d += kv_wr(nxt) if (g == 'A' and 14 <= nxt < 14 + opts['nreg']) else kv(nxt)
                nxt += 1
        dw = []
        for hi, tt_ in enumerate(wot):
            if tt_ == t: dw += wo_half(hi // 2, hi % 2)
        d = dw + d if (opts['wof'] and g == 'A' and t < 8) else d + dw
        if t == opts['tlb']:
            d += [f'v_lshlrev_b32 v1, {opts["tsh"]}, v0',
                  (f'buffer_load_dword v218, v1, {sr(SFL)}, 0 offen', 'TL'),
                  (f'buffer_load_dword v219, v1, {sr(SPR)}, 0 offen', 'TL'),
                  (f'buffer_load_dword v220, v1, {sr(SOUT)}, 0 offen', 'TL')]
        if t == 7:
            d += ['v_mov_b32 v1, 0', (f'buffer_load_dwordx2 {vr(vE, 2)}, v1, {sr(SDBG)}, 0 offen sc1', 'EP')]
        if False: pass
        elif t < 15:
            sm = sm_max(t) + sm_check(t) + sm_exp(t)
            if t == 1: sm = [f'v_add_f32 v{vS+16+r}, v{vS+16+r}, v{vNM}' for r in range(16)] + sm
            kw = lambda: e.need_regs(ar(aK + 28, 4))
            kw.cost = 4
            X_ = opts['x_']
            if X_ & 1: sm = [i for i in sm if callable(i) or not i.startswith('v_exp')]
            if X_ & 2: sm = [i for i in sm if callable(i) or not i.startswith('v_cvt')]
            if X_ & 4: sm = [i for i in sm if not callable(i) and not i.startswith('v_max')]
            rk, rv = rd_k(t + 1), rd_v(t)
            if X_ & 8: rk = []
            if X_ & 16: rv = []
            streams = [(rk, 0, 8), (rv + WORD.get(t, []), 1, 16), (sm, 1, 18), (d, 0, 17), ([kw], 9, 10)]
            if t == 14: streams.append((rd_v(15), 10, 17))
            e.weave2(mf_pv(t - 1) + mf_qk(t + 1), streams, opts['slack'])
        else:
            sm = sm_max(t) + sm_check(t) + sm_exp(t)
            e.weave2(mf_pv(14), [(sm, 1, 10), (d, 0, 10)])
        if t < 15:
            tags = {f'K{t+2}', f'V{t+1}'}
            if t == rdt[0] - 1: tags.add('WO0')
            if t == rdt[1] - 1: tags.add('WO1')
            if t == 14: tags.add('EP')
            if t == 13: tags.add('V15')
            bar(tags)
    assert nxt == 32

e(f's_and_b32 s3, s{sB}, {opts["gmask"]}')
e('s_cbranch_scc0 L_grpA')
S0 = e.S.clone(); nb0 = nbar[0]
group_body('B')
e('s_branch L_common')
SB = e.S; nb1 = nbar[0]; nbar[0] = nb0
e.label('L_grpA')
e.S = S0
group_body('A')
assert nbar[0] == nb1
e.label('L_common')
e.S = Emit.merge_states(e.S, SB)
e.roles = ['A', 'B']
e(f'v_or_b32 v1, v{vE}, v{vE+1}')
e('v_cmp_eq_u32 vcc, 0, v1')
e('s_cbranch_vccnz L_epoch_spin')
e.label('L_epoch_ok')
P15 = vP + 8
seq = [mf_l(15, 0), mf_l(15, 1)]
for tt in range(4):
    for a in range(2):
        seq.append(f'{MF} {vr(vO+16*tt, 16)}, {ar(aVB(15) + (a*4+tt)*4, 4)}, {vr(P15+4*a, 4)}, {vr(vO+16*tt, 16)}')
def norm(tt):
    it = []
    for a in range(2):
        for p in range(4 * a, 4 * a + 4):
            r = vO + 16 * tt + 2 * p
            if opts['pk']: it.append(f'v_pk_mul_f32 {vr(r, 2)}, {vr(r, 2)}, {vr(vINV, 2)} op_sel_hi:[1,0]')
            else: it += [f'v_mul_f32 v{r}, v{vINV}, v{r}', f'v_mul_f32 v{r+1}, v{vINV}, v{r+1}']
        for p in range(4 * a, 4 * a + 4):
            r = vO + 16 * tt + 2 * p
            it.append(f'v_cvt_pk_bf16_f32 v{vQ+8*tt+p}, v{r}, v{r+1}')
        f = 2 * tt + a
        it.append(f'ds_write_b128 v{vXW}, {vr(vQ+4*f, 4)} offset:{f*1024}')
    return it
mo0 = mf_o(0); mo1 = mf_o(1)
own = sum(([mo0[f], mo1[f]] for f in range(8)), [])
e.weave(seq + own[:12], [([f'v_rcp_f32 v{vINV}, v{vL}'], 4, 5),
                         (norm(0), 5, 9), (norm(1), 9, 13), (norm(2), 13, 17), (norm(3), 17, 21)])
bar({'WO2'})
sU, sCNT, sTODO, sRDY, sI, sOFF, sUA, sLB, sOO, sOM, sMB = 20, 21, 22, 23, 24, 25, 26, 27, 28, 29, 32
vMV, vMR, vMO = 212, 213, 214
red_setup = [
    f's_lshl_b32 s{sU}, s{sW}, 4', f's_add_u32 s{sU}, s{sU}, s{sHKV}',
    f's_lshl_b32 s{sUA}, s{sU}, 10',
    f's_lshr_b32 s{sOO}, s{sU}, 3', f's_add_u32 s{sOO}, s{sOO}, s{sROT}',
    lambda: (e(f's_sub_u32 s{sI}, s{sOO}, 9'), e(f's_cselect_b32 s{sOO}, s{sOO}, s{sI}')),
    f's_lshl_b32 s{sOO}, s{sOO}, 7',
    f's_bfe_u32 s{sI}, s{sU}, 0x10001', f's_mul_i32 s{sI}, s{sI}, 36864', f's_add_u32 s{sOO}, s{sOO}, s{sI}',
    f's_bfe_u32 s{sI}, s{sU}, 0x10002', f's_lshl_b32 s{sI}, s{sI}, 6', f's_add_u32 s{sOO}, s{sOO}, s{sI}',
    f's_and_b32 s{sI}, s{sU}, 1', f's_lshl_b32 s{sI}, s{sI}, 4', f's_add_u32 s{sOO}, s{sOO}, s{sI}',
    lambda: (e(f's_sub_u32 s{sOM}, s{sROT}, 1'), e(f's_cselect_b32 s{sOM}, 8, s{sOM}')),
    f's_lshl_b32 s{sOM}, s{sOM}, 7',
    f's_and_b32 s{sI}, s{sW}, 1', f's_mul_i32 s{sI}, s{sI}, 36864', f's_add_u32 s{sOM}, s{sOM}, s{sI}',
    f's_and_b32 s{sI}, s{sHKV}, 3', f's_mul_i32 s{sI}, s{sI}, 9216', f's_add_u32 s{sOM}, s{sOM}, s{sI}',
    f's_lshr_b32 s{sI}, s{sW}, 1', f's_lshl_b32 s{sI}, s{sI}, 6', f's_add_u32 s{sOM}, s{sOM}, s{sI}',
    f's_bfe_u32 s{sI}, s{sHKV}, 0x10002', f's_lshl_b32 s{sI}, s{sI}, 5', f's_add_u32 s{sOM}, s{sOM}, s{sI}',
    f's_lshr_b32 s{sI}, s{sHKV}, 3', f's_lshl_b32 s{sI}, s{sI}, 4', f's_add_u32 s{sOM}, s{sOM}, s{sI}',
    f's_lshl_b32 s{sMB}, s{sU}, 7', f's_add_u32 s{sMB}, s{sMB}, 65536',
    f's_mov_b32 s{sTODO}, -1',
] + ([
    f's_bfe_u32 s{sI}, s{sU}, 0x20001', f's_lshl_b32 s{sI}, s{sI}, {opts["fls"]}',
] + ([lambda: (e(f's_cmp_lt_u32 s{sU}, {8*(opts["two"]+1)}'), e(f's_cselect_b32 s{sOFF}, s{sFL}, 0')), f's_add_u32 s{sI}, s{sI}, s{sOFF}'] if opts['two'] else []) + [
    f's_lshl_b32 s{sOFF}, s{sW}, {opts["fls"]}', f's_sub_u32 s{sOFF}, s{sOFF}, s{sI}',
    'v_and_b32 v1, 15, v0', f'v_lshlrev_b32 v1, {opts["fls"]+2}, v1', f'v_add_u32 v1, s{sI}, v1',
    'v_bfe_u32 v2, v0, 4, 1', f'v_mul_lo_u32 v2, s{sOFF}, v2', 'v_add_u32 v1, v1, v2',
] if opts['one_flag'] else [
    f's_lshr_b32 s{sI}, s{sU}, 1', f's_lshl_b32 s{sI}, s{sI}, 7',
    f's_lshl_b32 s{sOFF}, s{sW}, 7', f's_add_u32 s{sOFF}, s{sOFF}, 4096', f's_sub_u32 s{sOFF}, s{sOFF}, s{sI}',
    'v_and_b32 v1, 15, v0', 'v_lshlrev_b32 v1, 3, v1', f'v_add_u32 v1, s{sI}, v1',
    'v_bfe_u32 v2, v0, 4, 1', f'v_mul_u32_u24 v2, s{sOFF}, v2', 'v_add_u32 v1, v1, v2',
]) + [
    f's_mul_i32 s{sLB}, s{sW}, 18432', f's_add_u32 s{sLB}, s{sLB}, {RG*32768}',
    f'v_add_u32 v3, s{sLB}, v{vL16}',
    'v_and_b32 v2, 31, v0', 'v_lshlrev_b32 v7, 20, v2', 'v_mul_u32_u24 v2, 1152, v2', 'v_bfe_u32 v6, v0, 5, 1', 'v_lshl_add_u32 v2, v6, 5, v2',
    'v_mul_u32_u24 v8, 2304, v6', f'v_add_u32 v{vMO}, v7, v8',
    'v_bfe_u32 v7, v0, 3, 3', 'v_mul_u32_u24 v7, 73728, v7', 'v_and_b32 v8, 7, v0', f'v_lshl_add_u32 v{vMV}, v8, 4, v7',
    'v_lshlrev_b32 v7, 10, v6', 'v_bfe_u32 v8, v0, 2, 2', 'v_lshl_add_u32 v7, v8, 7, v7',
    'v_and_b32 v8, 1, v0', 'v_lshl_add_u32 v7, v8, 5, v7', 'v_bfe_u32 v8, v0, 4, 1', 'v_lshl_add_u32 v7, v8, 4, v7',
    'v_bfe_u32 v8, v0, 1, 1', 'v_lshl_add_u32 v7, v8, 3, v7', f'v_add_u32 v{vMR}, s{sLB}, v7',
    f's_mov_b32 s{sCNT}, {opts["spin"]}',
] + [f'v_mov_b32 v{vNM+i}, 0x3f803f80' for i in range(4)]
OPLAN = {}
for hi, iv in enumerate(int(x) for x in opts['oplan'].split(',')): OPLAN.setdefault(iv, []).append((6 + hi // 2, hi % 2))
LAG = opts['lag']
pub = 0
r2 = rd_wo(2)
e.weave(own[12:] + mo0[8:] + mo1[8:],
        [([f'ds_read_b128 {ar(aOO+4*f, 4)}, v{vXR} offset:{f*1024}' for f in range(8)], -1, 1),
         (wo_cb(5), 0, 12), (r2[:16], 4, 12), (r2[16:], 12, 18), (ep_o(0), 14, 20)])
mark()
bar({'WO3'})
nrs = (len(red_setup) + 2) // 3
for j in range(2, 9):
    streams = []
    if j in OPLAN: streams.append((sum((wo_half(*h) for h in OPLAN[j]), []), -1, 10 if len(OPLAN[j]) > 1 else 6))
    if j < 8: streams.append((rd_wo(j + 1), 0, 14))
    ep = ep_o(j - 1)
    if j - 1 - LAG >= 0: ep += publish(pub); pub += 1
    streams.append((ep, opts['epg'] if j in OPLAN else 3, 16 if j in OPLAN else 12))
    if j in (5, 6, 7): streams.append((red_setup[(j-5)*nrs:(j-4)*nrs], 0, 16))
    if j == 8 and opts['r0'] == 1: streams.append(([(f'buffer_load_dwordx2 v[4:5], v1, {sr(SFL)}, 0 offen sc1', 'POLL')], opts['pg'], opts['pg'] + 1))
    e.weave(mf_o(j), streams)
    if j < 7: bar({f'WO{j+2}'})
put(ep_o(8))
mark()
def masked_round():
    e(f's_mov_b32 s{sOFF}, s{sUA}')
    for h in range(16):
        if h % 4 == 0: e(f's_add_u32 m0, s{sLB}, {h*1024}')
        e(f's_bitcmp1_b32 s{sRDY}, {h}')
        e('s_cselect_b64 exec, -1, 0')
        off = f' offset:{(h%4)*1024}' if h % 4 else ''
        if opts['thr'] and h >= opts['thr']: e(f's_waitcnt vmcnt({opts["thr"]-1})')
        e(f'buffer_load_dwordx4 v{vL16}, {sr(SPR)}, s{sOFF} offen{off} {opts["ld"]} lds', 'RD')
        if h < 15: e(f's_add_u32 s{sOFF}, s{sOFF}, {73728 - 1024 if h % 4 != 3 else 73728 + 3072}')
    e('s_mov_b64 exec, -1')
if opts['wgf']:
    e(f's_lshl_b32 s{sTODO}, 1, s{sHKV}')
    e(f's_andn2_b32 s{sTODO}, 0xffff, s{sTODO}')
    e('v_and_b32 v1, 15, v0')
    e(f'v_lshlrev_b32 v1, {opts["fls"]+2}, v1')
    if opts['mp']:
        NP = opts['mp']
        pl = lambda k: f'buffer_load_dwordx2 v[{4+2*k}:{5+2*k}], v1, {sr(SFL)}, 0 offen sc1'
        e(f's_cmp_lg_u32 s{sW}, 0')
        e('s_cbranch_scc1 L_w123')
        e(pl(0))
        e('s_waitcnt vmcnt(0)')
        e('s_barrier')
        mark()
        e(f'v_cmp_ne_u64 vcc, v[4:5], {vr(vE, 2)}')
        e('s_nop 0')
        e(f's_and_b32 s{sRDY}, vcc_lo, s{sTODO}')
        e('s_cbranch_scc0 L_rel')
        for k in range(NP - 1):
            e(pl(k))
            e(f's_nop 15'); e('s_nop 15')
        e.label('L_poll')
        e.S = State()
        for k in range(NP):
            e(pl((k + NP - 1) % NP))
            e(f's_waitcnt vmcnt({NP-1})')
            e(f'v_cmp_ne_u64 vcc, v[{4+2*k}:{5+2*k}], {vr(vE, 2)}')
            e('s_nop 0')
            e(f's_and_b32 s{sRDY}, vcc_lo, s{sTODO}')
            e('s_cbranch_scc0 L_rel')
        e(f's_sub_u32 s{sCNT}, s{sCNT}, 1')
        e('s_cbranch_scc0 L_poll')
        e('s_branch L_rel')
        e.label('L_w123')
        e('s_waitcnt vmcnt(0)')
        e('s_barrier')
        e(f's_cmp_lg_u32 s{sW}, 1')
        e('s_cbranch_scc1 L_nopub')
        e(f'v_subrev_u32 v{vFLV}, {1 << opts["fls"]}, v{vFLV}')
        e(f'buffer_store_dwordx2 {vr(vE, 2)}, v{vFLV}, {sr(SFL)}, 0 offen sc1')
        e.label('L_nopub')
        nbar[0] -= 1; mark()
    else:
        e(f's_cmp_lg_u32 s{sW}, 0')
        e('s_cbranch_scc1 L_w123')
        e(f'buffer_load_dwordx2 v[4:5], v1, {sr(SFL)}, 0 offen sc1')
        e('s_waitcnt vmcnt(0)')
        e('s_barrier')
        e(f'buffer_store_dwordx2 {vr(vE, 2)}, v{vFLV}, {sr(SFL)}, 0 offen sc1')
        mark()
        e('s_branch L_chk')
        e.label('L_poll')
        e.S = State()
        e(f'buffer_load_dwordx2 v[4:5], v1, {sr(SFL)}, 0 offen sc1')
        e(f's_sub_u32 s{sCNT}, s{sCNT}, 1')
        e('s_cbranch_scc1 L_rel')
        e('s_waitcnt vmcnt(0)')
        e.label('L_chk')
        e(f'v_cmp_ne_u64 vcc, v[4:5], {vr(vE, 2)}')
        e('s_nop 0')
        e(f's_and_b32 s{sRDY}, vcc_lo, s{sTODO}')
        e('s_cbranch_scc1 L_poll')
        e('s_branch L_rel')
        e.label('L_w123')
        e('s_waitcnt vmcnt(0)')
        e('s_barrier')
        nbar[0] -= 1; mark()
    e.label('L_rel')
    e('s_barrier')
    e(f's_add_u32 m0, s{sLB}, 16384')
    e(f's_add_u32 s{sOFF}, s{sMB}, {8*73728 - 1024}')
    e(f'buffer_load_dwordx4 v{vMV}, {sr(SPR)}, s{sMB} offen {opts["ld"]} lds')
    e(f'buffer_load_dwordx4 v{vMV}, {sr(SPR)}, s{sOFF} offen offset:1024 {opts["ld"]} lds')
    for h in range(16):
        if opts['wgf'] == 2:
            e(f'buffer_load_dwordx4 {ar(4*h, 4)}, v{vL16}, {sr(SPR)}, s{sUA} offen {opts["ld"]}')
            if h < 15: e(f's_add_u32 s{sUA}, s{sUA}, 73728')
            continue
        if h % 4 == 0: e(f's_add_u32 m0, s{sLB}, {h*1024}')
        off = f' offset:{(h%4)*1024}' if h % 4 else ''
        e(f'buffer_load_dwordx4 v{vL16}, {sr(SPR)}, s{sUA} offen{off} {opts["ld"]} lds')
        if h < 15: e(f's_add_u32 s{sUA}, s{sUA}, {73728 - 1024 if h % 4 != 3 else 73728 + 3072}')
else:
    if opts['r0'] == 2: e(f'buffer_load_dwordx2 v[4:5], v1, {sr(SFL)}, 0 offen sc1', 'POLL')
    if opts['r0'] == 1:
        e.wait_vm({'POLL'})
        e(f'v_cmp_eq_u64 vcc, v[4:5], {vr(vE, 2)}')
        e('s_nop 0')
        e(f's_and_b32 s{sRDY}, vcc_lo, 0xffff')
        e(f's_andn2_b32 s{sTODO}, s{sTODO}, s{sRDY}')
        masked_round()
    while pub < 9: put(publish(pub)); pub += 1
    mark()
    if opts['r0'] == 2:
        e.wait_vm({'POLL'})
        e('s_branch L_chk')
    e.label('L_poll')
    e.S = State()
    if opts['sleep']: e(f's_sleep {opts["sleep"]}')
    e(f'buffer_load_dwordx2 v[4:5], v1, {sr(SFL)}, 0 offen {opts["pp"]}')
    e(f's_sub_u32 s{sCNT}, s{sCNT}, 1')
    e('s_cbranch_scc1 L_go')
    e('s_waitcnt vmcnt(0)')
    e.label('L_chk')
    e(f'v_cmp_eq_u64 vcc, v[4:5], {vr(vE, 2)}')
    e('s_nop 0')
    if opts['rtrace']:
        e('s_memrealtime s[98:99]'); e('s_waitcnt lgkmcnt(0)')
        e(f's_sub_u32 s30, {opts["spin"]}, s{sCNT}')
        e('s_min_u32 s30, s30, 30')
        e(f's_and_b32 s31, vcc_lo, s{sTODO}')
        e('s_mov_b32 m0, s30')
        e(f'v_writelane_b32 v{vPA}, s98, m0')
        e('s_add_u32 m0, s30, 31')
        e(f'v_writelane_b32 v{vPA}, s31, m0')
    e(f's_and_b32 s{sRDY}, vcc_lo, s{sTODO}')
    if opts['allrdy'] == 1:
        e(f's_cmp_eq_u32 s{sRDY}, -1')
        e('s_cbranch_scc0 L_poll')
    if opts['allrdy'] == 2:
        e(f's_and_b32 s{sI}, s{sRDY}, 0xffff')
        e(f's_cmp_eq_u32 s{sI}, 0xffff')
        e(f's_cselect_b32 s{sI}, -1, 0xffff0000')
        e(f's_and_b32 s{sRDY}, s{sRDY}, s{sI}')
    e(f's_cmp_ge_u32 s{sRDY}, 0xffff0000')
    e('s_cbranch_scc0 L_nomini')
    e(f's_add_u32 m0, s{sLB}, 16384')
    e(f's_add_u32 s{sOFF}, s{sMB}, {8*73728 - 1024}')
    e(f'buffer_load_dwordx4 v{vMV}, {sr(SPR)}, s{sMB} offen {opts["ld"]} lds')
    e(f'buffer_load_dwordx4 v{vMV}, {sr(SPR)}, s{sOFF} offen offset:1024 {opts["ld"]} lds')
    e(f's_and_b32 s{sTODO}, s{sTODO}, 0xffff')
    e.label('L_nomini')
    e(f's_and_b32 s{sRDY}, s{sRDY}, 0xffff')
    e('s_cbranch_scc0 L_noround')
    e(f's_andn2_b32 s{sTODO}, s{sTODO}, s{sRDY}')
    masked_round()
    e.label('L_noround')
    e(f's_cmp_lg_u32 s{sTODO}, 0')
    e('s_cbranch_scc1 L_poll')
if opts['wgf'] == 2:
    mark()
    e('s_waitcnt vmcnt(16)')
    for m in range(2):
        for sec in range(2): e(f'ds_read_b64_tr_b16 {ar(64+4*m+2*sec, 2)}, v{vMR} offset:{16384 + m*64 + sec*512}')
    for m in range(2): e(f'{MF} {vr(vO+16*m, 16)}, {ar(64+4*m, 4)}, {vr(vNM, 4)}, 0')
    cv = []; stv = []
    for m in range(2):
        for c in range(2):
            d = vO + 32 + 8 * m + 4 * c
            cv += [f'v_cvt_pk_bf16_f32 v{d+p}, v{vO+16*m+8*c+2*p}, v{vO+16*m+8*c+2*p+1}' for p in range(4)]
            so = sOM if m == 0 else sI
            stv.append(f'buffer_store_dwordx4 {vr(d, 4)}, v{vMO}, {sr(SOUT)}, s{so} offen offset:{c*1152} {opts["out"]}')
    e(f's_add_u32 s{sI}, s{sOM}, 4608')
    for h in range(16):
        e(f's_waitcnt vmcnt({15-h})')
        e(f'{MF} {vr(vS, 16)}, {ar(aPERM, 4)}, {ar(4*h, 4)}, ' + ('0' if h == 0 else vr(vS, 16)))
        if 5 <= h < 13: put(cv[2*(h-5):2*(h-5)+2])
    mark()
    put(stv)
    for p in range(4): e(f'v_cvt_pk_bf16_f32 v{vP+p}, v{vS+2*p}, v{vS+2*p+1}')
    e(f'buffer_store_dwordx4 {vr(vP, 4)}, v2, {sr(SOUT)}, s{sOO} offen {opts["out"]}')
else:
    e.label('L_go')
    mark()
    e('s_waitcnt vmcnt(0)')
    mark()
    for m in range(2):
        for sec in range(2): e(f'ds_read_b64_tr_b16 {ar(64+4*m+2*sec, 2)}, v{vMR} offset:{16384 + m*64 + sec*512}')
    for h in range(16): e(f'ds_read_b128 {ar(4*h, 4)}, v3 offset:{h*1024}')
    for m in range(2): e(f'{MF} {vr(vO+16*m, 16)}, {ar(64+4*m, 4)}, {vr(vNM, 4)}, 0')
    mini = []
    for m in range(2):
        for c in range(2):
            d = vO + 32 + 8 * m + 4 * c
            mini += [f'v_cvt_pk_bf16_f32 v{d+p}, v{vO+16*m+8*c+2*p}, v{vO+16*m+8*c+2*p+1}' for p in range(4)]
            if m == 1 and c == 0: mini.append(f's_add_u32 s{sOM}, s{sOM}, 4608')
            mini.append(f'buffer_store_dwordx4 {vr(d, 4)}, v{vMO}, {sr(SOUT)}, s{sOM} offen offset:{c*1152} {opts["out"]}')
    e.weave([f'{MF} {vr(vS, 16)}, {ar(aPERM, 4)}, {ar(4*h, 4)}, ' + ('0' if h == 0 else vr(vS, 16)) for h in range(16)], [(mini, 4, 14)])
    for p in range(4): e(f'v_cvt_pk_bf16_f32 v{vP+p}, v{vS+2*p}, v{vS+2*p+1}')
    e(f'buffer_store_dwordx4 {vr(vP, 4)}, v2, {sr(SOUT)}, s{sOO} offen {opts["out"]}')
e.label('L_done')
if opts['spinx'] >= 0:
    e('s_waitcnt vmcnt(0)')
    mark()
    e('s_memrealtime s[96:97]')
    e('s_waitcnt lgkmcnt(0)')
    e('s_sub_u32 s98, s98, s100')
    e('s_lshl_b32 s98, s98, 2')
    e('s_add_u32 s98, s98, s96')
    e.label('L_spinx')
    e('s_memrealtime s[96:97]')
    e('s_waitcnt lgkmcnt(0)')
    e('s_sub_u32 s97, s96, s98')
    e('s_cmp_lt_i32 s97, 0')
    e('s_cbranch_scc1 L_spinx')
if PROF:
    mark()
    e('s_waitcnt vmcnt(0)')
    mark(); mark()
    e(f'v_writelane_b32 v{vPA}, s96, 63')
    mk_srd(SWS, 18, None, 0x10000000)
    e('s_lshl_b32 s62, s2, 11')
    e('s_add_u32 s62, s62, 0x9000000')
    e('v_and_b32 v2, 63, v0'); e('v_lshrrev_b32 v3, 6, v0'); e('v_lshlrev_b32 v2, 2, v2'); e('v_lshl_add_u32 v2, v3, 9, v2')
    e(f'buffer_store_dword v{vPA}, v2, {sr(SWS)}, s62 offen')
    e(f'buffer_store_dword v{vPB}, v2, {sr(SWS)}, s62 offen offset:256')
    print('bars', nbar[0], file=sys.stderr)
e.label('L_end')
e('s_endpgm')
e.label('L_epoch_spin')
e.S = State()
e(f's_mov_b32 s3, {opts["spin"]}')
e('v_mov_b32 v1, 0')
e.label('L_epoch_loop')
e(f'buffer_load_dwordx2 {vr(vE, 2)}, v1, {sr(SDBG)}, 0 offen sc1')
e('s_sub_u32 s3, s3, 1')
e('s_cbranch_scc1 L_epoch_ok')
e('s_waitcnt vmcnt(0)')
e(f'v_or_b32 v2, v{vE}, v{vE+1}')
e('v_cmp_eq_u32 vcc, 0, v2')
e('s_cbranch_vccnz L_epoch_loop')
e('s_branch L_epoch_ok')
for t in stubs:
    e.label(f'L_stub{t}')
    e.raw(f'    s_call_b64 s[{sRET}:{sRET+1}], L_rescale')
    e.raw(f'    s_branch L_back{t}')
e.label('L_rescale')
e.S = State()
e('s_nop 15'); e('s_nop 15')
e(f'v_mov_b32 v{vMX+1}, v{vMX}')
e(f'v_permlane32_swap_b32 v{vMX}, v{vMX+1}')
e(f'v_max3_f32 v{vMX}, v{vMX}, v{vMX+1}, 0')
e(f'v_ceil_f32 v{vMX}, v{vMX}')
e(f'v_exp_f32 v{vMX+1}, -v{vMX}')
for r in range(48): e(f'v_sub_f32 v{vS+r}, v{vS+r}, v{vMX}')
for r in range(68): e(f'v_mul_f32 v{vO+r}, v{vO+r}, v{vMX+1}')
for r in range(16):
    e(f'v_lshlrev_b32 v2, 16, v{vP+r}')
    e(f'v_and_b32 v3, 0xffff0000, v{vP+r}')
    e(f'v_mul_f32 v2, v2, v{vMX+1}')
    e(f'v_mul_f32 v3, v3, v{vMX+1}')
    e(f'v_cvt_pk_bf16_f32 v{vP+r}, v2, v3')
e('s_nop 3')
e(f's_setpc_b64 s[{sRET}:{sRET+1}]')
e.label('L_textend')

hdr = f"""; GQA block for gfx950: out = softmax((x wq) k^T / sqrt(128)) v wo, one fused kernel (generated by gen/gen11.py)
; per-launch nonce published through d_debug).  All tiles travel by LDS-DMA with source-side swizzles.
; @launch grid=(256,1,1) block=(256,1,1) lds=163840
.amdgcn_target "amdgcn-amd-amdhsa--gfx950"
.text
"""
kd = f""".section .rodata,"a"
.p2align 6
.amdhsa_kernel {K}
  .amdhsa_next_free_vgpr 512
  .amdhsa_next_free_sgpr 102
  .amdhsa_accum_offset 256
  .amdhsa_group_segment_fixed_size 0
  .amdhsa_kernarg_size 64
  .amdhsa_user_sgpr_count 2
  .amdhsa_user_sgpr_kernarg_segment_ptr 1
  .amdhsa_system_sgpr_workgroup_id_x 1
.end_amdhsa_kernel
"""
open(sys.argv[1], 'w').write(hdr + e.text() + kd)
print(e.count, 'nops', e.nops, file=sys.stderr)
```

```python
import sys, math, struct
from emit import Emit, State

NAME = "standalone__gqa_block_cached__near_ridge"
opts = dict(kv="nt", wq="", x="", wo="", st="sc1", ld="sc1", T=8.0, prof=0, cpf=1, lag=9,
            kvplan="a", spin=200000, spinx=-1, fsh=3, sleep=0, allrdy=0, gmask=1, b1=14, la=9, one=0, pm='', pk=0, nost=0, nowo=0, nopub=0, apl='0,1,1,1,1,2,2,2,2,2,2,2', bwo='1,3,5,7,12,12,13,13,15,15', awo='1,1,4,4,12,12,13,13,15,15', brd='7,10', ard='2,6', opl=1, pollpos=0, out='', krot=0, qrot=0, sent=0, w2=1, slack=0, x_=0, half=0, kv0=0, thr=0, nofast=0, roto=1, rtrace=0, r0=2, pg=13, one_flag=1, fls=7, two=0, pp='sc1', fp='sc1', full=0, tlb=-1, tsh=16, pp0=0, wqfirst=1, qrd=6, wgf=2, nreg=0, mp=1, wof=1, kearly=1, oplan='2,2,3,3,4,4', epg=8, xrot=7)
for a in sys.argv[2:]:
    k, v = a.split('=')
    opts[k] = type(opts[k])(v) if not isinstance(opts[k], str) else v.replace('+', ' ')
PROF = opts['prof']
TM = 's_memrealtime' if PROF == 2 else 's_memtime'
PM = set(int(x) for x in opts['pm'].split(',')) if opts['pm'] else None
def f32(x): return '0x%08x' % struct.unpack('<I', struct.pack('<f', x))[0]

e = Emit(); e.roles = ['A', 'B']
SX, SK, SV, SWQ, SWO, SWS = 20, 24, 28, 32, 36, 40
SFL, SPR, SOUT, SDBG = 80, 84, 88, 92
sW, sHKV, sB, sROT = 44, 45, 46, 47
sT0, sT1, sT2 = 48, 49, 52
sRET = 50
sWQ, sWO, sST = 53, 54, 55
sM0W, sM0T = 56, 57
sSC = 58
sXO, sFL, sM0Q, sJOB = 60, 61, 62, 63
sTILE = 64
vKR = 16; vVR = 40
vKa, vKb, vVc = 52, 53, 54
vWOR = 55; vXW, vXR = 61, 62; vWOV = 63; vSTV = 67
vMX = 68; vINV = 70
vPA, vPB = 72, 73
vE = 74
vFLV = 76
vL16 = 77
vS = 80; vNM = 112; vP = 128; vO = 144; vL = 208; vQ = 224
vXRD = 80; vWQR = 88; vXa, vXb = 96, 97; vWQV = 100
aX = 0; aWQ = 144; aONE = 240; aPERM = 244
aK = 0; aV = 32; aWO = 64; aOO = 192
def aVB(t): return aV if t % 2 else aOO
FL_OFF = 256 * 73728
FSH = opts['fsh']; FG = 16 << FSH

def vr(b, n): return f'v[{b}:{b+n-1}]'
def ar(b, n): return f'a[{b}:{b+n-1}]'
def sr(b, n=4): return f's[{b}:{b+n-1}]'
MF = 'v_mfma_f32_32x32x16_bf16'
def win(off): return off >> 16, off & 0xffff

nbar = [0]
def mark():
    if not PROF or (PM is not None and nbar[0] not in PM):
        if nbar[0] == opts['spinx']: e('s_memrealtime s[98:99]')
        nbar[0] += 1
        return
    if PM is not None:
        i = nbar[0]; nbar[0] += 1
        e(f'{TM} s[98:99]'); e('s_waitcnt lgkmcnt(0)'); e(f'v_writelane_b32 v{vPB}, s98, {i}')
        return
    i = nbar[0]; nbar[0] += 1
    e(f'{TM} s[98:99]'); e('s_waitcnt lgkmcnt(0)')
    e(f'v_writelane_b32 v{vPA}, s98, {i}')
    if i > 0: e(f'v_writelane_b32 v{vPB}, s100, {i-1}')
    e(f'{TM} s[100:101]')
def bar(tags, lgkm0=True):
    if not PROF or PM is not None:
        e.wait_vm(tags, lgkm0=lgkm0); e('s_barrier')
        mark()
        return
    i = nbar[0]; nbar[0] += 1
    e(f'{TM} s[98:99]'); e('s_waitcnt lgkmcnt(0)')
    e(f'v_writelane_b32 v{vPA}, s98, {i}')
    if i > 0: e(f'v_writelane_b32 v{vPB}, s100, {i-1}')
    e.wait_vm(tags, lgkm0=lgkm0); e('s_barrier')
    e(f'{TM} s[100:101]')

def put(items):
    for it in items:
        if callable(it): it()
        elif isinstance(it, tuple): e(it[0], it[1])
        else: e(it)
def wrap_adv(r, step, lim, tmp):
    def f():
        e(f's_sub_u32 s{tmp}, s{r}, {lim}')
        e(f's_cselect_b32 s{r}, s{r}, s{tmp}')
    return [f's_add_u32 s{r}, s{r}, {step}', f]
def dma(v, srd, so, off, pol, tag):
    o = f' offset:{off}' if off else ''
    p = f' {pol}' if pol else ''
    return (f'buffer_load_dwordx4 v{v}, {sr(srd)}, {so} offen{o}{p} lds', tag)

KVORD = ['K0'] + sum(([f'K{t+1}', f'V{t}'] for t in range(15)), []) + ['V15']
KVSLOT = {}
def set_group(g):
    for n, nm in enumerate(KVORD):
        KVSLOT[nm] = n if (g == 'A' and n in (12, 13)) else (n + 4) % 12
XSLOT = [9, 10, 11, 0, 1, 2, 3, 12, 13]
def kv(n):
    nm = KVORD[n]; t = int(nm[1:]); isk = nm[0] == 'K'
    srd = SK if isk else SV
    return [f's_add_u32 m0, s{sM0W}, {KVSLOT[nm]*8192}',
            dma(vKa if isk else vVc, srd, f's{sTILE+t}', 0, opts['kv'], nm),
            dma(vKb if isk else vVc, srd, f's{sTILE+t}', 1024, opts['kv'], nm)]
STG = ['a[224:227]', 'a[228:231]', 'a[232:235]', 'a[236:239]', 'a[248:251]', 'a[252:255]', 'v[216:219]', 'v[220:223]']
def kv_reg(n):
    nm = KVORD[n]; t = int(nm[1:]); isk = nm[0] == 'K'
    srd = SK if isk else SV; i = 2 * (n - 14); p = f' {opts["kv"]}' if opts['kv'] else ''
    return [(f'buffer_load_dwordx4 {STG[i]}, v{vKa if isk else vVc}, {sr(srd)}, s{sTILE+t} offen{p}', 'STG'),
            (f'buffer_load_dwordx4 {STG[i+1]}, v{vKb if isk else vVc}, {sr(srd)}, s{sTILE+t} offen offset:1024{p}', 'STG')]
def kv_wr(n):
    i = 2 * (n - 14); o = KVSLOT[KVORD[n]] * 8192
    a = vSTV if o < 65536 else 215
    return [f'ds_write_b128 v{a}, {STG[i]} offset:{o & 0xffff}', f'ds_write_b128 v{a}, {STG[i+1]} offset:{(o & 0xffff) + 1024}']
def xt(j):
    return [f's_add_u32 m0, s{sM0W}, {XSLOT[j]*8192}',
            dma(vXa, SX, f's{sXO}', 0, opts['x'], f'X{j}'),
            dma(vXb, SX, f's{sXO}', 1024, opts['x'], f'X{j}')] + wrap_adv(sXO, 128, 1152, sT1)
def wq_stage(s):
    it = [f's_add_u32 m0, s{sM0Q}, {(14 + 2*(s%3))*8192}']
    it += [dma(vWQV + p, SWQ, f's{sWQ}', p * 1024, opts['wq'], f'WQ{s}') for p in range(4)]
    return it + wrap_adv(sWQ, 2 * 131072, 36 * 131072, sT1)
WOG = [4, 4, 3, 4, 0, 1, 2, 3, 4]
XG = 2
RG = 1
def wo_half(j, half):
    it = [f's_add_u32 m0, s{sM0T}, {4*WOG[j]*8192 + half*4096}']
    if half: it.append(f's_add_u32 s{sT0}, s{sWO}, 36864')
    it += [dma(vWOV + p, SWO, f's{sT0 if half else sWO}', p * 1024, opts['wo'], f'WO{j}') for p in range(4)]
    return it + (wrap_adv(sWO, 128, 1152, sT1) if half else [])
def wo_cb(j): return wo_half(j, 0) + wo_half(j, 1)

def mk_srd(d, ptr, addlo, nbytes):
    if addlo is None:
        e(f's_mov_b32 s{d}, s{ptr}'); e(f's_and_b32 s{d+1}, s{ptr+1}, 0xffff')
    else:
        e(f's_add_u32 s{d}, s{ptr}, {addlo}')
        e(f's_addc_u32 s{d+1}, s{ptr+1}, 0')
        e(f's_and_b32 s{d+1}, s{d+1}, 0xffff')
    e(f's_mov_b32 s{d+2}, {nbytes}')
    e(f's_mov_b32 s{d+3}, 0x00020000')

def rd_x(j):
    w_, o = win(XSLOT[j] * 8192)
    return [f'ds_read_b128 {ar(aX+4*(4*j+ks), 4)}, v{vXRD + 4*w_ + ks} offset:{o}' for ks in range(4)]
def rd_wq(stage):
    it = []
    for ks in range(2):
        w_, o = win((14 + 2 * (stage % 3) + ks) * 8192)
        for u in range(4):
            d = aWQ + 32 * (stage % 2) + (ks * 4 + u) * 4
            for sec in range(2):
                it.append(f'ds_read_b64_tr_b16 {ar(d+2*sec, 2)}, v{vWQR + 4*(w_-1) + u} offset:{o + sec*1024}')
    return it
def mf_q(stage, order=None):
    it = []
    idx = [(ks, u) for ks in range(2) for u in range(4)] if order is None else order
    for ks, u in idx:
        d = aWQ + 32 * (stage % 2) + (ks * 4 + u) * 4
        c = '0' if (stage == 0 and ks == 0) else vr(vO + 16 * u, 16)
        it.append(f'{MF} {vr(vO+16*u, 16)}, {ar(d, 4)}, {ar(aX + 4*(2*stage+ks), 4)}, {c}')
    return it
def aKB(t): return aV if t == 1 else aK
def rd_k(t):
    w_, o = win(KVSLOT[f'K{t}'] * 8192)
    return [f'ds_read_b128 {ar(aKB(t)+4*s, 4)}, v{vKR + 8*w_ + s} offset:{o}' for s in range(8)]
def rd_v(t):
    w_, o = win(KVSLOT[f'V{t}'] * 8192)
    it = []
    for a in range(2):
        for tt in range(4):
            d = aVB(t) + (a * 4 + tt) * 4
            for sec in range(2):
                it.append(f'ds_read_b64_tr_b16 {ar(d+2*sec, 2)}, v{vVR + 4*w_ + tt} offset:{o + a*4096 + sec*2048}')
    return it
def mf_qk(t):
    S = vS + 16 * (t % 2)
    return [f'{MF} {vr(S, 16)}, {ar(aKB(t)+4*s, 4)}, {vr(vQ+4*s, 4)}, ' + (vr(S, 16) if s else ('0' if t <= 1 else vr(vNM, 16))) for s in range(8)]
def mf_pv(t):
    P = vP + 8 * (t % 2)
    it = []
    for a in range(2):
        for tt in range(4):
            c = '0' if (t == 0 and a == 0) else vr(vO + 16 * tt, 16)
            it.append(f'{MF} {vr(vO+16*tt, 16)}, {ar(aVB(t) + (a*4+tt)*4, 4)}, {vr(P+4*a, 4)}, {c}')
        it.append(mf_l(t, a))
    return it
def mf_l(t, a):
    P = vP + 8 * (t % 2)
    c = '0' if (t == 0 and a == 0) else vr(vL, 4)
    return f'v_mfma_f32_16x16x32_bf16 {vr(vL, 4)}, {ar(aONE, 4)}, {vr(P+4*a, 4)}, {c}'
def sm_max(t):
    S = vS + 16 * (t % 2)
    it = [f'v_max3_f32 v{vMX}, v{S}, v{S+1}, v{S+2}', f'v_max3_f32 v{vMX+1}, v{S+3}, v{S+4}, v{S+5}']
    k = 6; d = 0
    while k < 16:
        it.append(f'v_max3_f32 v{vMX+d}, v{vMX+d}, v{S+k}, v{S+k+1}'); k += 2; d ^= 1
    it.append(f'v_max_f32 v{vMX}, v{vMX}, v{vMX+1}')
    return it
stubs = []
def sm_check(t0):
    t = f'{e.roles[0]}{t0}'
    def f():
        e(f'v_cmp_lt_f32 vcc, {f32(opts["T"])}, v{vMX}')
        e(f's_cbranch_vccnz L_stub{t}')
        e.label(f'L_back{t}')
        stubs.append(t)
    return [f]
def sm_exp(t):
    S = vS + 16 * (t % 2); P = vP + 8 * (t % 2)
    it = [f'v_exp_f32 v{S}, v{S}', f'v_exp_f32 v{S+1}, v{S+1}']
    for p in range(8):
        if p < 7: it += [f'v_exp_f32 v{S+2*p+2}, v{S+2*p+2}', f'v_exp_f32 v{S+2*p+3}, v{S+2*p+3}']
        it.append(f'v_cvt_pk_bf16_f32 v{P+p}, v{S+2*p}, v{S+2*p+1}')
    return it
def rd_wo(j):
    w_, o = win(WOG[j] * 32768)
    it = []
    for oth in range(2):
        for f in range(8):
            d = aWO + 64 * (j % 2) + (oth * 8 + f) * 4
            for sec in range(2):
                it.append(f'ds_read_b64_tr_b16 {ar(d+2*sec, 2)}, v{vWOR + 2*w_ + oth} offset:{o + f*2048 + sec*1024}')
    return it
def mf_o(j):
    acc = vS + 16 * (j % 2)
    it = []
    for oth in range(2):
        for f in range(8):
            d = aWO + 64 * (j % 2) + (oth * 8 + f) * 4
            b = vr(vQ + 4 * f, 4) if oth == 0 else ar(aOO + 4 * f, 4)
            c = '0' if (oth == 0 and f == 0) else vr(acc, 16)
            it.append(f'{MF} {vr(acc, 16)}, {ar(d, 4)}, {b}, {c}')
    return it
def ep_o(j):
    acc = vS + 16 * (j % 2); P = vP + 8 * (j % 2)
    it = []
    for h in range(2):
        for p in range(4):
            it.append(f'v_cvt_pk_bf16_f32 v{P+4*h+p}, v{acc+8*h+2*p}, v{acc+8*h+2*p+1}')
        off = ' offset:1024' if h else ''
        if not opts['nost'] and not (opts['half'] and j in (1, 2, 3, 4)): it.append((f'buffer_store_dwordx4 {vr(P+4*h, 4)}, v{vSTV}, {sr(SWS)}, s{sTILE+j} offen{off} {opts["st"]}', f'ST{j}'))
    return it
def publish(j):
    def f():
        if opts['one_flag']:
            FLS = opts['fls']
            if j == 8 or (opts['two'] and j == opts['two']):
                if j == 8: e('s_waitcnt vmcnt(0)')
                else: e.wait_vm({f'ST{j}'})
                so = '0' if j == 8 else f's{sFL}'
                e(f'buffer_store_dwordx2 {vr(vE, 2)}, v{vFLV}, {sr(SFL)}, {so} offen {opts["fp"]}', 'FL')
            return
        e.wait_vm({f'ST{j}'})
        so, off = ('0', j * 512) if j < 8 else (f's{sFL}', 0)
        e(f'buffer_store_dwordx2 {vr(vE, 2)}, v{vFLV}, {sr(SFL)}, {so} offen offset:{off} sc1', 'FL')
    return [f]

K = NAME + '_kernel'
e.raw(f'.globl {K}\n.p2align 8\n.type {K},@function\n{K}:')
e('s_cmp_ge_u32 s2, 256')
e('s_cbranch_scc1 L_end')
e('s_load_dwordx8 s[4:11], s[0:1], 0')
e('s_load_dwordx8 s[12:19], s[0:1], 32')
e('s_memrealtime s[100:101]')
if PROF: e(f'{TM} s[96:97]')
if opts['cpf']:
    e('s_getpc_b64 s[98:99]')
    e.label('L_pc')
    e('s_lshr_b32 s3, s2, 3')
    e('v_lshl_add_u32 v9, s3, 4, v0')
    e('v_lshlrev_b32 v9, 7, v9')
    e(f'v_min_u32 v9, L_textend-L_pc-4, v9')
    e('v_cmp_gt_u32 vcc, 16, v0')
    e('s_and_saveexec_b64 s[20:21], vcc')
    e('s_cbranch_execz L_nocpf')
    e.raw('    global_load_dword v12, v9, s[98:99]')
    e.label('L_nocpf')
    e('s_mov_b64 exec, -1')
e('v_lshrrev_b32 v1, 6, v0')
e(f's_lshr_b32 s{sB}, s2, 4')
e(f'v_readfirstlane_b32 s{sW}, v1')
e(f's_sub_u32 s{sT0}, s{sB}, 9')
e(f's_cselect_b32 s3, s{sB}, s{sT0}')
if opts['xrot']:
    e(f's_and_b32 s{sT0}, s2, {opts["xrot"]}')
    e(f's_add_u32 s3, s3, s{sT0}')
    e(f's_sub_u32 s{sT0}, s3, 9')
    e(f's_cselect_b32 s3, s3, s{sT0}')
e(f's_lshl_b32 s{sWQ}, s3, 19')
e(f's_lshl_b32 s{sXO}, s3, 7')
e(f's_mul_i32 s{sT0}, s{sB}, 73728')
e(f's_lshl_b32 s{sM0W}, s{sW}, 11')
e('v_bfe_u32 v2, v0, 3, 3')
e('v_and_b32 v3, 7, v0')
e('v_lshrrev_b32 v6, 1, v2')
e('v_xor_b32 v7, v3, v6')
e('v_lshlrev_b32 v7, 4, v7')
e('v_mul_u32_u24 v8, 1152, v2')
e('v_mul_u32_u24 v9, 18432, v1')
e('v_add_u32 v9, v9, v8')
e(f'v_add_u32 v{vXa}, v9, v7')
e('v_xor_b32 v7, 64, v7')
e(f'v_add_u32 v{vXb}, v9, v7')
e(f'v_add_u32 v{vXb}, 8192, v{vXb}')
e(f's_and_b32 s{sHKV}, s2, 7')
e(f's_lshl_b32 s{sHKV}, s{sHKV}, 1')
e(f's_bfe_u32 s{sT2}, s2, 0x10003')
e(f's_add_u32 s{sHKV}, s{sHKV}, s{sT2}')
e(f's_lshl_b32 s{sM0Q}, s{sW}, 12')
e(f's_lshl_b32 s{sT2}, s{sHKV}, 9')
e('v_bfe_u32 v4, v0, 4, 2')
e('v_and_b32 v5, 15, v0')
e('v_lshlrev_b32 v7, 2, v4')
e('v_xor_b32 v7, v5, v7')
e('v_lshlrev_b32 v7, 4, v7')
e('v_lshl_add_u32 v9, v4, 13, v7')
e('v_lshrrev_b32 v10, 1, v1')
e('v_lshl_add_u32 v9, v10, 17, v9')
e('v_and_b32 v10, 1, v1')
e(f'v_lshl_add_u32 v{vWQV}, v10, 8, v9')
for p in range(1, 4): e(f'v_add_u32 v{vWQV+p}, {p*31744}, v{vWQV}')
def pmark(i):
    if opts['pp0']:
        e(f'{TM} s[98:99]'); e('s_waitcnt lgkmcnt(0)'); e(f'v_writelane_b32 v{vPB}, s98, {i}')
e('s_waitcnt lgkmcnt(0)')
pmark(54)
if opts['wqfirst']:
    mk_srd(SWQ, 10, f's{sT2}', 4718592 - 15 * 512)
    put(wq_stage(0)); put(wq_stage(1))
    mk_srd(SX, 4, f's{sT0}', 73728)
    put(xt(0)); put(xt(1))
else:
    mk_srd(SX, 4, f's{sT0}', 73728)
    put(xt(0))
    mk_srd(SWQ, 10, f's{sT2}', 4718592 - 15 * 512)
    put(wq_stage(0))
    put(xt(1)); put(wq_stage(1))
pmark(55)
e('v_lshl_add_u32 v9, v4, 8, v7')
e(f'v_lshl_add_u32 v{vVc}, v1, 11, v9')
e('v_xor_b32 v7, v5, v4')
e('v_lshlrev_b32 v7, 4, v7')
e('v_lshl_add_u32 v9, v4, 8, v7')
e('v_lshlrev_b32 v10, 7, v10')
e('v_xor_b32 v9, v9, v10')
e(f'v_lshl_add_u32 v{vKa}, v1, 11, v9')
e(f'v_xor_b32 v{vKb}, 64, v{vKa}')
for t in range(16): e(f's_mov_b32 s{sTILE+t}, {t*8192}')
e(f's_lshl_b32 s{sM0T}, s{sW}, 13')
e(f's_lshr_b32 s{sROT}, s{sB}, 1')
e(f's_lshl_b32 s{sWO}, s{sROT}, 7')
e(f's_lshl_b32 s{sJOB}, s{sB}, 4')
e(f's_add_u32 s{sJOB}, s{sJOB}, s{sHKV}')
e(f's_lshl_b32 s3, s{sJOB}, 17')
mk_srd(SK, 6, 's3', 131072)
mk_srd(SV, 8, 's3', 131072)
mk_srd(SDBG, 16, None, 256)
e('s_cmp_lg_u32 s2, 0')
e('s_cbranch_scc1 L_noepoch')
e('v_lshlrev_b32 v9, 8, v0')
e('v_mov_b32 v10, s100'); e('v_mov_b32 v11, s101')
e(f'buffer_store_dwordx2 v[10:11], v9, {sr(SDBG)}, 0 offen sc1')
e.vm['A'].pop(); e.vm['B'].pop()
e.label('L_noepoch')

if opts['krot']:
    e(f's_mul_i32 s3, s{sJOB}, {opts["krot"]}')
    e(f's_lshr_b32 s{sT0}, s{sJOB}, 4')
    e(f's_add_u32 s3, s3, s{sT0}')
    e('s_lshl_b32 s3, s3, 13')
    for t in range(16):
        e(f's_add_u32 s{sTILE+t}, s3, {t*8192}')
        e(f's_and_b32 s{sTILE+t}, s{sTILE+t}, 0x1e000')
e(f's_mul_i32 s3, s{sHKV}, 294912')
mk_srd(SWO, 12, 's3', 294912)
e(f's_mul_i32 s3, s{sJOB}, 73728')
mk_srd(SWS, 18, 's3', 73728)
FB = (128 << opts['fls']) if opts['one_flag'] else 36 * FG
e(f's_mul_i32 s3, s{sB}, {FB}')
e(f's_add_u32 s3, s3, {FL_OFF}')
mk_srd(SFL, 18, 's3', FB)
e(f's_mul_i32 s3, s{sB}, {16*73728}')
mk_srd(SPR, 18, 's3', 16 * 73728)
e(f's_mul_i32 s3, s{sB}, 73728')
mk_srd(SOUT, 14, 's3', 73728)
sc = math.log2(math.e) / math.sqrt(128.0)
e(f's_mov_b32 s{sSC}, {f32(sc)}'); e(f's_mov_b32 s{sSC+1}, {f32(sc)}')
e('v_bfe_u32 v9, v0, 5, 1')
e('v_and_b32 v10, 31, v0')
e('v_bfe_u32 v11, v0, 2, 2')
e('v_and_b32 v7, 3, v0')
e('v_bfe_u32 v13, v0, 4, 1')
e('v_and_b32 v14, 1, v1')
e('v_lshl_add_u32 v14, v14, 5, v10')
e('v_bfe_u32 v15, v14, 1, 3')
e('v_xor_b32 v15, v15, v9')
e('v_lshlrev_b32 v15, 4, v15')
e(f'v_lshl_add_u32 v{vXRD}, v14, 7, v15')
for ks in range(1, 4): e(f'v_xor_b32 v{vXRD+ks}, {ks*32}, v{vXRD}')
for ks in range(4): e(f'v_add_u32 v{vXRD+4+ks}, 0x10000, v{vXRD+ks}')
e('v_lshrrev_b32 v14, 1, v1')
e('v_lshlrev_b32 v14, 12, v14')
e('v_lshl_add_u32 v14, v9, 11, v14')
e('v_lshl_add_u32 v14, v11, 8, v14')
e('v_lshl_add_u32 v14, v11, 6, v14')
e('v_lshl_add_u32 v14, v13, 5, v14')
e('v_and_b32 v15, 1, v7')
e('v_lshl_add_u32 v14, v15, 4, v14')
e('v_lshrrev_b32 v15, 1, v7')
e('v_lshl_add_u32 v14, v15, 3, v14')
e(f'v_add_u32 v{vWQR}, 0x10000, v14')
for u in range(1, 4): e(f'v_xor_b32 v{vWQR+u}, {u*64}, v{vWQR}')
for u in range(4): e(f'v_add_u32 v{vWQR+4+u}, 0x10000, v{vWQR+u}')
e('v_xor_b32 v14, v9, v5')
e('v_lshlrev_b32 v14, 4, v14')
e(f'v_lshl_add_u32 v{vKR}, v10, 8, v14')
for s in range(1, 8): e(f'v_xor_b32 v{vKR+s}, {s*32}, v{vKR}')
for w_ in (1, 2):
    for s in range(8): e(f'v_add_u32 v{vKR+8*w_+s}, {w_*0x10000}, v{vKR+s}')
e('v_lshlrev_b32 v14, 10, v9')
e('v_lshl_add_u32 v14, v11, 8, v14')
e('v_lshl_add_u32 v14, v11, 6, v14')
e('v_lshl_add_u32 v14, v13, 5, v14')
e(f'v_lshl_add_u32 v{vVR}, v7, 3, v14')
for t in range(1, 4): e(f'v_xor_b32 v{vVR+t}, {t*64}, v{vVR}')
for w_ in (1, 2):
    for t in range(4): e(f'v_add_u32 v{vVR+4*w_+t}, {w_*0x10000}, v{vVR+t}')
e('v_lshrrev_b32 v4, 1, v1')
e('v_lshlrev_b32 v14, 9, v9')
e('v_lshl_add_u32 v14, v11, 7, v14')
e('v_lshrrev_b32 v15, 1, v11')
e('v_xor_b32 v15, v15, v4')
e('v_lshl_add_u32 v14, v15, 6, v14')
e('v_and_b32 v15, 1, v7')
e('v_lshl_add_u32 v14, v15, 5, v14')
e('v_lshl_add_u32 v14, v13, 4, v14')
e('v_lshrrev_b32 v15, 1, v7')
e('v_lshl_add_u32 v14, v15, 3, v14')
e(f'v_lshl_add_u32 v{vWOR}, v4, 14, v14')
e(f'v_xor_b32 v{vWOR+1}, 0x4000, v{vWOR}')
for w_ in (1, 2):
    for o in range(2): e(f'v_add_u32 v{vWOR+2*w_+o}, {w_*0x10000}, v{vWOR+o}')
e('v_and_b32 v14, 63, v0')
e(f'v_lshlrev_b32 v{vL16}, 4, v14')
e(f'v_lshl_add_u32 v{vXW}, v1, 13, v{vL16}')
e(f'v_add_u32 v{vXW}, {XG*32768}, v{vXW}')
e(f'v_xor_b32 v{vXR}, 0x4000, v{vXW}')
e(f'v_lshl_add_u32 v{vSTV}, v1, 11, v{vL16}')
if opts['full']:
    e('v_lshrrev_b32 v14, 4, v14')
    e('v_lshlrev_b32 v14, 20, v14')
    e('v_lshl_add_u32 v14, v5, 3, v14')
else: e(f'v_lshlrev_b32 v14, 20, v14')
e(f'v_lshl_add_u32 v14, v1, {opts["fls"] if opts["one_flag"] else FSH+4}, v14')
e(f's_lshl_b32 s3, s{sHKV}, {opts["fls"]+2 if opts["one_flag"] else FSH}')
e(f'v_add_u32 v{vFLV}, s3, v14')
e('v_and_b32 v14, 1, v6')
e('v_lshlrev_b32 v14, 2, v14')
e('v_xor_b32 v14, v14, v3')
e('v_lshl_add_u32 v14, v14, 4, v8')
e('v_mul_u32_u24 v15, 73728, v1')
e(f'v_add_u32 v{vWOV}, v14, v15')
for p in range(1, 4): e(f'v_add_u32 v{vWOV+p}, {p*8192}, v{vWOV}')
e('v_bfe_u32 v14, v0, 2, 1')
e('v_cmp_eq_u32 vcc, v14, v13')
e('v_mov_b32 v14, 0x3f803f80')
e('v_cndmask_b32 v14, 0, v14, vcc')
for i in range(4): e(f'v_accvgpr_write_b32 a{aONE+i}, v14')
e('v_and_b32 v14, 1, v0')
e('v_lshlrev_b32 v14, 4, v14')
e('v_lshlrev_b32 v14, v14, 0x3f80'.replace('v14, 0x3f80', 'v14, v15') if False else 'v_mov_b32 v15, 0x3f80')
e('v_lshlrev_b32 v14, v14, v15')
e('v_bfe_u32 v15, v0, 2, 1')
e('v_xor_b32 v15, v15, v9')
e('v_or_b32 v15, v15, v13')
e('v_lshlrev_b32 v15, 3, v15')
e('v_bfe_u32 v2, v0, 3, 1')
e('v_bfe_u32 v3, v0, 1, 1')
e('v_lshl_add_u32 v2, v2, 1, v3')
e('v_add_u32 v2, v2, v15')
for d in range(4):
    e(f'v_cmp_eq_u32 vcc, {d}, v2')
    e(f'v_cndmask_b32 v3, 0, v14, vcc')
    e(f'v_accvgpr_write_b32 a{aPERM+d}, v3')

def qcvt(u):
    it = []
    for p in range(8):
        r = vO + 16 * u + 2 * p
        if opts['pk']: it.append(f'v_pk_mul_f32 {vr(r, 2)}, {vr(r, 2)}, s[{sSC}:{sSC+1}]')
        else: it += [f'v_mul_f32 v{r}, s{sSC}, v{r}', f'v_mul_f32 v{r+1}, s{sSC}, v{r+1}']
    for p in range(8):
        r = vO + 16 * u + 2 * p
        it.append(f'v_cvt_pk_bf16_f32 v{vQ+8*u+p}, v{r}, v{r+1}')
    return it
def X(*js): return sum((xt(j) for j in js), [])
def KVs(*ns): return sum((kv(n) for n in ns), [])
def RX(*js): return sum((rd_x(j) for j in js), [])
if opts['rtrace']: e(f'v_mov_b32 v{vPA}, 0')
pmark(59)
put(X(2, 3, 4)); bar({'X0', 'X1', 'WQ0'}, False)
put(RX(0, 1) + rd_wq(0))
put(X(5, 6, 7)); bar({'WQ1', 'X2'})
e.weave(mf_q(0), [(rd_wq(1) + RX(2), -1, 6)])

def group_body(g):
    e.roles = [g]; set_group(g)
    WOG[0] = 4 if g == 'A' else 3
    B1 = opts['b1']
    if g == 'A':
        put(X(8) + KVs(0, 1)); bar({'X3', 'X4', 'X5'})
        e.weave(mf_q(1), [(RX(3, 4, 5), -1, 4)])
        put(KVs(2, 3, 4)); bar({'X6', 'X7', 'X8'})
        put(RX(6, 7, 8))
        put(KVs(*range(5, min(B1, 11)))); bar(set())
        put(KVs(*range(11, B1)))
        for n in range(14, 14 + opts['nreg']): put(kv_reg(n))
        if opts['nreg']: e(f'v_add_u32 v215, 0x10000, v{vSTV}')
        put(wq_stage(2) + wq_stage(3) + wq_stage(4))
        qplan = {}
        nxt = B1
        cnt = [int(x) for x in opts['apl'].split(',')]
        wot = [int(x) for x in opts['awo'].split(',')]
        rdt = tuple(int(x) for x in opts['ard'].split(','))
    else:
        put(X(8) + wq_stage(2)); bar({'X3', 'X4', 'X5'})
        e.weave(mf_q(1), [(RX(3, 4, 5), -1, 4)])
        put(wq_stage(3) + wq_stage(4)); bar({'X6', 'X7', 'X8'})
        put(RX(6, 7, 8))
        bar(set())
        LA = opts['la']
        qplan = {14: [0, 1], 15: [2, 3], 16: [4, 5], 17: list(range(6, LA - 1))}
        nxt = LA - 1
        cnt = [1] + [2] * 15
        wot = [int(x) for x in opts['bwo'].split(',')]
        rdt = tuple(int(x) for x in opts['brd'].split(','))
    bar({'WQ2'})
    put(rd_wq(2))
    bar({'WQ3'})
    for s in range(2, 16):
        d = []
        if s + 3 < 18: d += wq_stage(s + 3)
        d += KVs(*qplan.get(s, []))
        ek = rd_k(s - 14) if (opts['kearly'] and g == 'A' and s >= 14) else []
        e.weave(mf_q(s), [(rd_wq(s + 1) + ek, -1, opts['qrd'])] + ([(d, 0, 8)] if d else []))
        tags = {f'WQ{s+2}'}
        if s == 13 and g == 'A': tags |= {'K0', 'K1', 'V0'}
        bar(tags)
    r17 = rd_wq(17)
    r17 = sum((r17[2*u:2*u+2] + r17[8+2*u:8+2*u+2] for u in range(4)), [])
    mq = []
    for st, u in ((16, 0), (16, 1), (17, 0), (17, 1), (16, 2), (17, 2), (16, 3), (17, 3)):
        mq += mf_q(st, [(0, u), (1, u)])
    d = KVs(*(qplan.get(16, []) + qplan.get(17, [])))
    init0 = sm_max(0) + [f'v_mov_b32 v{vMX+1}, v{vMX}', f'v_permlane32_swap_b32 v{vMX}, v{vMX+1}', f'v_max_f32 v{vMX}, v{vMX}, v{vMX+1}'] + \
            [f'v_sub_f32 v{vS+r}, v{vS+r}, v{vMX}' for r in range(16)] + sm_exp(0) + [f'v_sub_f32 v{vNM+r}, 0, v{vMX}' for r in range(16)]
    d0 = []
    for _ in range(cnt[0]): d0 += kv(nxt); nxt += 1
    if g == 'A':
        if opts['kearly']:
            e.weave(mq + mf_qk(0), [(r17, -1, 6), (qcvt(0), 6, 10), (qcvt(1), 10, 14), (qcvt(2), 14, 18), (qcvt(3), 18, 22), (rd_v(0), 21, 24)])
        else:
            e.weave(mq + mf_qk(0), [(r17, -1, 4), (rd_k(0) + rd_k(1), 4, 8), (qcvt(0), 7, 11), (qcvt(1), 11, 14), (qcvt(2), 14, 18), (qcvt(3), 18, 22),
                                    (rd_v(0), 20, 24)])
        mark(); mark(); mark()
        e.weave(mf_qk(1), [(init0, 1, 8)] + ([(d0, -1, 2)] if d0 else []))
    else:
        e.weave(mq, [(r17, -1, 4), (d, 2, 8), (qcvt(0), 7, 11), (qcvt(1), 11, 14), (qcvt(2), 14, 16)])
        put(qcvt(3))
        mark()
        bar({'K0', 'K1', 'V0'})
        put(rd_k(0))
        e.weave(mf_qk(0), [(rd_k(1), 0, 3), (rd_v(0), 3, 8), (d0, 0, 4)])
        mark()
        e.weave(mf_qk(1), [(init0, 1, 8)])
    bar({'K2', 'V1'})
    WORD = {rdt[0]: rd_wo(0)[:16], rdt[0]+1: rd_wo(0)[16:], rdt[1]: rd_wo(1)[:16], rdt[1]+1: rd_wo(1)[16:]}
    assert wot[1] < rdt[0] and wot[3] < rdt[1] and wot[4] >= rdt[0] + 2 and wot[6] >= rdt[1] + 2 and wot[8] >= 12 and wot[0] >= 1
    if g == 'A': assert wot[2] >= rdt[0] + 2 and wot[4] >= 7
    cnt += [2] * 16
    for t in range(1, 16):
        d = []
        for _ in range(cnt[t]):
            if nxt < 32:
                assert nxt < 12 or (nxt - 12 + 1) // 2 <= t, (g, nxt, t)
                assert min((nxt - 2 + 1) // 2, 14) > t, (g, nxt, t)
                d += kv_wr(nxt) if (g == 'A' and 14 <= nxt < 14 + opts['nreg']) else kv(nxt)
                nxt += 1
        dw = []
        for hi, tt_ in enumerate(wot):
            if tt_ == t: dw += wo_half(hi // 2, hi % 2)
        d = dw + d if (opts['wof'] and g == 'A' and t < 8) else d + dw
        if t == opts['tlb']:
            d += [f'v_lshlrev_b32 v1, {opts["tsh"]}, v0',
                  (f'buffer_load_dword v218, v1, {sr(SFL)}, 0 offen', 'TL'),
                  (f'buffer_load_dword v219, v1, {sr(SPR)}, 0 offen', 'TL'),
                  (f'buffer_load_dword v220, v1, {sr(SOUT)}, 0 offen', 'TL')]
        if t == 7:
            d += ['v_mov_b32 v1, 0', (f'buffer_load_dwordx2 {vr(vE, 2)}, v1, {sr(SDBG)}, 0 offen sc1', 'EP')]
        if False: pass
        elif t < 15:
            sm = sm_max(t) + sm_check(t) + sm_exp(t)
            if t == 1: sm = [f'v_add_f32 v{vS+16+r}, v{vS+16+r}, v{vNM}' for r in range(16)] + sm
            kw = lambda: e.need_regs(ar(aK + 28, 4))
            kw.cost = 4
            X_ = opts['x_']
            if X_ & 1: sm = [i for i in sm if callable(i) or not i.startswith('v_exp')]
            if X_ & 2: sm = [i for i in sm if callable(i) or not i.startswith('v_cvt')]
            if X_ & 4: sm = [i for i in sm if not callable(i) and not i.startswith('v_max')]
            rk, rv = rd_k(t + 1), rd_v(t)
            if X_ & 8: rk = []
            if X_ & 16: rv = []
            streams = [(rk, 0, 8), (rv + WORD.get(t, []), 1, 16), (sm, 1, 18), (d, 0, 17), ([kw], 9, 10)]
            if t == 14: streams.append((rd_v(15), 10, 17))
            e.weave2(mf_pv(t - 1) + mf_qk(t + 1), streams, opts['slack'])
        else:
            sm = sm_max(t) + sm_check(t) + sm_exp(t)
            e.weave2(mf_pv(14), [(sm, 1, 10), (d, 0, 10)])
        if t < 15:
            tags = {f'K{t+2}', f'V{t+1}'}
            if t == rdt[0] - 1: tags.add('WO0')
            if t == rdt[1] - 1: tags.add('WO1')
            if t == 14: tags.add('EP')
            if t == 13: tags.add('V15')
            bar(tags)
    assert nxt == 32

e(f's_and_b32 s3, s{sB}, {opts["gmask"]}')
e('s_cbranch_scc0 L_grpA')
S0 = e.S.clone(); nb0 = nbar[0]
group_body('B')
e('s_branch L_common')
SB = e.S; nb1 = nbar[0]; nbar[0] = nb0
e.label('L_grpA')
e.S = S0
group_body('A')
assert nbar[0] == nb1
e.label('L_common')
e.S = Emit.merge_states(e.S, SB)
e.roles = ['A', 'B']
e(f'v_or_b32 v1, v{vE}, v{vE+1}')
e('v_cmp_eq_u32 vcc, 0, v1')
e('s_cbranch_vccnz L_epoch_spin')
e.label('L_epoch_ok')
P15 = vP + 8
seq = [mf_l(15, 0), mf_l(15, 1)]
for tt in range(4):
    for a in range(2):
        seq.append(f'{MF} {vr(vO+16*tt, 16)}, {ar(aVB(15) + (a*4+tt)*4, 4)}, {vr(P15+4*a, 4)}, {vr(vO+16*tt, 16)}')
def norm(tt):
    it = []
    for a in range(2):
        for p in range(4 * a, 4 * a + 4):
            r = vO + 16 * tt + 2 * p
            if opts['pk']: it.append(f'v_pk_mul_f32 {vr(r, 2)}, {vr(r, 2)}, {vr(vINV, 2)} op_sel_hi:[1,0]')
            else: it += [f'v_mul_f32 v{r}, v{vINV}, v{r}', f'v_mul_f32 v{r+1}, v{vINV}, v{r+1}']
        for p in range(4 * a, 4 * a + 4):
            r = vO + 16 * tt + 2 * p
            it.append(f'v_cvt_pk_bf16_f32 v{vQ+8*tt+p}, v{r}, v{r+1}')
        f = 2 * tt + a
        it.append(f'ds_write_b128 v{vXW}, {vr(vQ+4*f, 4)} offset:{f*1024}')
    return it
mo0 = mf_o(0); mo1 = mf_o(1)
own = sum(([mo0[f], mo1[f]] for f in range(8)), [])
e.weave(seq + own[:12], [([f'v_rcp_f32 v{vINV}, v{vL}'], 4, 5),
                         (norm(0), 5, 9), (norm(1), 9, 13), (norm(2), 13, 17), (norm(3), 17, 21)])
bar({'WO2'})
sU, sCNT, sTODO, sRDY, sI, sOFF, sUA, sLB, sOO, sOM, sMB = 20, 21, 22, 23, 24, 25, 26, 27, 28, 29, 32
vMV, vMR, vMO = 212, 213, 214
red_setup = [
    f's_lshl_b32 s{sU}, s{sW}, 4', f's_add_u32 s{sU}, s{sU}, s{sHKV}',
    f's_lshl_b32 s{sUA}, s{sU}, 10',
    f's_lshr_b32 s{sOO}, s{sU}, 3', f's_add_u32 s{sOO}, s{sOO}, s{sROT}',
    lambda: (e(f's_sub_u32 s{sI}, s{sOO}, 9'), e(f's_cselect_b32 s{sOO}, s{sOO}, s{sI}')),
    f's_lshl_b32 s{sOO}, s{sOO}, 7',
    f's_bfe_u32 s{sI}, s{sU}, 0x10001', f's_mul_i32 s{sI}, s{sI}, 36864', f's_add_u32 s{sOO}, s{sOO}, s{sI}',
    f's_bfe_u32 s{sI}, s{sU}, 0x10002', f's_lshl_b32 s{sI}, s{sI}, 6', f's_add_u32 s{sOO}, s{sOO}, s{sI}',
    f's_and_b32 s{sI}, s{sU}, 1', f's_lshl_b32 s{sI}, s{sI}, 4', f's_add_u32 s{sOO}, s{sOO}, s{sI}',
    lambda: (e(f's_sub_u32 s{sOM}, s{sROT}, 1'), e(f's_cselect_b32 s{sOM}, 8, s{sOM}')),
    f's_lshl_b32 s{sOM}, s{sOM}, 7',
    f's_and_b32 s{sI}, s{sW}, 1', f's_mul_i32 s{sI}, s{sI}, 36864', f's_add_u32 s{sOM}, s{sOM}, s{sI}',
    f's_and_b32 s{sI}, s{sHKV}, 3', f's_mul_i32 s{sI}, s{sI}, 9216', f's_add_u32 s{sOM}, s{sOM}, s{sI}',
    f's_lshr_b32 s{sI}, s{sW}, 1', f's_lshl_b32 s{sI}, s{sI}, 6', f's_add_u32 s{sOM}, s{sOM}, s{sI}',
    f's_bfe_u32 s{sI}, s{sHKV}, 0x10002', f's_lshl_b32 s{sI}, s{sI}, 5', f's_add_u32 s{sOM}, s{sOM}, s{sI}',
    f's_lshr_b32 s{sI}, s{sHKV}, 3', f's_lshl_b32 s{sI}, s{sI}, 4', f's_add_u32 s{sOM}, s{sOM}, s{sI}',
    f's_lshl_b32 s{sMB}, s{sU}, 7', f's_add_u32 s{sMB}, s{sMB}, 65536',
    f's_mov_b32 s{sTODO}, -1',
] + ([
    f's_bfe_u32 s{sI}, s{sU}, 0x20001', f's_lshl_b32 s{sI}, s{sI}, {opts["fls"]}',
] + ([lambda: (e(f's_cmp_lt_u32 s{sU}, {8*(opts["two"]+1)}'), e(f's_cselect_b32 s{sOFF}, s{sFL}, 0')), f's_add_u32 s{sI}, s{sI}, s{sOFF}'] if opts['two'] else []) + [
    f's_lshl_b32 s{sOFF}, s{sW}, {opts["fls"]}', f's_sub_u32 s{sOFF}, s{sOFF}, s{sI}',
    'v_and_b32 v1, 15, v0', f'v_lshlrev_b32 v1, {opts["fls"]+2}, v1', f'v_add_u32 v1, s{sI}, v1',
    'v_bfe_u32 v2, v0, 4, 1', f'v_mul_lo_u32 v2, s{sOFF}, v2', 'v_add_u32 v1, v1, v2',
] if opts['one_flag'] else [
    f's_lshr_b32 s{sI}, s{sU}, 1', f's_lshl_b32 s{sI}, s{sI}, 7',
    f's_lshl_b32 s{sOFF}, s{sW}, 7', f's_add_u32 s{sOFF}, s{sOFF}, 4096', f's_sub_u32 s{sOFF}, s{sOFF}, s{sI}',
    'v_and_b32 v1, 15, v0', 'v_lshlrev_b32 v1, 3, v1', f'v_add_u32 v1, s{sI}, v1',
    'v_bfe_u32 v2, v0, 4, 1', f'v_mul_u32_u24 v2, s{sOFF}, v2', 'v_add_u32 v1, v1, v2',
]) + [
    f's_mul_i32 s{sLB}, s{sW}, 18432', f's_add_u32 s{sLB}, s{sLB}, {RG*32768}',
    f'v_add_u32 v3, s{sLB}, v{vL16}',
    'v_and_b32 v2, 31, v0', 'v_lshlrev_b32 v7, 20, v2', 'v_mul_u32_u24 v2, 1152, v2', 'v_bfe_u32 v6, v0, 5, 1', 'v_lshl_add_u32 v2, v6, 5, v2',
    'v_mul_u32_u24 v8, 2304, v6', f'v_add_u32 v{vMO}, v7, v8',
    'v_bfe_u32 v7, v0, 3, 3', 'v_mul_u32_u24 v7, 73728, v7', 'v_and_b32 v8, 7, v0', f'v_lshl_add_u32 v{vMV}, v8, 4, v7',
    'v_lshlrev_b32 v7, 10, v6', 'v_bfe_u32 v8, v0, 2, 2', 'v_lshl_add_u32 v7, v8, 7, v7',
    'v_and_b32 v8, 1, v0', 'v_lshl_add_u32 v7, v8, 5, v7', 'v_bfe_u32 v8, v0, 4, 1', 'v_lshl_add_u32 v7, v8, 4, v7',
    'v_bfe_u32 v8, v0, 1, 1', 'v_lshl_add_u32 v7, v8, 3, v7', f'v_add_u32 v{vMR}, s{sLB}, v7',
    f's_mov_b32 s{sCNT}, {opts["spin"]}',
] + [f'v_mov_b32 v{vNM+i}, 0x3f803f80' for i in range(4)]
OPLAN = {}
for hi, iv in enumerate(int(x) for x in opts['oplan'].split(',')): OPLAN.setdefault(iv, []).append((6 + hi // 2, hi % 2))
LAG = opts['lag']
pub = 0
r2 = rd_wo(2)
e.weave(own[12:] + mo0[8:] + mo1[8:],
        [([f'ds_read_b128 {ar(aOO+4*f, 4)}, v{vXR} offset:{f*1024}' for f in range(8)], -1, 1),
         (wo_cb(5), 0, 12), (r2[:16], 4, 12), (r2[16:], 12, 18), (ep_o(0), 14, 20)])
mark()
bar({'WO3'})
nrs = (len(red_setup) + 2) // 3
for j in range(2, 9):
    streams = []
    if j in OPLAN: streams.append((sum((wo_half(*h) for h in OPLAN[j]), []), -1, 10 if len(OPLAN[j]) > 1 else 6))
    if j < 8: streams.append((rd_wo(j + 1), 0, 14))
    ep = ep_o(j - 1)
    if j - 1 - LAG >= 0: ep += publish(pub); pub += 1
    streams.append((ep, opts['epg'] if j in OPLAN else 3, 16 if j in OPLAN else 12))
    if j in (5, 6, 7): streams.append((red_setup[(j-5)*nrs:(j-4)*nrs], 0, 16))
    if j == 8 and opts['r0'] == 1: streams.append(([(f'buffer_load_dwordx2 v[4:5], v1, {sr(SFL)}, 0 offen sc1', 'POLL')], opts['pg'], opts['pg'] + 1))
    e.weave(mf_o(j), streams)
    if j < 7: bar({f'WO{j+2}'})
put(ep_o(8))
mark()
def masked_round():
    e(f's_mov_b32 s{sOFF}, s{sUA}')
    for h in range(16):
        if h % 4 == 0: e(f's_add_u32 m0, s{sLB}, {h*1024}')
        e(f's_bitcmp1_b32 s{sRDY}, {h}')
        e('s_cselect_b64 exec, -1, 0')
        off = f' offset:{(h%4)*1024}' if h % 4 else ''
        if opts['thr'] and h >= opts['thr']: e(f's_waitcnt vmcnt({opts["thr"]-1})')
        e(f'buffer_load_dwordx4 v{vL16}, {sr(SPR)}, s{sOFF} offen{off} {opts["ld"]} lds', 'RD')
        if h < 15: e(f's_add_u32 s{sOFF}, s{sOFF}, {73728 - 1024 if h % 4 != 3 else 73728 + 3072}')
    e('s_mov_b64 exec, -1')
if opts['wgf']:
    e(f's_lshl_b32 s{sTODO}, 1, s{sHKV}')
    e(f's_andn2_b32 s{sTODO}, 0xffff, s{sTODO}')
    e('v_and_b32 v1, 15, v0')
    e(f'v_lshlrev_b32 v1, {opts["fls"]+2}, v1')
    if opts['mp']:
        NP = opts['mp']
        pl = lambda k: f'buffer_load_dwordx2 v[{4+2*k}:{5+2*k}], v1, {sr(SFL)}, 0 offen sc1'
        e(f's_cmp_lg_u32 s{sW}, 0')
        e('s_cbranch_scc1 L_w123')
        e(pl(0))
        e('s_waitcnt vmcnt(0)')
        e('s_barrier')
        mark()
        e(f'v_cmp_ne_u64 vcc, v[4:5], {vr(vE, 2)}')
        e('s_nop 0')
        e(f's_and_b32 s{sRDY}, vcc_lo, s{sTODO}')
        e('s_cbranch_scc0 L_rel')
        for k in range(NP - 1):
            e(pl(k))
            e(f's_nop 15'); e('s_nop 15')
        e.label('L_poll')
        e.S = State()
        for k in range(NP):
            e(pl((k + NP - 1) % NP))
            e(f's_waitcnt vmcnt({NP-1})')
            e(f'v_cmp_ne_u64 vcc, v[{4+2*k}:{5+2*k}], {vr(vE, 2)}')
            e('s_nop 0')
            e(f's_and_b32 s{sRDY}, vcc_lo, s{sTODO}')
            e('s_cbranch_scc0 L_rel')
        e(f's_sub_u32 s{sCNT}, s{sCNT}, 1')
        e('s_cbranch_scc0 L_poll')
        e('s_branch L_rel')
        e.label('L_w123')
        e('s_waitcnt vmcnt(0)')
        e('s_barrier')
        e(f's_cmp_lg_u32 s{sW}, 1')
        e('s_cbranch_scc1 L_nopub')
        e(f'v_subrev_u32 v{vFLV}, {1 << opts["fls"]}, v{vFLV}')
        e(f'buffer_store_dwordx2 {vr(vE, 2)}, v{vFLV}, {sr(SFL)}, 0 offen sc1')
        e.label('L_nopub')
        nbar[0] -= 1; mark()
    else:
        e(f's_cmp_lg_u32 s{sW}, 0')
        e('s_cbranch_scc1 L_w123')
        e(f'buffer_load_dwordx2 v[4:5], v1, {sr(SFL)}, 0 offen sc1')
        e('s_waitcnt vmcnt(0)')
        e('s_barrier')
        e(f'buffer_store_dwordx2 {vr(vE, 2)}, v{vFLV}, {sr(SFL)}, 0 offen sc1')
        mark()
        e('s_branch L_chk')
        e.label('L_poll')
        e.S = State()
        e(f'buffer_load_dwordx2 v[4:5], v1, {sr(SFL)}, 0 offen sc1')
        e(f's_sub_u32 s{sCNT}, s{sCNT}, 1')
        e('s_cbranch_scc1 L_rel')
        e('s_waitcnt vmcnt(0)')
        e.label('L_chk')
        e(f'v_cmp_ne_u64 vcc, v[4:5], {vr(vE, 2)}')
        e('s_nop 0')
        e(f's_and_b32 s{sRDY}, vcc_lo, s{sTODO}')
        e('s_cbranch_scc1 L_poll')
        e('s_branch L_rel')
        e.label('L_w123')
        e('s_waitcnt vmcnt(0)')
        e('s_barrier')
        nbar[0] -= 1; mark()
    e.label('L_rel')
    e('s_barrier')
    e(f's_add_u32 m0, s{sLB}, 16384')
    e(f's_add_u32 s{sOFF}, s{sMB}, {8*73728 - 1024}')
    e(f'buffer_load_dwordx4 v{vMV}, {sr(SPR)}, s{sMB} offen {opts["ld"]} lds')
    e(f'buffer_load_dwordx4 v{vMV}, {sr(SPR)}, s{sOFF} offen offset:1024 {opts["ld"]} lds')
    for h in range(16):
        if opts['wgf'] == 2:
            e(f'buffer_load_dwordx4 {ar(4*h, 4)}, v{vL16}, {sr(SPR)}, s{sUA} offen {opts["ld"]}')
            if h < 15: e(f's_add_u32 s{sUA}, s{sUA}, 73728')
            continue
        if h % 4 == 0: e(f's_add_u32 m0, s{sLB}, {h*1024}')
        off = f' offset:{(h%4)*1024}' if h % 4 else ''
        e(f'buffer_load_dwordx4 v{vL16}, {sr(SPR)}, s{sUA} offen{off} {opts["ld"]} lds')
        if h < 15: e(f's_add_u32 s{sUA}, s{sUA}, {73728 - 1024 if h % 4 != 3 else 73728 + 3072}')
else:
    if opts['r0'] == 2: e(f'buffer_load_dwordx2 v[4:5], v1, {sr(SFL)}, 0 offen sc1', 'POLL')
    if opts['r0'] == 1:
        e.wait_vm({'POLL'})
        e(f'v_cmp_eq_u64 vcc, v[4:5], {vr(vE, 2)}')
        e('s_nop 0')
        e(f's_and_b32 s{sRDY}, vcc_lo, 0xffff')
        e(f's_andn2_b32 s{sTODO}, s{sTODO}, s{sRDY}')
        masked_round()
    while pub < 9: put(publish(pub)); pub += 1
    mark()
    if opts['r0'] == 2:
        e.wait_vm({'POLL'})
        e('s_branch L_chk')
    e.label('L_poll')
    e.S = State()
    if opts['sleep']: e(f's_sleep {opts["sleep"]}')
    e(f'buffer_load_dwordx2 v[4:5], v1, {sr(SFL)}, 0 offen {opts["pp"]}')
    e(f's_sub_u32 s{sCNT}, s{sCNT}, 1')
    e('s_cbranch_scc1 L_go')
    e('s_waitcnt vmcnt(0)')
    e.label('L_chk')
    e(f'v_cmp_eq_u64 vcc, v[4:5], {vr(vE, 2)}')
    e('s_nop 0')
    if opts['rtrace']:
        e('s_memrealtime s[98:99]'); e('s_waitcnt lgkmcnt(0)')
        e(f's_sub_u32 s30, {opts["spin"]}, s{sCNT}')
        e('s_min_u32 s30, s30, 30')
        e(f's_and_b32 s31, vcc_lo, s{sTODO}')
        e('s_mov_b32 m0, s30')
        e(f'v_writelane_b32 v{vPA}, s98, m0')
        e('s_add_u32 m0, s30, 31')
        e(f'v_writelane_b32 v{vPA}, s31, m0')
    e(f's_and_b32 s{sRDY}, vcc_lo, s{sTODO}')
    if opts['allrdy'] == 1:
        e(f's_cmp_eq_u32 s{sRDY}, -1')
        e('s_cbranch_scc0 L_poll')
    if opts['allrdy'] == 2:
        e(f's_and_b32 s{sI}, s{sRDY}, 0xffff')
        e(f's_cmp_eq_u32 s{sI}, 0xffff')
        e(f's_cselect_b32 s{sI}, -1, 0xffff0000')
        e(f's_and_b32 s{sRDY}, s{sRDY}, s{sI}')
    e(f's_cmp_ge_u32 s{sRDY}, 0xffff0000')
    e('s_cbranch_scc0 L_nomini')
    e(f's_add_u32 m0, s{sLB}, 16384')
    e(f's_add_u32 s{sOFF}, s{sMB}, {8*73728 - 1024}')
    e(f'buffer_load_dwordx4 v{vMV}, {sr(SPR)}, s{sMB} offen {opts["ld"]} lds')
    e(f'buffer_load_dwordx4 v{vMV}, {sr(SPR)}, s{sOFF} offen offset:1024 {opts["ld"]} lds')
    e(f's_and_b32 s{sTODO}, s{sTODO}, 0xffff')
    e.label('L_nomini')
    e(f's_and_b32 s{sRDY}, s{sRDY}, 0xffff')
    e('s_cbranch_scc0 L_noround')
    e(f's_andn2_b32 s{sTODO}, s{sTODO}, s{sRDY}')
    masked_round()
    e.label('L_noround')
    e(f's_cmp_lg_u32 s{sTODO}, 0')
    e('s_cbranch_scc1 L_poll')
if opts['wgf'] == 2:
    mark()
    e('s_waitcnt vmcnt(16)')
    for m in range(2):
        for sec in range(2): e(f'ds_read_b64_tr_b16 {ar(64+4*m+2*sec, 2)}, v{vMR} offset:{16384 + m*64 + sec*512}')
    for m in range(2): e(f'{MF} {vr(vO+16*m, 16)}, {ar(64+4*m, 4)}, {vr(vNM, 4)}, 0')
    cv = []; stv = []
    for m in range(2):
        for c in range(2):
            d = vO + 32 + 8 * m + 4 * c
            cv += [f'v_cvt_pk_bf16_f32 v{d+p}, v{vO+16*m+8*c+2*p}, v{vO+16*m+8*c+2*p+1}' for p in range(4)]
            so = sOM if m == 0 else sI
            stv.append(f'buffer_store_dwordx4 {vr(d, 4)}, v{vMO}, {sr(SOUT)}, s{so} offen offset:{c*1152} {opts["out"]}')
    e(f's_add_u32 s{sI}, s{sOM}, 4608')
    for h in range(16):
        e(f's_waitcnt vmcnt({15-h})')
        e(f'{MF} {vr(vS, 16)}, {ar(aPERM, 4)}, {ar(4*h, 4)}, ' + ('0' if h == 0 else vr(vS, 16)))
        if 5 <= h < 13: put(cv[2*(h-5):2*(h-5)+2])
    mark()
    put(stv)
    for p in range(4): e(f'v_cvt_pk_bf16_f32 v{vP+p}, v{vS+2*p}, v{vS+2*p+1}')
    e(f'buffer_store_dwordx4 {vr(vP, 4)}, v2, {sr(SOUT)}, s{sOO} offen {opts["out"]}')
else:
    e.label('L_go')
    mark()
    e('s_waitcnt vmcnt(0)')
    mark()
    for m in range(2):
        for sec in range(2): e(f'ds_read_b64_tr_b16 {ar(64+4*m+2*sec, 2)}, v{vMR} offset:{16384 + m*64 + sec*512}')
    for h in range(16): e(f'ds_read_b128 {ar(4*h, 4)}, v3 offset:{h*1024}')
    for m in range(2): e(f'{MF} {vr(vO+16*m, 16)}, {ar(64+4*m, 4)}, {vr(vNM, 4)}, 0')
    mini = []
    for m in range(2):
        for c in range(2):
            d = vO + 32 + 8 * m + 4 * c
            mini += [f'v_cvt_pk_bf16_f32 v{d+p}, v{vO+16*m+8*c+2*p}, v{vO+16*m+8*c+2*p+1}' for p in range(4)]
            if m == 1 and c == 0: mini.append(f's_add_u32 s{sOM}, s{sOM}, 4608')
            mini.append(f'buffer_store_dwordx4 {vr(d, 4)}, v{vMO}, {sr(SOUT)}, s{sOM} offen offset:{c*1152} {opts["out"]}')
    e.weave([f'{MF} {vr(vS, 16)}, {ar(aPERM, 4)}, {ar(4*h, 4)}, ' + ('0' if h == 0 else vr(vS, 16)) for h in range(16)], [(mini, 4, 14)])
    for p in range(4): e(f'v_cvt_pk_bf16_f32 v{vP+p}, v{vS+2*p}, v{vS+2*p+1}')
    e(f'buffer_store_dwordx4 {vr(vP, 4)}, v2, {sr(SOUT)}, s{sOO} offen {opts["out"]}')
e.label('L_done')
if opts['spinx'] >= 0:
    e('s_waitcnt vmcnt(0)')
    mark()
    e('s_memrealtime s[96:97]')
    e('s_waitcnt lgkmcnt(0)')
    e('s_sub_u32 s98, s98, s100')
    e('s_lshl_b32 s98, s98, 2')
    e('s_add_u32 s98, s98, s96')
    e.label('L_spinx')
    e('s_memrealtime s[96:97]')
    e('s_waitcnt lgkmcnt(0)')
    e('s_sub_u32 s97, s96, s98')
    e('s_cmp_lt_i32 s97, 0')
    e('s_cbranch_scc1 L_spinx')
if PROF:
    mark()
    e('s_waitcnt vmcnt(0)')
    mark(); mark()
    e(f'v_writelane_b32 v{vPA}, s96, 63')
    mk_srd(SWS, 18, None, 0x10000000)
    e('s_lshl_b32 s62, s2, 11')
    e('s_add_u32 s62, s62, 0x9000000')
    e('v_and_b32 v2, 63, v0'); e('v_lshrrev_b32 v3, 6, v0'); e('v_lshlrev_b32 v2, 2, v2'); e('v_lshl_add_u32 v2, v3, 9, v2')
    e(f'buffer_store_dword v{vPA}, v2, {sr(SWS)}, s62 offen')
    e(f'buffer_store_dword v{vPB}, v2, {sr(SWS)}, s62 offen offset:256')
    print('bars', nbar[0], file=sys.stderr)
e.label('L_end')
e('s_endpgm')
e.label('L_epoch_spin')
e.S = State()
e(f's_mov_b32 s3, {opts["spin"]}')
e('v_mov_b32 v1, 0')
e.label('L_epoch_loop')
e(f'buffer_load_dwordx2 {vr(vE, 2)}, v1, {sr(SDBG)}, 0 offen sc1')
e('s_sub_u32 s3, s3, 1')
e('s_cbranch_scc1 L_epoch_ok')
e('s_waitcnt vmcnt(0)')
e(f'v_or_b32 v2, v{vE}, v{vE+1}')
e('v_cmp_eq_u32 vcc, 0, v2')
e('s_cbranch_vccnz L_epoch_loop')
e('s_branch L_epoch_ok')
for t in stubs:
    e.label(f'L_stub{t}')
    e.raw(f'    s_call_b64 s[{sRET}:{sRET+1}], L_rescale')
    e.raw(f'    s_branch L_back{t}')
e.label('L_rescale')
e.S = State()
e('s_nop 15'); e('s_nop 15')
e(f'v_mov_b32 v{vMX+1}, v{vMX}')
e(f'v_permlane32_swap_b32 v{vMX}, v{vMX+1}')
e(f'v_max3_f32 v{vMX}, v{vMX}, v{vMX+1}, 0')
e(f'v_ceil_f32 v{vMX}, v{vMX}')
e(f'v_exp_f32 v{vMX+1}, -v{vMX}')
for r in range(48): e(f'v_sub_f32 v{vS+r}, v{vS+r}, v{vMX}')
for r in range(68): e(f'v_mul_f32 v{vO+r}, v{vO+r}, v{vMX+1}')
for r in range(16):
    e(f'v_lshlrev_b32 v2, 16, v{vP+r}')
    e(f'v_and_b32 v3, 0xffff0000, v{vP+r}')
    e(f'v_mul_f32 v2, v2, v{vMX+1}')
    e(f'v_mul_f32 v3, v3, v{vMX+1}')
    e(f'v_cvt_pk_bf16_f32 v{vP+r}, v2, v3')
e('s_nop 3')
e(f's_setpc_b64 s[{sRET}:{sRET+1}]')
e.label('L_textend')

hdr = f"""; GQA block for gfx950: out = softmax((x wq) k^T / sqrt(128)) v wo, one fused kernel (generated by gen/gen11.py)
; per-launch nonce published through d_debug).  All tiles travel by LDS-DMA with source-side swizzles.
; @launch grid=(256,1,1) block=(256,1,1) lds=163840
.amdgcn_target "amdgcn-amd-amdhsa--gfx950"
.text
"""
kd = f""".section .rodata,"a"
.p2align 6
.amdhsa_kernel {K}
  .amdhsa_next_free_vgpr 512
  .amdhsa_next_free_sgpr 102
  .amdhsa_accum_offset 256
  .amdhsa_group_segment_fixed_size 0
  .amdhsa_kernarg_size 64
  .amdhsa_user_sgpr_count 2
  .amdhsa_user_sgpr_kernarg_segment_ptr 1
  .amdhsa_system_sgpr_workgroup_id_x 1
.end_amdhsa_kernel
"""
open(sys.argv[1], 'w').write(hdr + e.text() + kd)
print(e.count, 'nops', e.nops, file=sys.stderr)
```

```python
import sys, math, struct
from emit import Emit, State

NAME = "standalone__gqa_block_cached__near_ridge"
opts = dict(kv="nt", wq="", x="", wo="", st="sc1", ld="sc1", T=8.0, prof=0, cpf=1, lag=9,
            kvplan="a", spin=200000, spinx=-1, fsh=3, sleep=0, allrdy=0, gmask=1, b1=14, la=9, one=0, pm='', pk=0, nost=0, nowo=0, nopub=0, apl='0,1,1,1,1,2,2,2,2,2,2,2', bwo='1,3,5,7,12,12,13,13,15,15', awo='1,1,4,4,12,12,13,13,15,15', brd='7,10', ard='2,6', opl=1, pollpos=0, out='', krot=0, qrot=0, sent=0, w2=1, slack=0, x_=0, half=0, kv0=0, thr=0, nofast=0, roto=1, rtrace=0, r0=2, pg=13, one_flag=1, fls=7, two=0, pp='sc1', fp='sc1', full=0, tlb=-1, tsh=16, pp0=0, wqfirst=1, qrd=6, wgf=2, nreg=0, mp=1, wof=1, kearly=1, oplan='2,2,3,3,4,4', epg=8, xrot=7)
for a in sys.argv[2:]:
    k, v = a.split('=')
    opts[k] = type(opts[k])(v) if not isinstance(opts[k], str) else v.replace('+', ' ')
PROF = opts['prof']
TM = 's_memrealtime' if PROF == 2 else 's_memtime'
PM = set(int(x) for x in opts['pm'].split(',')) if opts['pm'] else None
def f32(x): return '0x%08x' % struct.unpack('<I', struct.pack('<f', x))[0]

e = Emit(); e.roles = ['A', 'B']
SX, SK, SV, SWQ, SWO, SWS = 20, 24, 28, 32, 36, 40
SFL, SPR, SOUT, SDBG = 80, 84, 88, 92
sW, sHKV, sB, sROT = 44, 45, 46, 47
sT0, sT1, sT2 = 48, 49, 52
sRET = 50
sWQ, sWO, sST = 53, 54, 55
sM0W, sM0T = 56, 57
sSC = 58
sXO, sFL, sM0Q, sJOB = 60, 61, 62, 63
sTILE = 64
vKR = 16; vVR = 40
vKa, vKb, vVc = 52, 53, 54
vWOR = 55; vXW, vXR = 61, 62; vWOV = 63; vSTV = 67
vMX = 68; vINV = 70
vPA, vPB = 72, 73
vE = 74
vFLV = 76
vL16 = 77
vS = 80; vNM = 112; vP = 128; vO = 144; vL = 208; vQ = 224
vXRD = 80; vWQR = 88; vXa, vXb = 96, 97; vWQV = 100
aX = 0; aWQ = 144; aONE = 240; aPERM = 244
aK = 0; aV = 32; aWO = 64; aOO = 192
def aVB(t): return aV if t % 2 else aOO
FL_OFF = 256 * 73728
FSH = opts['fsh']; FG = 16 << FSH

def vr(b, n): return f'v[{b}:{b+n-1}]'
def ar(b, n): return f'a[{b}:{b+n-1}]'
def sr(b, n=4): return f's[{b}:{b+n-1}]'
MF = 'v_mfma_f32_32x32x16_bf16'
def win(off): return off >> 16, off & 0xffff

nbar = [0]
def mark():
    if not PROF or (PM is not None and nbar[0] not in PM):
        if nbar[0] == opts['spinx']: e('s_memrealtime s[98:99]')
        nbar[0] += 1
        return
    if PM is not None:
        i = nbar[0]; nbar[0] += 1
        e(f'{TM} s[98:99]'); e('s_waitcnt lgkmcnt(0)'); e(f'v_writelane_b32 v{vPB}, s98, {i}')
        return
    i = nbar[0]; nbar[0] += 1
    e(f'{TM} s[98:99]'); e('s_waitcnt lgkmcnt(0)')
    e(f'v_writelane_b32 v{vPA}, s98, {i}')
    if i > 0: e(f'v_writelane_b32 v{vPB}, s100, {i-1}')
    e(f'{TM} s[100:101]')
def bar(tags, lgkm0=True):
    if not PROF or PM is not None:
        e.wait_vm(tags, lgkm0=lgkm0); e('s_barrier')
        mark()
        return
    i = nbar[0]; nbar[0] += 1
    e(f'{TM} s[98:99]'); e('s_waitcnt lgkmcnt(0)')
    e(f'v_writelane_b32 v{vPA}, s98, {i}')
    if i > 0: e(f'v_writelane_b32 v{vPB}, s100, {i-1}')
    e.wait_vm(tags, lgkm0=lgkm0); e('s_barrier')
    e(f'{TM} s[100:101]')

def put(items):
    for it in items:
        if callable(it): it()
        elif isinstance(it, tuple): e(it[0], it[1])
        else: e(it)
def wrap_adv(r, step, lim, tmp):
    def f():
        e(f's_sub_u32 s{tmp}, s{r}, {lim}')
        e(f's_cselect_b32 s{r}, s{r}, s{tmp}')
    return [f's_add_u32 s{r}, s{r}, {step}', f]
def dma(v, srd, so, off, pol, tag):
    o = f' offset:{off}' if off else ''
    p = f' {pol}' if pol else ''
    return (f'buffer_load_dwordx4 v{v}, {sr(srd)}, {so} offen{o}{p} lds', tag)

KVORD = ['K0'] + sum(([f'K{t+1}', f'V{t}'] for t in range(15)), []) + ['V15']
KVSLOT = {}
def set_group(g):
    for n, nm in enumerate(KVORD):
        KVSLOT[nm] = n if (g == 'A' and n in (12, 13)) else (n + 4) % 12
XSLOT = [9, 10, 11, 0, 1, 2, 3, 12, 13]
def kv(n):
    nm = KVORD[n]; t = int(nm[1:]); isk = nm[0] == 'K'
    srd = SK if isk else SV
    return [f's_add_u32 m0, s{sM0W}, {KVSLOT[nm]*8192}',
            dma(vKa if isk else vVc, srd, f's{sTILE+t}', 0, opts['kv'], nm),
            dma(vKb if isk else vVc, srd, f's{sTILE+t}', 1024, opts['kv'], nm)]
STG = ['a[224:227]', 'a[228:231]', 'a[232:235]', 'a[236:239]', 'a[248:251]', 'a[252:255]', 'v[216:219]', 'v[220:223]']
def kv_reg(n):
    nm = KVORD[n]; t = int(nm[1:]); isk = nm[0] == 'K'
    srd = SK if isk else SV; i = 2 * (n - 14); p = f' {opts["kv"]}' if opts['kv'] else ''
    return [(f'buffer_load_dwordx4 {STG[i]}, v{vKa if isk else vVc}, {sr(srd)}, s{sTILE+t} offen{p}', 'STG'),
            (f'buffer_load_dwordx4 {STG[i+1]}, v{vKb if isk else vVc}, {sr(srd)}, s{sTILE+t} offen offset:1024{p}', 'STG')]
def kv_wr(n):
    i = 2 * (n - 14); o = KVSLOT[KVORD[n]] * 8192
    a = vSTV if o < 65536 else 215
    return [f'ds_write_b128 v{a}, {STG[i]} offset:{o & 0xffff}', f'ds_write_b128 v{a}, {STG[i+1]} offset:{(o & 0xffff) + 1024}']
def xt(j):
    return [f's_add_u32 m0, s{sM0W}, {XSLOT[j]*8192}',
            dma(vXa, SX, f's{sXO}', 0, opts['x'], f'X{j}'),
            dma(vXb, SX, f's{sXO}', 1024, opts['x'], f'X{j}')] + wrap_adv(sXO, 128, 1152, sT1)
def wq_stage(s):
    it = [f's_add_u32 m0, s{sM0Q}, {(14 + 2*(s%3))*8192}']
    it += [dma(vWQV + p, SWQ, f's{sWQ}', p * 1024, opts['wq'], f'WQ{s}') for p in range(4)]
    return it + wrap_adv(sWQ, 2 * 131072, 36 * 131072, sT1)
WOG = [4, 4, 3, 4, 0, 1, 2, 3, 4]
XG = 2
RG = 1
def wo_half(j, half):
    it = [f's_add_u32 m0, s{sM0T}, {4*WOG[j]*8192 + half*4096}']
    if half: it.append(f's_add_u32 s{sT0}, s{sWO}, 36864')
    it += [dma(vWOV + p, SWO, f's{sT0 if half else sWO}', p * 1024, opts['wo'], f'WO{j}') for p in range(4)]
    return it + (wrap_adv(sWO, 128, 1152, sT1) if half else [])
def wo_cb(j): return wo_half(j, 0) + wo_half(j, 1)

def mk_srd(d, ptr, addlo, nbytes):
    if addlo is None:
        e(f's_mov_b32 s{d}, s{ptr}'); e(f's_and_b32 s{d+1}, s{ptr+1}, 0xffff')
    else:
        e(f's_add_u32 s{d}, s{ptr}, {addlo}')
        e(f's_addc_u32 s{d+1}, s{ptr+1}, 0')
        e(f's_and_b32 s{d+1}, s{d+1}, 0xffff')
    e(f's_mov_b32 s{d+2}, {nbytes}')
    e(f's_mov_b32 s{d+3}, 0x00020000')

def rd_x(j):
    w_, o = win(XSLOT[j] * 8192)
    return [f'ds_read_b128 {ar(aX+4*(4*j+ks), 4)}, v{vXRD + 4*w_ + ks} offset:{o}' for ks in range(4)]
def rd_wq(stage):
    it = []
    for ks in range(2):
        w_, o = win((14 + 2 * (stage % 3) + ks) * 8192)
        for u in range(4):
            d = aWQ + 32 * (stage % 2) + (ks * 4 + u) * 4
            for sec in range(2):
                it.append(f'ds_read_b64_tr_b16 {ar(d+2*sec, 2)}, v{vWQR + 4*(w_-1) + u} offset:{o + sec*1024}')
    return it
def mf_q(stage, order=None):
    it = []
    idx = [(ks, u) for ks in range(2) for u in range(4)] if order is None else order
    for ks, u in idx:
        d = aWQ + 32 * (stage % 2) + (ks * 4 + u) * 4
        c = '0' if (stage == 0 and ks == 0) else vr(vO + 16 * u, 16)
        it.append(f'{MF} {vr(vO+16*u, 16)}, {ar(d, 4)}, {ar(aX + 4*(2*stage+ks), 4)}, {c}')
    return it
def aKB(t): return aV if t == 1 else aK
def rd_k(t):
    w_, o = win(KVSLOT[f'K{t}'] * 8192)
    return [f'ds_read_b128 {ar(aKB(t)+4*s, 4)}, v{vKR + 8*w_ + s} offset:{o}' for s in range(8)]
def rd_v(t):
    w_, o = win(KVSLOT[f'V{t}'] * 8192)
    it = []
    for a in range(2):
        for tt in range(4):
            d = aVB(t) + (a * 4 + tt) * 4
            for sec in range(2):
                it.append(f'ds_read_b64_tr_b16 {ar(d+2*sec, 2)}, v{vVR + 4*w_ + tt} offset:{o + a*4096 + sec*2048}')
    return it
def mf_qk(t):
    S = vS + 16 * (t % 2)
    return [f'{MF} {vr(S, 16)}, {ar(aKB(t)+4*s, 4)}, {vr(vQ+4*s, 4)}, ' + (vr(S, 16) if s else ('0' if t <= 1 else vr(vNM, 16))) for s in range(8)]
def mf_pv(t):
    P = vP + 8 * (t % 2)
    it = []
    for a in range(2):
        for tt in range(4):
            c = '0' if (t == 0 and a == 0) else vr(vO + 16 * tt, 16)
            it.append(f'{MF} {vr(vO+16*tt, 16)}, {ar(aVB(t) + (a*4+tt)*4, 4)}, {vr(P+4*a, 4)}, {c}')
        it.append(mf_l(t, a))
    return it
def mf_l(t, a):
    P = vP + 8 * (t % 2)
    c = '0' if (t == 0 and a == 0) else vr(vL, 4)
    return f'v_mfma_f32_16x16x32_bf16 {vr(vL, 4)}, {ar(aONE, 4)}, {vr(P+4*a, 4)}, {c}'
def sm_max(t):
    S = vS + 16 * (t % 2)
    it = [f'v_max3_f32 v{vMX}, v{S}, v{S+1}, v{S+2}', f'v_max3_f32 v{vMX+1}, v{S+3}, v{S+4}, v{S+5}']
    k = 6; d = 0
    while k < 16:
        it.append(f'v_max3_f32 v{vMX+d}, v{vMX+d}, v{S+k}, v{S+k+1}'); k += 2; d ^= 1
    it.append(f'v_max_f32 v{vMX}, v{vMX}, v{vMX+1}')
    return it
stubs = []
def sm_check(t0):
    t = f'{e.roles[0]}{t0}'
    def f():
        e(f'v_cmp_lt_f32 vcc, {f32(opts["T"])}, v{vMX}')
        e(f's_cbranch_vccnz L_stub{t}')
        e.label(f'L_back{t}')
        stubs.append(t)
    return [f]
def sm_exp(t):
    S = vS + 16 * (t % 2); P = vP + 8 * (t % 2)
    it = [f'v_exp_f32 v{S}, v{S}', f'v_exp_f32 v{S+1}, v{S+1}']
    for p in range(8):
        if p < 7: it += [f'v_exp_f32 v{S+2*p+2}, v{S+2*p+2}', f'v_exp_f32 v{S+2*p+3}, v{S+2*p+3}']
        it.append(f'v_cvt_pk_bf16_f32 v{P+p}, v{S+2*p}, v{S+2*p+1}')
    return it
def rd_wo(j):
    w_, o = win(WOG[j] * 32768)
    it = []
    for oth in range(2):
        for f in range(8):
            d = aWO + 64 * (j % 2) + (oth * 8 + f) * 4
            for sec in range(2):
                it.append(f'ds_read_b64_tr_b16 {ar(d+2*sec, 2)}, v{vWOR + 2*w_ + oth} offset:{o + f*2048 + sec*1024}')
    return it
def mf_o(j):
    acc = vS + 16 * (j % 2)
    it = []
    for oth in range(2):
        for f in range(8):
            d = aWO + 64 * (j % 2) + (oth * 8 + f) * 4
            b = vr(vQ + 4 * f, 4) if oth == 0 else ar(aOO + 4 * f, 4)
            c = '0' if (oth == 0 and f == 0) else vr(acc, 16)
            it.append(f'{MF} {vr(acc, 16)}, {ar(d, 4)}, {b}, {c}')
    return it
def ep_o(j):
    acc = vS + 16 * (j % 2); P = vP + 8 * (j % 2)
    it = []
    for h in range(2):
        for p in range(4):
            it.append(f'v_cvt_pk_bf16_f32 v{P+4*h+p}, v{acc+8*h+2*p}, v{acc+8*h+2*p+1}')
        off = ' offset:1024' if h else ''
        if not opts['nost'] and not (opts['half'] and j in (1, 2, 3, 4)): it.append((f'buffer_store_dwordx4 {vr(P+4*h, 4)}, v{vSTV}, {sr(SWS)}, s{sTILE+j} offen{off} {opts["st"]}', f'ST{j}'))
    return it
def publish(j):
    def f():
        if opts['one_flag']:
            FLS = opts['fls']
            if j == 8 or (opts['two'] and j == opts['two']):
                if j == 8: e('s_waitcnt vmcnt(0)')
                else: e.wait_vm({f'ST{j}'})
                so = '0' if j == 8 else f's{sFL}'
                e(f'buffer_store_dwordx2 {vr(vE, 2)}, v{vFLV}, {sr(SFL)}, {so} offen {opts["fp"]}', 'FL')
            return
        e.wait_vm({f'ST{j}'})
        so, off = ('0', j * 512) if j < 8 else (f's{sFL}', 0)
        e(f'buffer_store_dwordx2 {vr(vE, 2)}, v{vFLV}, {sr(SFL)}, {so} offen offset:{off} sc1', 'FL')
    return [f]

K = NAME + '_kernel'
e.raw(f'.globl {K}\n.p2align 8\n.type {K},@function\n{K}:')
e('s_cmp_ge_u32 s2, 256')
e('s_cbranch_scc1 L_end')
e('s_load_dwordx8 s[4:11], s[0:1], 0')
e('s_load_dwordx8 s[12:19], s[0:1], 32')
e('s_memrealtime s[100:101]')
if PROF: e(f'{TM} s[96:97]')
if opts['cpf']:
    e('s_getpc_b64 s[98:99]')
    e.label('L_pc')
    e('s_lshr_b32 s3, s2, 3')
    e('v_lshl_add_u32 v9, s3, 4, v0')
    e('v_lshlrev_b32 v9, 7, v9')
    e(f'v_min_u32 v9, L_textend-L_pc-4, v9')
    e('v_cmp_gt_u32 vcc, 16, v0')
    e('s_and_saveexec_b64 s[20:21], vcc')
    e('s_cbranch_execz L_nocpf')
    e.raw('    global_load_dword v12, v9, s[98:99]')
    e.label('L_nocpf')
    e('s_mov_b64 exec, -1')
e('v_lshrrev_b32 v1, 6, v0')
e(f's_lshr_b32 s{sB}, s2, 4')
e(f'v_readfirstlane_b32 s{sW}, v1')
e(f's_sub_u32 s{sT0}, s{sB}, 9')
e(f's_cselect_b32 s3, s{sB}, s{sT0}')
if opts['xrot']:
    e(f's_and_b32 s{sT0}, s2, {opts["xrot"]}')
    e(f's_add_u32 s3, s3, s{sT0}')
    e(f's_sub_u32 s{sT0}, s3, 9')
    e(f's_cselect_b32 s3, s3, s{sT0}')
e(f's_lshl_b32 s{sWQ}, s3, 19')
e(f's_lshl_b32 s{sXO}, s3, 7')
e(f's_mul_i32 s{sT0}, s{sB}, 73728')
e(f's_lshl_b32 s{sM0W}, s{sW}, 11')
e('v_bfe_u32 v2, v0, 3, 3')
e('v_and_b32 v3, 7, v0')
e('v_lshrrev_b32 v6, 1, v2')
e('v_xor_b32 v7, v3, v6')
e('v_lshlrev_b32 v7, 4, v7')
e('v_mul_u32_u24 v8, 1152, v2')
e('v_mul_u32_u24 v9, 18432, v1')
e('v_add_u32 v9, v9, v8')
e(f'v_add_u32 v{vXa}, v9, v7')
e('v_xor_b32 v7, 64, v7')
e(f'v_add_u32 v{vXb}, v9, v7')
e(f'v_add_u32 v{vXb}, 8192, v{vXb}')
e(f's_and_b32 s{sHKV}, s2, 7')
e(f's_lshl_b32 s{sHKV}, s{sHKV}, 1')
e(f's_bfe_u32 s{sT2}, s2, 0x10003')
e(f's_add_u32 s{sHKV}, s{sHKV}, s{sT2}')
e(f's_lshl_b32 s{sM0Q}, s{sW}, 12')
e(f's_lshl_b32 s{sT2}, s{sHKV}, 9')
e('v_bfe_u32 v4, v0, 4, 2')
e('v_and_b32 v5, 15, v0')
e('v_lshlrev_b32 v7, 2, v4')
e('v_xor_b32 v7, v5, v7')
e('v_lshlrev_b32 v7, 4, v7')
e('v_lshl_add_u32 v9, v4, 13, v7')
e('v_lshrrev_b32 v10, 1, v1')
e('v_lshl_add_u32 v9, v10, 17, v9')
e('v_and_b32 v10, 1, v1')
e(f'v_lshl_add_u32 v{vWQV}, v10, 8, v9')
for p in range(1, 4): e(f'v_add_u32 v{vWQV+p}, {p*31744}, v{vWQV}')
def pmark(i):
    if opts['pp0']:
        e(f'{TM} s[98:99]'); e('s_waitcnt lgkmcnt(0)'); e(f'v_writelane_b32 v{vPB}, s98, {i}')
e('s_waitcnt lgkmcnt(0)')
pmark(54)
if opts['wqfirst'] == 2:
    mk_srd(SX, 4, f's{sT0}', 73728)
    put(xt(0)); put(xt(1))
    mk_srd(SWQ, 10, f's{sT2}', 4718592 - 15 * 512)
    put(wq_stage(0)); put(wq_stage(1))
elif opts['wqfirst']:
    mk_srd(SWQ, 10, f's{sT2}', 4718592 - 15 * 512)
    put(wq_stage(0)); put(wq_stage(1))
    mk_srd(SX, 4, f's{sT0}', 73728)
    put(xt(0)); put(xt(1))
else:
    mk_srd(SX, 4, f's{sT0}', 73728)
    put(xt(0))
    mk_srd(SWQ, 10, f's{sT2}', 4718592 - 15 * 512)
    put(wq_stage(0))
    put(xt(1)); put(wq_stage(1))
pmark(55)
e('v_lshl_add_u32 v9, v4, 8, v7')
e(f'v_lshl_add_u32 v{vVc}, v1, 11, v9')
e('v_xor_b32 v7, v5, v4')
e('v_lshlrev_b32 v7, 4, v7')
e('v_lshl_add_u32 v9, v4, 8, v7')
e('v_lshlrev_b32 v10, 7, v10')
e('v_xor_b32 v9, v9, v10')
e(f'v_lshl_add_u32 v{vKa}, v1, 11, v9')
e(f'v_xor_b32 v{vKb}, 64, v{vKa}')
for t in range(16): e(f's_mov_b32 s{sTILE+t}, {t*8192}')
e(f's_lshl_b32 s{sM0T}, s{sW}, 13')
e(f's_lshr_b32 s{sROT}, s{sB}, 1')
e(f's_lshl_b32 s{sWO}, s{sROT}, 7')
e(f's_lshl_b32 s{sJOB}, s{sB}, 4')
e(f's_add_u32 s{sJOB}, s{sJOB}, s{sHKV}')
e(f's_lshl_b32 s3, s{sJOB}, 17')
mk_srd(SK, 6, 's3', 131072)
mk_srd(SV, 8, 's3', 131072)
mk_srd(SDBG, 16, None, 256)
e('s_cmp_lg_u32 s2, 0')
e('s_cbranch_scc1 L_noepoch')
e('v_lshlrev_b32 v9, 8, v0')
e('v_mov_b32 v10, s100'); e('v_mov_b32 v11, s101')
e(f'buffer_store_dwordx2 v[10:11], v9, {sr(SDBG)}, 0 offen sc1')
e.vm['A'].pop(); e.vm['B'].pop()
e.label('L_noepoch')

if opts['krot']:
    e(f's_mul_i32 s3, s{sJOB}, {opts["krot"]}')
    e(f's_lshr_b32 s{sT0}, s{sJOB}, 4')
    e(f's_add_u32 s3, s3, s{sT0}')
    e('s_lshl_b32 s3, s3, 13')
    for t in range(16):
        e(f's_add_u32 s{sTILE+t}, s3, {t*8192}')
        e(f's_and_b32 s{sTILE+t}, s{sTILE+t}, 0x1e000')
e(f's_mul_i32 s3, s{sHKV}, 294912')
mk_srd(SWO, 12, 's3', 294912)
e(f's_mul_i32 s3, s{sJOB}, 73728')
mk_srd(SWS, 18, 's3', 73728)
FB = (128 << opts['fls']) if opts['one_flag'] else 36 * FG
e(f's_mul_i32 s3, s{sB}, {FB}')
e(f's_add_u32 s3, s3, {FL_OFF}')
mk_srd(SFL, 18, 's3', FB)
e(f's_mul_i32 s3, s{sB}, {16*73728}')
mk_srd(SPR, 18, 's3', 16 * 73728)
e(f's_mul_i32 s3, s{sB}, 73728')
mk_srd(SOUT, 14, 's3', 73728)
sc = math.log2(math.e) / math.sqrt(128.0)
e(f's_mov_b32 s{sSC}, {f32(sc)}'); e(f's_mov_b32 s{sSC+1}, {f32(sc)}')
e('v_bfe_u32 v9, v0, 5, 1')
e('v_and_b32 v10, 31, v0')
e('v_bfe_u32 v11, v0, 2, 2')
e('v_and_b32 v7, 3, v0')
e('v_bfe_u32 v13, v0, 4, 1')
e('v_and_b32 v14, 1, v1')
e('v_lshl_add_u32 v14, v14, 5, v10')
e('v_bfe_u32 v15, v14, 1, 3')
e('v_xor_b32 v15, v15, v9')
e('v_lshlrev_b32 v15, 4, v15')
e(f'v_lshl_add_u32 v{vXRD}, v14, 7, v15')
for ks in range(1, 4): e(f'v_xor_b32 v{vXRD+ks}, {ks*32}, v{vXRD}')
for ks in range(4): e(f'v_add_u32 v{vXRD+4+ks}, 0x10000, v{vXRD+ks}')
e('v_lshrrev_b32 v14, 1, v1')
e('v_lshlrev_b32 v14, 12, v14')
e('v_lshl_add_u32 v14, v9, 11, v14')
e('v_lshl_add_u32 v14, v11, 8, v14')
e('v_lshl_add_u32 v14, v11, 6, v14')
e('v_lshl_add_u32 v14, v13, 5, v14')
e('v_and_b32 v15, 1, v7')
e('v_lshl_add_u32 v14, v15, 4, v14')
e('v_lshrrev_b32 v15, 1, v7')
e('v_lshl_add_u32 v14, v15, 3, v14')
e(f'v_add_u32 v{vWQR}, 0x10000, v14')
for u in range(1, 4): e(f'v_xor_b32 v{vWQR+u}, {u*64}, v{vWQR}')
for u in range(4): e(f'v_add_u32 v{vWQR+4+u}, 0x10000, v{vWQR+u}')
e('v_xor_b32 v14, v9, v5')
e('v_lshlrev_b32 v14, 4, v14')
e(f'v_lshl_add_u32 v{vKR}, v10, 8, v14')
for s in range(1, 8): e(f'v_xor_b32 v{vKR+s}, {s*32}, v{vKR}')
for w_ in (1, 2):
    for s in range(8): e(f'v_add_u32 v{vKR+8*w_+s}, {w_*0x10000}, v{vKR+s}')
e('v_lshlrev_b32 v14, 10, v9')
e('v_lshl_add_u32 v14, v11, 8, v14')
e('v_lshl_add_u32 v14, v11, 6, v14')
e('v_lshl_add_u32 v14, v13, 5, v14')
e(f'v_lshl_add_u32 v{vVR}, v7, 3, v14')
for t in range(1, 4): e(f'v_xor_b32 v{vVR+t}, {t*64}, v{vVR}')
for w_ in (1, 2):
    for t in range(4): e(f'v_add_u32 v{vVR+4*w_+t}, {w_*0x10000}, v{vVR+t}')
e('v_lshrrev_b32 v4, 1, v1')
e('v_lshlrev_b32 v14, 9, v9')
e('v_lshl_add_u32 v14, v11, 7, v14')
e('v_lshrrev_b32 v15, 1, v11')
e('v_xor_b32 v15, v15, v4')
e('v_lshl_add_u32 v14, v15, 6, v14')
e('v_and_b32 v15, 1, v7')
e('v_lshl_add_u32 v14, v15, 5, v14')
e('v_lshl_add_u32 v14, v13, 4, v14')
e('v_lshrrev_b32 v15, 1, v7')
e('v_lshl_add_u32 v14, v15, 3, v14')
e(f'v_lshl_add_u32 v{vWOR}, v4, 14, v14')
e(f'v_xor_b32 v{vWOR+1}, 0x4000, v{vWOR}')
for w_ in (1, 2):
    for o in range(2): e(f'v_add_u32 v{vWOR+2*w_+o}, {w_*0x10000}, v{vWOR+o}')
e('v_and_b32 v14, 63, v0')
e(f'v_lshlrev_b32 v{vL16}, 4, v14')
e(f'v_lshl_add_u32 v{vXW}, v1, 13, v{vL16}')
e(f'v_add_u32 v{vXW}, {XG*32768}, v{vXW}')
e(f'v_xor_b32 v{vXR}, 0x4000, v{vXW}')
e(f'v_lshl_add_u32 v{vSTV}, v1, 11, v{vL16}')
if opts['full']:
    e('v_lshrrev_b32 v14, 4, v14')
    e('v_lshlrev_b32 v14, 20, v14')
    e('v_lshl_add_u32 v14, v5, 3, v14')
else: e(f'v_lshlrev_b32 v14, 20, v14')
e(f'v_lshl_add_u32 v14, v1, {opts["fls"] if opts["one_flag"] else FSH+4}, v14')
e(f's_lshl_b32 s3, s{sHKV}, {opts["fls"]+2 if opts["one_flag"] else FSH}')
e(f'v_add_u32 v{vFLV}, s3, v14')
e('v_and_b32 v14, 1, v6')
e('v_lshlrev_b32 v14, 2, v14')
e('v_xor_b32 v14, v14, v3')
e('v_lshl_add_u32 v14, v14, 4, v8')
e('v_mul_u32_u24 v15, 73728, v1')
e(f'v_add_u32 v{vWOV}, v14, v15')
for p in range(1, 4): e(f'v_add_u32 v{vWOV+p}, {p*8192}, v{vWOV}')
e('v_bfe_u32 v14, v0, 2, 1')
e('v_cmp_eq_u32 vcc, v14, v13')
e('v_mov_b32 v14, 0x3f803f80')
e('v_cndmask_b32 v14, 0, v14, vcc')
for i in range(4): e(f'v_accvgpr_write_b32 a{aONE+i}, v14')
e('v_and_b32 v14, 1, v0')
e('v_lshlrev_b32 v14, 4, v14')
e('v_lshlrev_b32 v14, v14, 0x3f80'.replace('v14, 0x3f80', 'v14, v15') if False else 'v_mov_b32 v15, 0x3f80')
e('v_lshlrev_b32 v14, v14, v15')
e('v_bfe_u32 v15, v0, 2, 1')
e('v_xor_b32 v15, v15, v9')
e('v_or_b32 v15, v15, v13')
e('v_lshlrev_b32 v15, 3, v15')
e('v_bfe_u32 v2, v0, 3, 1')
e('v_bfe_u32 v3, v0, 1, 1')
e('v_lshl_add_u32 v2, v2, 1, v3')
e('v_add_u32 v2, v2, v15')
for d in range(4):
    e(f'v_cmp_eq_u32 vcc, {d}, v2')
    e(f'v_cndmask_b32 v3, 0, v14, vcc')
    e(f'v_accvgpr_write_b32 a{aPERM+d}, v3')

def qcvt(u):
    it = []
    for p in range(8):
        r = vO + 16 * u + 2 * p
        if opts['pk']: it.append(f'v_pk_mul_f32 {vr(r, 2)}, {vr(r, 2)}, s[{sSC}:{sSC+1}]')
        else: it += [f'v_mul_f32 v{r}, s{sSC}, v{r}', f'v_mul_f32 v{r+1}, s{sSC}, v{r+1}']
    for p in range(8):
        r = vO + 16 * u + 2 * p
        it.append(f'v_cvt_pk_bf16_f32 v{vQ+8*u+p}, v{r}, v{r+1}')
    return it
def X(*js): return sum((xt(j) for j in js), [])
def KVs(*ns): return sum((kv(n) for n in ns), [])
def RX(*js): return sum((rd_x(j) for j in js), [])
if opts['rtrace']: e(f'v_mov_b32 v{vPA}, 0')
pmark(59)
put(X(2, 3, 4)); bar({'X0', 'X1', 'WQ0'}, False)
put(RX(0, 1) + rd_wq(0))
put(X(5, 6, 7)); bar({'WQ1', 'X2'})
e.weave(mf_q(0), [(rd_wq(1) + RX(2), -1, 6)])

def group_body(g):
    e.roles = [g]; set_group(g)
    WOG[0] = 4 if g == 'A' else 3
    B1 = opts['b1']
    if g == 'A':
        put(X(8) + KVs(0, 1)); bar({'X3', 'X4', 'X5'})
        e.weave(mf_q(1), [(RX(3, 4, 5), -1, 4)])
        put(KVs(2, 3, 4)); bar({'X6', 'X7', 'X8'})
        put(RX(6, 7, 8))
        put(KVs(*range(5, min(B1, 11)))); bar(set())
        put(KVs(*range(11, B1)))
        for n in range(14, 14 + opts['nreg']): put(kv_reg(n))
        if opts['nreg']: e(f'v_add_u32 v215, 0x10000, v{vSTV}')
        put(wq_stage(2) + wq_stage(3) + wq_stage(4))
        qplan = {}
        nxt = B1
        cnt = [int(x) for x in opts['apl'].split(',')]
        wot = [int(x) for x in opts['awo'].split(',')]
        rdt = tuple(int(x) for x in opts['ard'].split(','))
    else:
        put(X(8) + wq_stage(2)); bar({'X3', 'X4', 'X5'})
        e.weave(mf_q(1), [(RX(3, 4, 5), -1, 4)])
        put(wq_stage(3) + wq_stage(4)); bar({'X6', 'X7', 'X8'})
        put(RX(6, 7, 8))
        bar(set())
        LA = opts['la']
        qplan = {14: [0, 1], 15: [2, 3], 16: [4, 5], 17: list(range(6, LA - 1))}
        nxt = LA - 1
        cnt = [1] + [2] * 15
        wot = [int(x) for x in opts['bwo'].split(',')]
        rdt = tuple(int(x) for x in opts['brd'].split(','))
    bar({'WQ2'})
    put(rd_wq(2))
    bar({'WQ3'})
    for s in range(2, 16):
        d = []
        if s + 3 < 18: d += wq_stage(s + 3)
        d += KVs(*qplan.get(s, []))
        ek = rd_k(s - 14) if (opts['kearly'] and g == 'A' and s >= 14) else []
        e.weave(mf_q(s), [(rd_wq(s + 1) + ek, -1, opts['qrd'])] + ([(d, 0, 8)] if d else []))
        tags = {f'WQ{s+2}'}
        if s == 13 and g == 'A': tags |= {'K0', 'K1', 'V0'}
        bar(tags)
    r17 = rd_wq(17)
    r17 = sum((r17[2*u:2*u+2] + r17[8+2*u:8+2*u+2] for u in range(4)), [])
    mq = []
    for st, u in ((16, 0), (16, 1), (17, 0), (17, 1), (16, 2), (17, 2), (16, 3), (17, 3)):
        mq += mf_q(st, [(0, u), (1, u)])
    d = KVs(*(qplan.get(16, []) + qplan.get(17, [])))
    init0 = sm_max(0) + [f'v_mov_b32 v{vMX+1}, v{vMX}', f'v_permlane32_swap_b32 v{vMX}, v{vMX+1}', f'v_max_f32 v{vMX}, v{vMX}, v{vMX+1}'] + \
            [f'v_sub_f32 v{vS+r}, v{vS+r}, v{vMX}' for r in range(16)] + sm_exp(0) + [f'v_sub_f32 v{vNM+r}, 0, v{vMX}' for r in range(16)]
    d0 = []
    for _ in range(cnt[0]): d0 += kv(nxt); nxt += 1
    if g == 'A':
        if opts['kearly']:
            e.weave(mq + mf_qk(0), [(r17, -1, 6), (qcvt(0), 6, 10), (qcvt(1), 10, 14), (qcvt(2), 14, 18), (qcvt(3), 18, 22), (rd_v(0), 21, 24)])
        else:
            e.weave(mq + mf_qk(0), [(r17, -1, 4), (rd_k(0) + rd_k(1), 4, 8), (qcvt(0), 7, 11), (qcvt(1), 11, 14), (qcvt(2), 14, 18), (qcvt(3), 18, 22),
                                    (rd_v(0), 20, 24)])
        mark(); mark(); mark()
        e.weave(mf_qk(1), [(init0, 1, 8)] + ([(d0, -1, 2)] if d0 else []))
    else:
        e.weave(mq, [(r17, -1, 4), (d, 2, 8), (qcvt(0), 7, 11), (qcvt(1), 11, 14), (qcvt(2), 14, 16)])
        put(qcvt(3))
        mark()
        bar({'K0', 'K1', 'V0'})
        put(rd_k(0))
        e.weave(mf_qk(0), [(rd_k(1), 0, 3), (rd_v(0), 3, 8), (d0, 0, 4)])
        mark()
        e.weave(mf_qk(1), [(init0, 1, 8)])
    bar({'K2', 'V1'})
    WORD = {rdt[0]: rd_wo(0)[:16], rdt[0]+1: rd_wo(0)[16:], rdt[1]: rd_wo(1)[:16], rdt[1]+1: rd_wo(1)[16:]}
    assert wot[1] < rdt[0] and wot[3] < rdt[1] and wot[4] >= rdt[0] + 2 and wot[6] >= rdt[1] + 2 and wot[8] >= 12 and wot[0] >= 1
    if g == 'A': assert wot[2] >= rdt[0] + 2 and wot[4] >= 7
    cnt += [2] * 16
    for t in range(1, 16):
        d = []
        for _ in range(cnt[t]):
            if nxt < 32:
                assert nxt < 12 or (nxt - 12 + 1) // 2 <= t, (g, nxt, t)
                assert min((nxt - 2 + 1) // 2, 14) > t, (g, nxt, t)
                d += kv_wr(nxt) if (g == 'A' and 14 <= nxt < 14 + opts['nreg']) else kv(nxt)
                nxt += 1
        dw = []
        for hi, tt_ in enumerate(wot):
            if tt_ == t: dw += wo_half(hi // 2, hi % 2)
        d = dw + d if (opts['wof'] and g == 'A' and t < 8) else d + dw
        if t == opts['tlb']:
            d += [f'v_lshlrev_b32 v1, {opts["tsh"]}, v0',
                  (f'buffer_load_dword v218, v1, {sr(SFL)}, 0 offen', 'TL'),
                  (f'buffer_load_dword v219, v1, {sr(SPR)}, 0 offen', 'TL'),
                  (f'buffer_load_dword v220, v1, {sr(SOUT)}, 0 offen', 'TL')]
        if t == 7:
            d += ['v_mov_b32 v1, 0', (f'buffer_load_dwordx2 {vr(vE, 2)}, v1, {sr(SDBG)}, 0 offen sc1', 'EP')]
        if False: pass
        elif t < 15:
            sm = sm_max(t) + sm_check(t) + sm_exp(t)
            if t == 1: sm = [f'v_add_f32 v{vS+16+r}, v{vS+16+r}, v{vNM}' for r in range(16)] + sm
            kw = lambda: e.need_regs(ar(aK + 28, 4))
            kw.cost = 4
            X_ = opts['x_']
            if X_ & 1: sm = [i for i in sm if callable(i) or not i.startswith('v_exp')]
            if X_ & 2: sm = [i for i in sm if callable(i) or not i.startswith('v_cvt')]
            if X_ & 4: sm = [i for i in sm if not callable(i) and not i.startswith('v_max')]
            rk, rv = rd_k(t + 1), rd_v(t)
            if X_ & 8: rk = []
            if X_ & 16: rv = []
            streams = [(rk, 0, 8), (rv + WORD.get(t, []), 1, 16), (sm, 1, 18), (d, 0, 17), ([kw], 9, 10)]
            if t == 14: streams.append((rd_v(15), 10, 17))
            e.weave2(mf_pv(t - 1) + mf_qk(t + 1), streams, opts['slack'])
        else:
            sm = sm_max(t) + sm_check(t) + sm_exp(t)
            e.weave2(mf_pv(14), [(sm, 1, 10), (d, 0, 10)])
        if t < 15:
            tags = {f'K{t+2}', f'V{t+1}'}
            if t == rdt[0] - 1: tags.add('WO0')
            if t == rdt[1] - 1: tags.add('WO1')
            if t == 14: tags.add('EP')
            if t == 13: tags.add('V15')
            bar(tags)
    assert nxt == 32

e(f's_and_b32 s3, s{sB}, {opts["gmask"]}')
e('s_cbranch_scc0 L_grpA')
S0 = e.S.clone(); nb0 = nbar[0]
group_body('B')
e('s_branch L_common')
SB = e.S; nb1 = nbar[0]; nbar[0] = nb0
e.label('L_grpA')
e.S = S0
group_body('A')
assert nbar[0] == nb1
e.label('L_common')
e.S = Emit.merge_states(e.S, SB)
e.roles = ['A', 'B']
e(f'v_or_b32 v1, v{vE}, v{vE+1}')
e('v_cmp_eq_u32 vcc, 0, v1')
e('s_cbranch_vccnz L_epoch_spin')
e.label('L_epoch_ok')
P15 = vP + 8
seq = [mf_l(15, 0), mf_l(15, 1)]
for tt in range(4):
    for a in range(2):
        seq.append(f'{MF} {vr(vO+16*tt, 16)}, {ar(aVB(15) + (a*4+tt)*4, 4)}, {vr(P15+4*a, 4)}, {vr(vO+16*tt, 16)}')
def norm(tt):
    it = []
    for a in range(2):
        for p in range(4 * a, 4 * a + 4):
            r = vO + 16 * tt + 2 * p
            if opts['pk']: it.append(f'v_pk_mul_f32 {vr(r, 2)}, {vr(r, 2)}, {vr(vINV, 2)} op_sel_hi:[1,0]')
            else: it += [f'v_mul_f32 v{r}, v{vINV}, v{r}', f'v_mul_f32 v{r+1}, v{vINV}, v{r+1}']
        for p in range(4 * a, 4 * a + 4):
            r = vO + 16 * tt + 2 * p
            it.append(f'v_cvt_pk_bf16_f32 v{vQ+8*tt+p}, v{r}, v{r+1}')
        f = 2 * tt + a
        it.append(f'ds_write_b128 v{vXW}, {vr(vQ+4*f, 4)} offset:{f*1024}')
    return it
mo0 = mf_o(0); mo1 = mf_o(1)
own = sum(([mo0[f], mo1[f]] for f in range(8)), [])
e.weave(seq + own[:12], [([f'v_rcp_f32 v{vINV}, v{vL}'], 4, 5),
                         (norm(0), 5, 9), (norm(1), 9, 13), (norm(2), 13, 17), (norm(3), 17, 21)])
bar({'WO2'})
sU, sCNT, sTODO, sRDY, sI, sOFF, sUA, sLB, sOO, sOM, sMB = 20, 21, 22, 23, 24, 25, 26, 27, 28, 29, 32
vMV, vMR, vMO = 212, 213, 214
red_setup = [
    f's_lshl_b32 s{sU}, s{sW}, 4', f's_add_u32 s{sU}, s{sU}, s{sHKV}',
    f's_lshl_b32 s{sUA}, s{sU}, 10',
    f's_lshr_b32 s{sOO}, s{sU}, 3', f's_add_u32 s{sOO}, s{sOO}, s{sROT}',
    lambda: (e(f's_sub_u32 s{sI}, s{sOO}, 9'), e(f's_cselect_b32 s{sOO}, s{sOO}, s{sI}')),
    f's_lshl_b32 s{sOO}, s{sOO}, 7',
    f's_bfe_u32 s{sI}, s{sU}, 0x10001', f's_mul_i32 s{sI}, s{sI}, 36864', f's_add_u32 s{sOO}, s{sOO}, s{sI}',
    f's_bfe_u32 s{sI}, s{sU}, 0x10002', f's_lshl_b32 s{sI}, s{sI}, 6', f's_add_u32 s{sOO}, s{sOO}, s{sI}',
    f's_and_b32 s{sI}, s{sU}, 1', f's_lshl_b32 s{sI}, s{sI}, 4', f's_add_u32 s{sOO}, s{sOO}, s{sI}',
    lambda: (e(f's_sub_u32 s{sOM}, s{sROT}, 1'), e(f's_cselect_b32 s{sOM}, 8, s{sOM}')),
    f's_lshl_b32 s{sOM}, s{sOM}, 7',
    f's_and_b32 s{sI}, s{sW}, 1', f's_mul_i32 s{sI}, s{sI}, 36864', f's_add_u32 s{sOM}, s{sOM}, s{sI}',
    f's_and_b32 s{sI}, s{sHKV}, 3', f's_mul_i32 s{sI}, s{sI}, 9216', f's_add_u32 s{sOM}, s{sOM}, s{sI}',
    f's_lshr_b32 s{sI}, s{sW}, 1', f's_lshl_b32 s{sI}, s{sI}, 6', f's_add_u32 s{sOM}, s{sOM}, s{sI}',
    f's_bfe_u32 s{sI}, s{sHKV}, 0x10002', f's_lshl_b32 s{sI}, s{sI}, 5', f's_add_u32 s{sOM}, s{sOM}, s{sI}',
    f's_lshr_b32 s{sI}, s{sHKV}, 3', f's_lshl_b32 s{sI}, s{sI}, 4', f's_add_u32 s{sOM}, s{sOM}, s{sI}',
    f's_lshl_b32 s{sMB}, s{sU}, 7', f's_add_u32 s{sMB}, s{sMB}, 65536',
    f's_mov_b32 s{sTODO}, -1',
] + ([
    f's_bfe_u32 s{sI}, s{sU}, 0x20001', f's_lshl_b32 s{sI}, s{sI}, {opts["fls"]}',
] + ([lambda: (e(f's_cmp_lt_u32 s{sU}, {8*(opts["two"]+1)}'), e(f's_cselect_b32 s{sOFF}, s{sFL}, 0')), f's_add_u32 s{sI}, s{sI}, s{sOFF}'] if opts['two'] else []) + [
    f's_lshl_b32 s{sOFF}, s{sW}, {opts["fls"]}', f's_sub_u32 s{sOFF}, s{sOFF}, s{sI}',
    'v_and_b32 v1, 15, v0', f'v_lshlrev_b32 v1, {opts["fls"]+2}, v1', f'v_add_u32 v1, s{sI}, v1',
    'v_bfe_u32 v2, v0, 4, 1', f'v_mul_lo_u32 v2, s{sOFF}, v2', 'v_add_u32 v1, v1, v2',
] if opts['one_flag'] else [
    f's_lshr_b32 s{sI}, s{sU}, 1', f's_lshl_b32 s{sI}, s{sI}, 7',
    f's_lshl_b32 s{sOFF}, s{sW}, 7', f's_add_u32 s{sOFF}, s{sOFF}, 4096', f's_sub_u32 s{sOFF}, s{sOFF}, s{sI}',
    'v_and_b32 v1, 15, v0', 'v_lshlrev_b32 v1, 3, v1', f'v_add_u32 v1, s{sI}, v1',
    'v_bfe_u32 v2, v0, 4, 1', f'v_mul_u32_u24 v2, s{sOFF}, v2', 'v_add_u32 v1, v1, v2',
]) + [
    f's_mul_i32 s{sLB}, s{sW}, 18432', f's_add_u32 s{sLB}, s{sLB}, {RG*32768}',
    f'v_add_u32 v3, s{sLB}, v{vL16}',
    'v_and_b32 v2, 31, v0', 'v_lshlrev_b32 v7, 20, v2', 'v_mul_u32_u24 v2, 1152, v2', 'v_bfe_u32 v6, v0, 5, 1', 'v_lshl_add_u32 v2, v6, 5, v2',
    'v_mul_u32_u24 v8, 2304, v6', f'v_add_u32 v{vMO}, v7, v8',
    'v_bfe_u32 v7, v0, 3, 3', 'v_mul_u32_u24 v7, 73728, v7', 'v_and_b32 v8, 7, v0', f'v_lshl_add_u32 v{vMV}, v8, 4, v7',
    'v_lshlrev_b32 v7, 10, v6', 'v_bfe_u32 v8, v0, 2, 2', 'v_lshl_add_u32 v7, v8, 7, v7',
    'v_and_b32 v8, 1, v0', 'v_lshl_add_u32 v7, v8, 5, v7', 'v_bfe_u32 v8, v0, 4, 1', 'v_lshl_add_u32 v7, v8, 4, v7',
    'v_bfe_u32 v8, v0, 1, 1', 'v_lshl_add_u32 v7, v8, 3, v7', f'v_add_u32 v{vMR}, s{sLB}, v7',
    f's_mov_b32 s{sCNT}, {opts["spin"]}',
] + [f'v_mov_b32 v{vNM+i}, 0x3f803f80' for i in range(4)]
OPLAN = {}
for hi, iv in enumerate(int(x) for x in opts['oplan'].split(',')): OPLAN.setdefault(iv, []).append((6 + hi // 2, hi % 2))
LAG = opts['lag']
pub = 0
r2 = rd_wo(2)
e.weave(own[12:] + mo0[8:] + mo1[8:],
        [([f'ds_read_b128 {ar(aOO+4*f, 4)}, v{vXR} offset:{f*1024}' for f in range(8)], -1, 1),
         (wo_cb(5), 0, 12), (r2[:16], 4, 12), (r2[16:], 12, 18), (ep_o(0), 14, 20)])
mark()
bar({'WO3'})
nrs = (len(red_setup) + 2) // 3
for j in range(2, 9):
    streams = []
    if j in OPLAN: streams.append((sum((wo_half(*h) for h in OPLAN[j]), []), -1, 10 if len(OPLAN[j]) > 1 else 6))
    if j < 8: streams.append((rd_wo(j + 1), 0, 14))
    ep = ep_o(j - 1)
    if j - 1 - LAG >= 0: ep += publish(pub); pub += 1
    streams.append((ep, opts['epg'] if j in OPLAN else 3, 16 if j in OPLAN else 12))
    if j in (5, 6, 7): streams.append((red_setup[(j-5)*nrs:(j-4)*nrs], 0, 16))
    if j == 8 and opts['r0'] == 1: streams.append(([(f'buffer_load_dwordx2 v[4:5], v1, {sr(SFL)}, 0 offen sc1', 'POLL')], opts['pg'], opts['pg'] + 1))
    e.weave(mf_o(j), streams)
    if j < 7: bar({f'WO{j+2}'})
put(ep_o(8))
mark()
def masked_round():
    e(f's_mov_b32 s{sOFF}, s{sUA}')
    for h in range(16):
        if h % 4 == 0: e(f's_add_u32 m0, s{sLB}, {h*1024}')
        e(f's_bitcmp1_b32 s{sRDY}, {h}')
        e('s_cselect_b64 exec, -1, 0')
        off = f' offset:{(h%4)*1024}' if h % 4 else ''
        if opts['thr'] and h >= opts['thr']: e(f's_waitcnt vmcnt({opts["thr"]-1})')
        e(f'buffer_load_dwordx4 v{vL16}, {sr(SPR)}, s{sOFF} offen{off} {opts["ld"]} lds', 'RD')
        if h < 15: e(f's_add_u32 s{sOFF}, s{sOFF}, {73728 - 1024 if h % 4 != 3 else 73728 + 3072}')
    e('s_mov_b64 exec, -1')
if opts['wgf']:
    e(f's_lshl_b32 s{sTODO}, 1, s{sHKV}')
    e(f's_andn2_b32 s{sTODO}, 0xffff, s{sTODO}')
    e('v_and_b32 v1, 15, v0')
    e(f'v_lshlrev_b32 v1, {opts["fls"]+2}, v1')
    if opts['mp']:
        NP = opts['mp']
        pl = lambda k: f'buffer_load_dwordx2 v[{4+2*k}:{5+2*k}], v1, {sr(SFL)}, 0 offen sc1'
        e(f's_cmp_lg_u32 s{sW}, 0')
        e('s_cbranch_scc1 L_w123')
        e(pl(0))
        e('s_waitcnt vmcnt(0)')
        e('s_barrier')
        mark()
        e(f'v_cmp_ne_u64 vcc, v[4:5], {vr(vE, 2)}')
        e('s_nop 0')
        e(f's_and_b32 s{sRDY}, vcc_lo, s{sTODO}')
        e('s_cbranch_scc0 L_rel')
        for k in range(NP - 1):
            e(pl(k))
            e(f's_nop 15'); e('s_nop 15')
        e.label('L_poll')
        e.S = State()
        for k in range(NP):
            e(pl((k + NP - 1) % NP))
            e(f's_waitcnt vmcnt({NP-1})')
            e(f'v_cmp_ne_u64 vcc, v[{4+2*k}:{5+2*k}], {vr(vE, 2)}')
            e('s_nop 0')
            e(f's_and_b32 s{sRDY}, vcc_lo, s{sTODO}')
            e('s_cbranch_scc0 L_rel')
        e(f's_sub_u32 s{sCNT}, s{sCNT}, 1')
        e('s_cbranch_scc0 L_poll')
        e('s_branch L_rel')
        e.label('L_w123')
        e('s_waitcnt vmcnt(0)')
        e('s_barrier')
        e(f's_cmp_lg_u32 s{sW}, 1')
        e('s_cbranch_scc1 L_nopub')
        e(f'v_subrev_u32 v{vFLV}, {1 << opts["fls"]}, v{vFLV}')
        e(f'buffer_store_dwordx2 {vr(vE, 2)}, v{vFLV}, {sr(SFL)}, 0 offen sc1')
        e.label('L_nopub')
        nbar[0] -= 1; mark()
    else:
        e(f's_cmp_lg_u32 s{sW}, 0')
        e('s_cbranch_scc1 L_w123')
        e(f'buffer_load_dwordx2 v[4:5], v1, {sr(SFL)}, 0 offen sc1')
        e('s_waitcnt vmcnt(0)')
        e('s_barrier')
        e(f'buffer_store_dwordx2 {vr(vE, 2)}, v{vFLV}, {sr(SFL)}, 0 offen sc1')
        mark()
        e('s_branch L_chk')
        e.label('L_poll')
        e.S = State()
        e(f'buffer_load_dwordx2 v[4:5], v1, {sr(SFL)}, 0 offen sc1')
        e(f's_sub_u32 s{sCNT}, s{sCNT}, 1')
        e('s_cbranch_scc1 L_rel')
        e('s_waitcnt vmcnt(0)')
        e.label('L_chk')
        e(f'v_cmp_ne_u64 vcc, v[4:5], {vr(vE, 2)}')
        e('s_nop 0')
        e(f's_and_b32 s{sRDY}, vcc_lo, s{sTODO}')
        e('s_cbranch_scc1 L_poll')
        e('s_branch L_rel')
        e.label('L_w123')
        e('s_waitcnt vmcnt(0)')
        e('s_barrier')
        nbar[0] -= 1; mark()
    e.label('L_rel')
    e('s_barrier')
    e(f's_add_u32 m0, s{sLB}, 16384')
    e(f's_add_u32 s{sOFF}, s{sMB}, {8*73728 - 1024}')
    e(f'buffer_load_dwordx4 v{vMV}, {sr(SPR)}, s{sMB} offen {opts["ld"]} lds')
    e(f'buffer_load_dwordx4 v{vMV}, {sr(SPR)}, s{sOFF} offen offset:1024 {opts["ld"]} lds')
    for h in range(16):
        if opts['wgf'] == 2:
            e(f'buffer_load_dwordx4 {ar(4*h, 4)}, v{vL16}, {sr(SPR)}, s{sUA} offen {opts["ld"]}')
            if h < 15: e(f's_add_u32 s{sUA}, s{sUA}, 73728')
            continue
        if h % 4 == 0: e(f's_add_u32 m0, s{sLB}, {h*1024}')
        off = f' offset:{(h%4)*1024}' if h % 4 else ''
        e(f'buffer_load_dwordx4 v{vL16}, {sr(SPR)}, s{sUA} offen{off} {opts["ld"]} lds')
        if h < 15: e(f's_add_u32 s{sUA}, s{sUA}, {73728 - 1024 if h % 4 != 3 else 73728 + 3072}')
else:
    if opts['r0'] == 2: e(f'buffer_load_dwordx2 v[4:5], v1, {sr(SFL)}, 0 offen sc1', 'POLL')
    if opts['r0'] == 1:
        e.wait_vm({'POLL'})
        e(f'v_cmp_eq_u64 vcc, v[4:5], {vr(vE, 2)}')
        e('s_nop 0')
        e(f's_and_b32 s{sRDY}, vcc_lo, 0xffff')
        e(f's_andn2_b32 s{sTODO}, s{sTODO}, s{sRDY}')
        masked_round()
    while pub < 9: put(publish(pub)); pub += 1
    mark()
    if opts['r0'] == 2:
        e.wait_vm({'POLL'})
        e('s_branch L_chk')
    e.label('L_poll')
    e.S = State()
    if opts['sleep']: e(f's_sleep {opts["sleep"]}')
    e(f'buffer_load_dwordx2 v[4:5], v1, {sr(SFL)}, 0 offen {opts["pp"]}')
    e(f's_sub_u32 s{sCNT}, s{sCNT}, 1')
    e('s_cbranch_scc1 L_go')
    e('s_waitcnt vmcnt(0)')
    e.label('L_chk')
    e(f'v_cmp_eq_u64 vcc, v[4:5], {vr(vE, 2)}')
    e('s_nop 0')
    if opts['rtrace']:
        e('s_memrealtime s[98:99]'); e('s_waitcnt lgkmcnt(0)')
        e(f's_sub_u32 s30, {opts["spin"]}, s{sCNT}')
        e('s_min_u32 s30, s30, 30')
        e(f's_and_b32 s31, vcc_lo, s{sTODO}')
        e('s_mov_b32 m0, s30')
        e(f'v_writelane_b32 v{vPA}, s98, m0')
        e('s_add_u32 m0, s30, 31')
        e(f'v_writelane_b32 v{vPA}, s31, m0')
    e(f's_and_b32 s{sRDY}, vcc_lo, s{sTODO}')
    if opts['allrdy'] == 1:
        e(f's_cmp_eq_u32 s{sRDY}, -1')
        e('s_cbranch_scc0 L_poll')
    if opts['allrdy'] == 2:
        e(f's_and_b32 s{sI}, s{sRDY}, 0xffff')
        e(f's_cmp_eq_u32 s{sI}, 0xffff')
        e(f's_cselect_b32 s{sI}, -1, 0xffff0000')
        e(f's_and_b32 s{sRDY}, s{sRDY}, s{sI}')
    e(f's_cmp_ge_u32 s{sRDY}, 0xffff0000')
    e('s_cbranch_scc0 L_nomini')
    e(f's_add_u32 m0, s{sLB}, 16384')
    e(f's_add_u32 s{sOFF}, s{sMB}, {8*73728 - 1024}')
    e(f'buffer_load_dwordx4 v{vMV}, {sr(SPR)}, s{sMB} offen {opts["ld"]} lds')
    e(f'buffer_load_dwordx4 v{vMV}, {sr(SPR)}, s{sOFF} offen offset:1024 {opts["ld"]} lds')
    e(f's_and_b32 s{sTODO}, s{sTODO}, 0xffff')
    e.label('L_nomini')
    e(f's_and_b32 s{sRDY}, s{sRDY}, 0xffff')
    e('s_cbranch_scc0 L_noround')
    e(f's_andn2_b32 s{sTODO}, s{sTODO}, s{sRDY}')
    masked_round()
    e.label('L_noround')
    e(f's_cmp_lg_u32 s{sTODO}, 0')
    e('s_cbranch_scc1 L_poll')
if opts['wgf'] == 2:
    mark()
    e('s_waitcnt vmcnt(16)')
    for m in range(2):
        for sec in range(2): e(f'ds_read_b64_tr_b16 {ar(64+4*m+2*sec, 2)}, v{vMR} offset:{16384 + m*64 + sec*512}')
    for m in range(2): e(f'{MF} {vr(vO+16*m, 16)}, {ar(64+4*m, 4)}, {vr(vNM, 4)}, 0')
    cv = []; stv = []
    for m in range(2):
        for c in range(2):
            d = vO + 32 + 8 * m + 4 * c
            cv += [f'v_cvt_pk_bf16_f32 v{d+p}, v{vO+16*m+8*c+2*p}, v{vO+16*m+8*c+2*p+1}' for p in range(4)]
            so = sOM if m == 0 else sI
            stv.append(f'buffer_store_dwordx4 {vr(d, 4)}, v{vMO}, {sr(SOUT)}, s{so} offen offset:{c*1152} {opts["out"]}')
    e(f's_add_u32 s{sI}, s{sOM}, 4608')
    for h in range(16):
        e(f's_waitcnt vmcnt({15-h})')
        e(f'{MF} {vr(vS, 16)}, {ar(aPERM, 4)}, {ar(4*h, 4)}, ' + ('0' if h == 0 else vr(vS, 16)))
        if 5 <= h < 13: put(cv[2*(h-5):2*(h-5)+2])
    mark()
    put(stv)
    for p in range(4): e(f'v_cvt_pk_bf16_f32 v{vP+p}, v{vS+2*p}, v{vS+2*p+1}')
    e(f'buffer_store_dwordx4 {vr(vP, 4)}, v2, {sr(SOUT)}, s{sOO} offen {opts["out"]}')
else:
    e.label('L_go')
    mark()
    e('s_waitcnt vmcnt(0)')
    mark()
    for m in range(2):
        for sec in range(2): e(f'ds_read_b64_tr_b16 {ar(64+4*m+2*sec, 2)}, v{vMR} offset:{16384 + m*64 + sec*512}')
    for h in range(16): e(f'ds_read_b128 {ar(4*h, 4)}, v3 offset:{h*1024}')
    for m in range(2): e(f'{MF} {vr(vO+16*m, 16)}, {ar(64+4*m, 4)}, {vr(vNM, 4)}, 0')
    mini = []
    for m in range(2):
        for c in range(2):
            d = vO + 32 + 8 * m + 4 * c
            mini += [f'v_cvt_pk_bf16_f32 v{d+p}, v{vO+16*m+8*c+2*p}, v{vO+16*m+8*c+2*p+1}' for p in range(4)]
            if m == 1 and c == 0: mini.append(f's_add_u32 s{sOM}, s{sOM}, 4608')
            mini.append(f'buffer_store_dwordx4 {vr(d, 4)}, v{vMO}, {sr(SOUT)}, s{sOM} offen offset:{c*1152} {opts["out"]}')
    e.weave([f'{MF} {vr(vS, 16)}, {ar(aPERM, 4)}, {ar(4*h, 4)}, ' + ('0' if h == 0 else vr(vS, 16)) for h in range(16)], [(mini, 4, 14)])
    for p in range(4): e(f'v_cvt_pk_bf16_f32 v{vP+p}, v{vS+2*p}, v{vS+2*p+1}')
    e(f'buffer_store_dwordx4 {vr(vP, 4)}, v2, {sr(SOUT)}, s{sOO} offen {opts["out"]}')
e.label('L_done')
if opts['spinx'] >= 0:
    e('s_waitcnt vmcnt(0)')
    mark()
    e('s_memrealtime s[96:97]')
    e('s_waitcnt lgkmcnt(0)')
    e('s_sub_u32 s98, s98, s100')
    e('s_lshl_b32 s98, s98, 2')
    e('s_add_u32 s98, s98, s96')
    e.label('L_spinx')
    e('s_memrealtime s[96:97]')
    e('s_waitcnt lgkmcnt(0)')
    e('s_sub_u32 s97, s96, s98')
    e('s_cmp_lt_i32 s97, 0')
    e('s_cbranch_scc1 L_spinx')
if PROF:
    mark()
    e('s_waitcnt vmcnt(0)')
    mark(); mark()
    e(f'v_writelane_b32 v{vPA}, s96, 63')
    mk_srd(SWS, 18, None, 0x10000000)
    e('s_lshl_b32 s62, s2, 11')
    e('s_add_u32 s62, s62, 0x9000000')
    e('v_and_b32 v2, 63, v0'); e('v_lshrrev_b32 v3, 6, v0'); e('v_lshlrev_b32 v2, 2, v2'); e('v_lshl_add_u32 v2, v3, 9, v2')
    e(f'buffer_store_dword v{vPA}, v2, {sr(SWS)}, s62 offen')
    e(f'buffer_store_dword v{vPB}, v2, {sr(SWS)}, s62 offen offset:256')
    print('bars', nbar[0], file=sys.stderr)
e.label('L_end')
e('s_endpgm')
e.label('L_epoch_spin')
e.S = State()
e(f's_mov_b32 s3, {opts["spin"]}')
e('v_mov_b32 v1, 0')
e.label('L_epoch_loop')
e(f'buffer_load_dwordx2 {vr(vE, 2)}, v1, {sr(SDBG)}, 0 offen sc1')
e('s_sub_u32 s3, s3, 1')
e('s_cbranch_scc1 L_epoch_ok')
e('s_waitcnt vmcnt(0)')
e(f'v_or_b32 v2, v{vE}, v{vE+1}')
e('v_cmp_eq_u32 vcc, 0, v2')
e('s_cbranch_vccnz L_epoch_loop')
e('s_branch L_epoch_ok')
for t in stubs:
    e.label(f'L_stub{t}')
    e.raw(f'    s_call_b64 s[{sRET}:{sRET+1}], L_rescale')
    e.raw(f'    s_branch L_back{t}')
e.label('L_rescale')
e.S = State()
e('s_nop 15'); e('s_nop 15')
e(f'v_mov_b32 v{vMX+1}, v{vMX}')
e(f'v_permlane32_swap_b32 v{vMX}, v{vMX+1}')
e(f'v_max3_f32 v{vMX}, v{vMX}, v{vMX+1}, 0')
e(f'v_ceil_f32 v{vMX}, v{vMX}')
e(f'v_exp_f32 v{vMX+1}, -v{vMX}')
for r in range(48): e(f'v_sub_f32 v{vS+r}, v{vS+r}, v{vMX}')
for r in range(68): e(f'v_mul_f32 v{vO+r}, v{vO+r}, v{vMX+1}')
for r in range(16):
    e(f'v_lshlrev_b32 v2, 16, v{vP+r}')
    e(f'v_and_b32 v3, 0xffff0000, v{vP+r}')
    e(f'v_mul_f32 v2, v2, v{vMX+1}')
    e(f'v_mul_f32 v3, v3, v{vMX+1}')
    e(f'v_cvt_pk_bf16_f32 v{vP+r}, v2, v3')
e('s_nop 3')
e(f's_setpc_b64 s[{sRET}:{sRET+1}]')
e.label('L_textend')

hdr = f"""; GQA block for gfx950: out = softmax((x wq) k^T / sqrt(128)) v wo, one fused kernel (generated by gen/gen11.py)
; per-launch nonce published through d_debug).  All tiles travel by LDS-DMA with source-side swizzles.
; @launch grid=(256,1,1) block=(256,1,1) lds=163840
.amdgcn_target "amdgcn-amd-amdhsa--gfx950"
.text
"""
kd = f""".section .rodata,"a"
.p2align 6
.amdhsa_kernel {K}
  .amdhsa_next_free_vgpr 512
  .amdhsa_next_free_sgpr 102
  .amdhsa_accum_offset 256
  .amdhsa_group_segment_fixed_size 0
  .amdhsa_kernarg_size 64
  .amdhsa_user_sgpr_count 2
  .amdhsa_user_sgpr_kernarg_segment_ptr 1
  .amdhsa_system_sgpr_workgroup_id_x 1
.end_amdhsa_kernel
"""
open(sys.argv[1], 'w').write(hdr + e.text() + kd)
print(e.count, 'nops', e.nops, file=sys.stderr)
```
